```python
import torch

def _softmax(x, axis=-1):
    return torch.softmax(x, dim=axis)
def _gelu(x):
    return torch.nn.functional.gelu(x, approximate="tanh")
def _silu(x):
    return torch.nn.functional.silu(x)
def _sigmoid(x):
    return torch.sigmoid(x)
def _layernorm(x, axis=-1, eps=1e-5):
    m = x.mean(dim=axis, keepdim=True)
    v = x.var(dim=axis, keepdim=True, unbiased=False)
    return (x - m) / torch.sqrt(v + eps)
def _scatter_add(tgt, idx, src, axis=0):
    return tgt.clone().index_add_(axis, idx, src)
def _segment_sum(src, seg, n):
    out = torch.zeros((n,) + src.shape[1:], dtype=src.dtype)
    return out.index_add_(0, seg, src)
def _pad(x, pw):
    flat = tuple(v for pair in reversed(pw) for v in pair)
    return torch.nn.functional.pad(x, flat)

kernel_name = 'standalone__mha_block_cached__near_ridge'

def setup_inputs():

    _w = (lambda a: (lambda t: t.to(torch.bfloat16) if t.is_floating_point() else t)(torch.as_tensor(a)))
    B, Sq, D = 16, 96, 640
    H, Sk, Dh = 32, 512, 128
    return {
        "x": _w((lambda *s: torch.randn(*s, dtype=torch.bfloat16) * 0.8)(B, Sq, D)),
        "k_cache": _w((lambda *s: torch.randn(*s, dtype=torch.bfloat16) * 0.8)(B, H, Sk, Dh)),
        "v_cache": _w((lambda *s: torch.randn(*s, dtype=torch.bfloat16) * 0.05)(B, H, Sk, Dh)),
        "wq": _w((lambda *s: torch.randn(*s, dtype=torch.bfloat16) * 0.8)(D, H * Dh) * (D ** -0.5)),
        "wo": _w((lambda *s: torch.randn(*s, dtype=torch.bfloat16) * 0.05)(H * Dh, D) * ((H * Dh) ** -0.5)),
    }

def reference(x, k_cache, v_cache, wq, wo):
    B, Sq, D = x.shape
    H, Dh = 32, 128
    q = (lambda x, *d: x.permute(*d))((x @ wq).reshape(B, Sq, H, Dh), 0, 2, 1, 3)
    scores = torch.einsum("bhqd,bhkd->bhqk", q, k_cache) * (Dh ** -0.5)
    p = _softmax(scores, axis=-1)
    o = torch.einsum("bhqk,bhkd->bhqd", p, v_cache)
    return (lambda x, *d: x.permute(*d))(o, 0, 2, 1, 3).reshape(B, Sq, H * Dh) @ wo
```

```python
def vr(a, n=1):
    return f"v{a}" if n == 1 else f"v[{a}:{a + n - 1}]"


def sr(a, n=1):
    return f"s{a}" if n == 1 else f"s[{a}:{a + n - 1}]"


def vs(a, n=1):
    return [f"v{i}" for i in range(a, a + n)]


def ss(a, n=1):
    return [f"s{i}" for i in range(a, a + n)]


class Kern:
    def __init__(self):
        self.lines = []
        self.slot = 0
        self.valu_w = {}
        self.trans_w = {}
        self.mfma_w = {}
        self.mfma_c = {}
        self.salu_m0 = -100
        self.store_d = {}
        self.vmq = []
        self.lgq = []
        self.nlabel = 0
        self.stats = {}

    def comment(self, t):
        self.lines.append(f"    ; {t}")

    def label(self, name):
        self.lines.append(f"{name}:")

    def newlabel(self, p="L"):
        self.nlabel += 1
        return f"{p}_{self.nlabel}"

    def _emit(self, text, slots=1):
        self.lines.append("    " + text)
        self.slot += slots
        op = text.split()[0]
        self.stats[op] = self.stats.get(op, 0) + 1

    def nop(self, n):
        while n > 0:
            k = min(n, 16)
            self._emit(f"s_nop {k - 1}", k)
            n -= k

    def _need(self, prod_slot, ws):
        return max(0, ws - (self.slot - prod_slot - 1))

    def fence(self, n=20):
        need = 0
        for r, s in self.valu_w.items():
            need = max(need, self._need(s, 5))
        for r, (s, p, b, k) in self.mfma_w.items():
            need = max(need, self._need(s, 8 if p == 4 else 12))
        for r, (s, p) in self.mfma_c.items():
            need = max(need, self._need(s, 3 if p == 4 else 7))
        for r, s in self.store_d.items():
            need = max(need, self._need(s, 2))
        need = max(need, self._need(self.salu_m0, 1))
        self.nop(need)

    def salu(self, text, wr=(), rd=()):
        need = 0
        for r in rd:
            if r in self.valu_w and r.startswith("s"):
                need = max(need, self._need(self.valu_w[r], 1))
        self.nop(need)
        if "m0" in wr:
            self.salu_m0 = self.slot
        for r in wr:
            self.valu_w.pop(r, None)
        self._emit(text)

    def valu(self, text, wr=(), rd=(), trans=False, perm=False, lane=False):
        need = 0
        for r in rd:
            if r.startswith("v"):
                if r in self.mfma_w:
                    s, p, _, _ = self.mfma_w[r]
                    need = max(need, self._need(s, 8 if p == 4 else 12))
                if r in self.trans_w and not trans:
                    need = max(need, self._need(self.trans_w[r], 1))
                if perm and r in self.valu_w:
                    need = max(need, self._need(self.valu_w[r], 2))
                if lane and r in self.valu_w:
                    need = max(need, self._need(self.valu_w[r], 1))
            else:
                if r in self.valu_w:
                    need = max(need, self._need(self.valu_w[r], 2))
        for r in wr:
            if r in self.mfma_w:
                s, p, _, _ = self.mfma_w[r]
                need = max(need, self._need(s, 8 if p == 4 else 12))
            if r in self.mfma_c:
                s, p = self.mfma_c[r]
                need = max(need, self._need(s, 3 if p == 4 else 7))
            if r in self.store_d:
                need = max(need, self._need(self.store_d[r], 2))
        self.nop(need)
        for r in wr:
            self.valu_w[r] = self.slot
            self.mfma_w.pop(r, None)
            if trans:
                self.trans_w[r] = self.slot
            else:
                self.trans_w.pop(r, None)
        self._emit(text)

    def mfma(self, d, a, b, c=None, shape="16x16x32"):
        nd = 4 if shape == "16x16x32" else 16
        p = 4 if shape == "16x16x32" else 8
        need = 0
        for r in vs(a, 4) + vs(b, 4):
            if r in self.valu_w:
                need = max(need, self._need(self.valu_w[r], 2))
            if r in self.mfma_w:
                s, pp, _, _ = self.mfma_w[r]
                need = max(need, self._need(s, 8 if pp == 4 else 12))
        if c is not None:
            for r in vs(c, nd):
                if r in self.valu_w:
                    need = max(need, self._need(self.valu_w[r], 2))
                if r in self.mfma_w:
                    s, pp, bb, nn = self.mfma_w[r]
                    if not (bb == c and nn == nd and pp == p):
                        need = max(need, self._need(s, 6 if pp == 4 else 10))
        for r in vs(d, nd):
            if r in self.mfma_w:
                s, pp, bb, nn = self.mfma_w[r]
                if not (bb == d and nn == nd and pp == p) :
                    need = max(need, self._need(s, 6 if pp == 4 else 10))
            if r in self.store_d:
                need = max(need, self._need(self.store_d[r], 2))
        self.nop(need)
        for r in vs(d, nd):
            self.mfma_w[r] = (self.slot, p, d, nd)
            self.valu_w.pop(r, None)
            self.trans_w.pop(r, None)
        if c is not None:
            for r in vs(c, nd):
                self.mfma_c[r] = (self.slot, p)
        ctext = vr(c, nd) if c is not None else "0"
        self._emit(f"v_mfma_f32_{shape}_bf16 {vr(d, nd)}, {vr(a, 4)}, {vr(b, 4)}, {ctext}")

    def _mem_need(self, wr, rd):
        need = 0
        for r in list(rd) + list(wr):
            if r in self.mfma_w:
                s, p, _, _ = self.mfma_w[r]
                need = max(need, self._need(s, 8 if p == 4 else 12))
        for r in wr:
            if r in self.store_d:
                need = max(need, self._need(self.store_d[r], 1))
        for r in rd:
            if r.startswith("s") and r in self.valu_w:
                need = max(need, self._need(self.valu_w[r], 5))
            if r.startswith("v") and r in self.trans_w:
                need = max(need, self._need(self.trans_w[r], 1))
        return need

    def ds(self, text, wr=(), rd=(), tag=None):
        self.nop(self._mem_need(wr, rd))
        for r in wr:
            self.valu_w.pop(r, None)
            self.mfma_w.pop(r, None)
            self.trans_w.pop(r, None)
        self.lgq.append(tag)
        self._emit(text)

    def vmem(self, text, wr=(), rd=(), tag=None, dma=False, store_data=()):
        need = self._mem_need(wr, rd)
        if dma:
            need = max(need, self._need(self.salu_m0, 1))
        self.nop(need)
        for r in wr:
            self.valu_w.pop(r, None)
            self.mfma_w.pop(r, None)
            self.trans_w.pop(r, None)
        for r in store_data:
            self.store_d[r] = self.slot
        self.vmq.append(tag)
        self._emit(text)

    def wait_vm(self, tag):
        idx = [i for i, t in enumerate(self.vmq) if t == tag]
        if not idx:
            return
        n = len(self.vmq) - 1 - idx[-1]
        assert n <= 63, n
        self.vmq = self.vmq[idx[-1] + 1:]
        self._emit(f"s_waitcnt vmcnt({n})")

    def wait_vm0(self):
        self.vmq = []
        self._emit("s_waitcnt vmcnt(0)")

    def wait_lg(self, tag):
        idx = [i for i, t in enumerate(self.lgq) if t == tag]
        if not idx:
            return
        n = len(self.lgq) - 1 - idx[-1]
        n = min(n, 15)
        self.lgq = self.lgq[len(self.lgq) - n:] if n else []
        self._emit(f"s_waitcnt lgkmcnt({n})")

    def wait_lg0(self, force=False):
        if self.lgq or force:
            self.lgq = []
            self._emit("s_waitcnt lgkmcnt(0)")

    def barrier(self):
        self._emit("s_barrier")

    def v2(self, op, d, a, b):
        rd = [x for x in (a, b) if isinstance(x, str) and x[0] in "vs" and x[1:].isdigit()]
        self.valu(f"{op} {d}, {a}, {b}", wr=[d], rd=rd)

    def v3(self, op, d, a, b, c):
        rd = []
        for x in (a, b, c):
            if isinstance(x, str):
                y = x.lstrip("-")
                if y[0] in "vs" and y[1:].isdigit():
                    rd.append(y)
        self.valu(f"{op} {d}, {a}, {b}, {c}", wr=[d], rd=rd)

    def v1(self, op, d, a, trans=False):
        rd = [a] if isinstance(a, str) and a[0] in "vs" and a[1:].isdigit() else []
        self.valu(f"{op} {d}, {a}", wr=[d], rd=rd, trans=trans)

    def s2(self, op, d, a, b):
        rd = [x for x in (a, b) if isinstance(x, str) and x[0] == "s" and x[1:].isdigit()]
        self.salu(f"{op} {d}, {a}, {b}", wr=[d], rd=rd)

    def s1(self, op, d, a):
        rd = [a] if isinstance(a, str) and a[0] == "s" and a[1:].isdigit() else []
        self.salu(f"{op} {d}, {a}", wr=[d], rd=rd)

    def text(self):
        return "\n".join(self.lines) + "\n"
```

```python
import sys
import struct
from dsl import Kern, vr, sr, vs, ss

NAME = "standalone__mha_block_cached__near_ridge"
X_BYTES = 16 * 96 * 640 * 2
KV_BYTES = 16 * 32 * 512 * 128 * 2
W_BYTES = 640 * 4096 * 2
OUT_BYTES = X_BYTES
WS_BYTES = 268435456
OWS = 0
WOT = 16 << 20
QDBG = 32 << 20
CSCALE = (128 ** -0.5) * 1.4426950408889634


def f32bits(x):
    return struct.unpack("<I", struct.pack("<f", x))[0]


def build_srd(k, d, plo, nbytes):
    k.s1("s_mov_b32", f"s{d}", f"s{plo}")
    k.s2("s_and_b32", f"s{d + 1}", f"s{plo + 1}", "0xffff")
    k.s1("s_mov_b32", f"s{d + 2}", hex(nbytes))
    k.s1("s_mov_b32", f"s{d + 3}", "0x20000")


def gen_k1(opt):
    k = Kern()
    NT = " nt" if opt.get("nt", True) else ""
    SX, SK, SV, SWQ, SWO, SWS = 4, 8, 12, 16, 20, 24
    sW, sGrp, sQh, sKh, sWl, sHp, sB = "s48", "s49", "s50", "s51", "s52", "s53", "s54"
    sKV, sT0, sT1, sT2, sC, sRing, sM0K, sM0W, sM0X, sOff = (
        "s55", "s56", "s57", "s58", "s59", "s60", "s61", "s62", "s63", "s64")
    sWqOff, sXOff, sHead = "s65", "s66", "s67"
    XS0 = 131072
    WOL = 131072
    STAT = 155648

    k.salu("s_cmp_ge_u32 s2, 256")
    k.salu("s_cbranch_scc1 K1_END")
    k.salu("s_load_dwordx16 s[32:47], s[0:1], 0")
    k.v2("v_lshrrev_b32", "v1", 6, "v0")
    k.v2("v_and_b32", "v0", 63, "v0")
    k.valu(f"v_readfirstlane_b32 {sW}, v1", wr=[sW], rd=["v1"], lane=True)
    k.s2("s_and_b32", sT0, "s2", 7)
    k.s2("s_lshr_b32", sT1, "s2", 3)
    k.s2("s_and_b32", sHp, sT0, 3)
    k.s2("s_lshl_b32", sHp, sHp, 2)
    k.s2("s_and_b32", sT2, sT1, 3)
    k.s2("s_add_u32", sHp, sHp, sT2)
    k.s2("s_lshr_b32", sB, sT0, 2)
    k.s2("s_lshl_b32", sB, sB, 3)
    k.s2("s_lshr_b32", sT2, sT1, 2)
    k.s2("s_add_u32", sB, sB, sT2)
    k.s2("s_lshr_b32", sGrp, sW, 2)
    k.s2("s_and_b32", sQh, sW, 1)
    k.s2("s_bfe_u32", sKh, sW, "0x10001")
    k.s2("s_and_b32", sWl, sW, 3)
    k.s2("s_lshl_b32", sHead, sHp, 1)
    k.s2("s_add_u32", sHead, sHead, sGrp)
    k.s2("s_lshl_b32", sT0, sB, 5)
    k.s2("s_add_u32", sT0, sT0, sHead)
    k.s2("s_lshl_b32", sKV, sT0, 17)
    k.s2("s_lshl_b32", sT1, sWl, 12)
    k.s2("s_add_u32", sKV, sKV, sT1)
    k.s2("s_lshl_b32", sRing, sGrp, 16)
    k.s2("s_add_u32", sM0K, sRing, sT1)
    k.s2("s_lshl_b32", sM0W, sW, 11)
    k.s2("s_add_u32", sM0W, sM0W, 32768)
    k.s2("s_mul_i32", sM0X, sW, 1536)
    k.s2("s_add_u32", sM0X, sM0X, XS0)
    k.s1("s_mov_b32", sC, hex(f32bits(CSCALE)))

    LANE = "v0"
    T0, T1, T2, T3 = "v1", "v2", "v3", "v4"
    vG, vQ = "v5", "v6"
    KD = [8, 9, 10, 11]
    KR = [12, 13, 14, 15]
    VR = [8, 9, 10, 11, 12, 13, 14, 15]
    VD = [16, 17]
    ST = 18
    M = [18, 19, 20]
    LACC = [24, 26, 28]
    AL = [30, 21, 22]
    FR = 32
    QF = 64
    S0 = 112
    P0 = 208
    P1 = 112
    WQD = [160, 161]
    XD = [162, 163]
    WQR = [164, 165, 166, 167]
    XR = [168, 169]
    QW, QR = 170, 171
    ACC = 112

    def v(i):
        return f"v{i}"

    k.v2("v_lshrrev_b32", vG, 4, LANE)
    k.v2("v_and_b32", vQ, 15, LANE)
    k.v2("v_lshrrev_b32", T0, 5, LANE)
    k.s2("s_lshl_b32", sT0, sKh, 2)
    k.v2("v_add_u32", T1, sT0, T0)
    k.s2("s_lshl_b32", sT0, sW, 2)
    k.v2("v_add_u32", T0, sT0, T0)
    k.v2("v_lshlrev_b32", T0, 13, T0)
    k.s2("s_lshl_b32", sT0, sHp, 9)
    k.v2("v_add_u32", T0, sT0, T0)
    k.v3("v_bfe_u32", T2, LANE, 4, 1)
    k.v3("v_lshl_add_u32", T0, T2, 8, T0)
    for i in range(2):
        k.v2("v_add_u32", T2, 2 * i, T1)
        k.v2("v_lshlrev_b32", T2, 1, T2)
        k.v2("v_xor_b32", T2, T2, vQ)
        k.v3("v_lshl_add_u32", v(WQD[i]), T2, 4, T0)
        if i:
            k.v2("v_add_u32", v(WQD[i]), 2 * 8192 - 1024, v(WQD[i]))
    k.s2("s_mul_i32", sT0, sW, 12)
    k.v2("v_lshrrev_b32", T0, 3, LANE)
    k.v2("v_add_u32", T0, sT0, T0)
    k.v2("v_and_b32", T3, 7, LANE)
    k.s2("s_mul_i32", sT1, sB, 96)
    k.s1("s_mov_b32", sT2, 1280)
    for i in range(2):
        if i:
            k.v2("v_add_u32", T0, 8, T0)
        k.v3("v_bfe_u32", T1, T0, 1, 3)
        k.v2("v_xor_b32", T1, T1, T3)
        k.v2("v_add_u32", T2, sT1, T0)
        k.v2("v_mul_lo_u32", T2, T2, sT2)
        k.v3("v_lshl_add_u32", v(XD[i]), T1, 4, T2)
        if i:
            k.v2("v_subrev_u32", v(XD[i]), 1024, v(XD[i]))
    k.v2("v_xor_b32", T0, vQ, vG)
    k.v2("v_lshlrev_b32", T0, 4, T0)
    k.v3("v_lshl_add_u32", v(KD[0]), vG, 8, T0)
    for i in range(1, 4):
        k.v2("v_xor_b32", v(KD[i]), 64 * i, v(KD[0]))
    k.v2("v_lshlrev_b32", T0, 1, vG)
    k.v2("v_xor_b32", T0, T0, vQ)
    k.v2("v_lshlrev_b32", T0, 4, T0)
    k.v3("v_lshl_add_u32", v(VD[0]), vG, 8, T0)
    k.v2("v_xor_b32", v(VD[1]), 128, v(VD[0]))

    k.salu("s_waitcnt lgkmcnt(0)")
    build_srd(k, SX, 32, X_BYTES)
    build_srd(k, SK, 34, KV_BYTES)
    build_srd(k, SV, 36, KV_BYTES)
    build_srd(k, SWQ, 38, W_BYTES)
    build_srd(k, SWO, 40, W_BYTES)
    build_srd(k, SWS, 46, WS_BYTES)

    def wqs_off(pos):
        return (pos & 1) * 16384 + (pos >> 1) * 65536

    def dma_wq(c):
        k.s2("s_add_u32", "m0", sM0W, wqs_off(c % 4)) if wqs_off(c % 4) else k.s1("s_mov_b32", "m0", sM0W)
        k.salu_m0 = k.slot - 1
        k.s1("s_mov_b32", sWqOff, c * 262144)
        for i in range(2):
            k.vmem(f"buffer_load_dwordx4 {v(WQD[i])}, {sr(SWQ, 4)}, {sWqOff} offen offset:{i * 1024} lds",
                   rd=[v(WQD[i]), sWqOff], tag=("wq", c), dma=True)

    def dma_x(j):
        k.s2("s_add_u32", "m0", sM0X, (j & 1) * 12288) if (j & 1) else k.s1("s_mov_b32", "m0", sM0X)
        k.salu_m0 = k.slot - 1
        k.s1("s_mov_b32", sXOff, j * 128)
        k.vmem(f"buffer_load_dwordx4 {v(XD[0])}, {sr(SX, 4)}, {sXOff} offen lds",
               rd=[v(XD[0]), sXOff], tag=("x", j), dma=True)
        k.salu("s_mov_b32 exec_hi, 0")
        k.vmem(f"buffer_load_dwordx4 {v(XD[1])}, {sr(SX, 4)}, {sXOff} offen offset:1024 lds",
               rd=[v(XD[1]), sXOff], tag=("x", j), dma=True)
        k.salu("s_mov_b32 exec_hi, -1")

    def dma_kv(c):
        slot = c % 4
        k.s2("s_add_u32", "m0", sM0K, slot * 16384) if slot else k.s1("s_mov_b32", "m0", sM0K)
        k.salu_m0 = k.slot - 1
        cc = c % 8
        k.s2("s_add_u32", sOff, sKV, cc * 16384) if cc else k.s1("s_mov_b32", sOff, sKV)
        for i in range(4):
            if c < 8:
                k.vmem(f"buffer_load_dwordx4 {v(KD[i])}, {sr(SK, 4)}, {sOff} offen offset:{i * 1024}{NT} lds",
                       rd=[v(KD[i]), sOff], tag=("kv", c), dma=True)
            else:
                k.vmem(f"buffer_load_dwordx4 {v(VD[i & 1])}, {sr(SV, 4)}, {sOff} offen offset:{i * 1024}{NT} lds",
                       rd=[v(VD[i & 1]), sOff], tag=("kv", c), dma=True)

    dma_x(0)
    dma_wq(0)
    dma_wq(1)
    dma_wq(2)

    k.v3("v_bfe_u32", T0, LANE, 2, 2)
    k.v2("v_and_b32", T1, 1, vG)
    k.v3("v_lshl_add_u32", T1, T1, 2, T0)
    k.v3("v_lshl_add_u32", T2, vG, 3, T0)
    k.v2("v_lshlrev_b32", T2, 9, T2)
    k.v2("v_and_b32", T3, 3, LANE)
    k.v3("v_lshl_add_u32", T2, T3, 3, T2)
    k.s2("s_lshl_b32", sT0, sGrp, 8)
    k.s2("s_add_u32", sT0, sT0, 32768)
    k.v2("v_add_u32", T2, sT0, T2)
    k.s2("s_lshl_b32", sT0, sKh, 2)
    k.v2("v_xor_b32", T1, sT0, T1)
    for dt in range(4):
        k.v2("v_xor_b32", T3, dt, T1)
        k.v3("v_lshl_add_u32", v(WQR[dt]), T3, 5, T2)
    k.s2("s_mul_i32", sT0, sQh, 48 * 128)
    k.s2("s_add_u32", sT0, sT0, XS0)
    k.v2("v_lshlrev_b32", T0, 7, vQ)
    k.v2("v_add_u32", T0, sT0, T0)
    k.v2("v_lshrrev_b32", T1, 1, vQ)
    k.v2("v_xor_b32", T1, T1, vG)
    k.v3("v_lshl_add_u32", v(XR[0]), T1, 4, T0)
    k.v2("v_xor_b32", v(XR[1]), 64, v(XR[0]))
    k.s2("s_mul_i32", sT0, sQh, 12 * 1024)
    k.s2("s_add_u32", sT0, sT0, sRing)
    k.s2("s_add_u32", sT0, sT0, 32768)
    k.v3("v_lshl_add_u32", v(QR), LANE, 4, sT0)
    k.s2("s_lshl_b32", sT1, sKh, 11)
    k.s2("s_add_u32", sT0, sT0, sT1)
    k.v2("v_lshrrev_b32", T0, 1, vG)
    k.v2("v_lshlrev_b32", T0, 8, T0)
    k.v3("v_lshl_add_u32", T0, vQ, 4, T0)
    k.v2("v_and_b32", T1, 1, vG)
    k.v3("v_lshl_add_u32", T0, T1, 3, T0)
    k.v2("v_add_u32", v(QW), sT0, T0)
    k.s2("s_lshl_b32", sT0, sKh, 13)
    k.s2("s_add_u32", sT0, sT0, sRing)
    k.v2("v_xor_b32", T0, vG, vQ)
    k.v2("v_lshlrev_b32", T0, 4, T0)
    k.v3("v_lshl_add_u32", T0, vQ, 8, T0)
    k.v2("v_add_u32", v(KR[0]), sT0, T0)
    for ds_ in range(1, 4):
        k.v2("v_xor_b32", v(KR[ds_]), 64 * ds_, v(KR[0]))

    KPRE = opt.get("kpre", 8)
    for c in range(20):
        k.comment(f"---- qproj kstep {c}")
        k.wait_vm(("wq", c))
        k.wait_vm(("x", c // 2))
        k.barrier()
        if c % 2 == 0 and c // 2 + 1 < 10:
            dma_x(c // 2 + 1)
        if c + 3 < 20:
            dma_wq(c + 3)
        if c == KPRE:
            dma_kv(0)
            dma_kv(1)
        pos = c % 4
        if c > 0 and c % 2 == 0:
            for dt in range(4):
                k.v2("v_xor_b32", v(WQR[dt]), "0x10000", v(WQR[dt]))
        A = FR
        B = FR + 16
        for qt in range(3):
            k.ds(f"ds_read_b128 {vr(B + 4 * qt, 4)}, {v(XR[c & 1])} offset:{qt * 2048 + ((c // 2) & 1) * 12288}",
                 wr=vs(B + 4 * qt, 4), rd=[v(XR[c & 1])], tag=("xb", qt))
        for dt in range(4):
            for u in range(2):
                k.ds(f"ds_read_b64_tr_b16 {vr(A + 4 * dt + 2 * u, 2)}, {v(WQR[dt])} offset:{u * 2048 + (pos & 1) * 16384}",
                     wr=vs(A + 4 * dt + 2 * u, 2), rd=[v(WQR[dt])], tag=("wa", dt))
        for dt in range(4):
            k.wait_lg(("wa", dt))
            for qt in range(3):
                d = ACC + (dt * 3 + qt) * 4
                k.mfma(d, A + 4 * dt, B + 4 * qt, d if c else None)
    k.barrier()
    for dt in range(4):
        for qt in range(3):
            d = ACC + (dt * 3 + qt) * 4
            t = FR + ((dt * 3 + qt) % 8) * 2
            k.v2("v_cvt_pk_bf16_f32", v(t), v(d), v(d + 1))
            k.v2("v_cvt_pk_bf16_f32", v(t + 1), v(d + 2), v(d + 3))
            k.ds(f"ds_write_b64 {v(QW)}, {vr(t, 2)} offset:{qt * 4096 + dt * 512}", rd=[v(QW)] + vs(t, 2), tag="qw")
            if (dt * 3 + qt) % 8 == 7:
                k.wait_lg0()
    k.wait_lg0()
    k.barrier()
    for qt in range(3):
        for ds_ in range(4):
            d = QF + (qt * 4 + ds_) * 4
            k.ds(f"ds_read_b128 {vr(d, 4)}, {v(QR)} offset:{(qt * 4 + ds_) * 1024}", wr=vs(d, 4), rd=[v(QR)], tag="qr")
    k.wait_lg0()
    if opt.get("dumpq"):
        k.s2("s_lshl_b32", sT0, "s2", 3)
        k.s2("s_add_u32", sT0, sT0, sW)
        k.s2("s_mul_i32", sT0, sT0, 12288)
        k.s2("s_add_u32", sT0, sT0, QDBG)
        k.v2("v_lshlrev_b32", T0, 4, LANE)
        for f in range(12):
            k.vmem(f"buffer_store_dwordx4 {vr(QF + 4 * f, 4)}, {T0}, {sr(SWS, 4)}, {sT0} offen",
                   rd=vs(QF + 4 * f, 4) + [T0, sT0], tag="dbg", store_data=vs(QF + 4 * f, 4))
            k.s2("s_add_u32", sT0, sT0, 1024)

    def sreg(blk, qt, t):
        return S0 + ((blk * 3 + qt) * 2 + t) * 4

    AL = [30, 31, 7]
    MC = [FR, FR + 1, FR + 2]
    TT = FR + 4

    def xlane(op, r, tmp):
        k.v1("v_mov_b32", v(tmp), v(r))
        k.valu(f"v_permlane32_swap_b32 {v(r)}, {v(tmp)}", wr=[v(r), v(tmp)], rd=[v(r), v(tmp)], perm=True)
        k.v2(op, v(r), v(r), v(tmp))
        k.v1("v_mov_b32", v(tmp), v(r))
        k.valu(f"v_permlane16_swap_b32 {v(r)}, {v(tmp)}", wr=[v(r), v(tmp)], rd=[v(r), v(tmp)], perm=True)
        k.v2(op, v(r), v(r), v(tmp))

    def softmax(st):
        k.comment(f"---- softmax stage {st}")
        PB = P0 if st == 0 else P1
        MN = [TT, TT + 1, TT + 2]
        for qt in range(3):
            regs = [sreg(blk, qt, t) + r for blk in range(4) for t in range(2) for r in range(4)]
            mn = MN[qt]
            if st == 0:
                k.v3("v_max3_f32", v(mn), v(regs[0]), v(regs[1]), v(regs[2]))
                rest = regs[3:]
            else:
                k.v3("v_max3_f32", v(mn), v(M[qt]), v(regs[0]), v(regs[1]))
                rest = regs[2:]
            while len(rest) >= 2:
                k.v3("v_max3_f32", v(mn), v(mn), v(rest[0]), v(rest[1]))
                rest = rest[2:]
            if rest:
                k.v2("v_max_f32", v(mn), v(mn), v(rest[0]))
        for qt in range(3):
            xlane("v_max_f32", MN[qt], TT + 4 + qt)
        for qt in range(3):
            k.v2("v_mul_f32", v(MC[qt]), sC, v(MN[qt]))
            if st == 1:
                k.v3("v_fma_f32", v(AL[qt]), v(M[qt]), sC, f"-{v(MC[qt])}")
                k.v1("v_exp_f32", v(AL[qt]), v(AL[qt]), trans=True)
            k.v1("v_mov_b32", v(M[qt]), v(MN[qt]))
        if st == 1:
            for qt in range(3):
                k.v2("v_mul_f32", v(LACC[qt]), v(LACC[qt]), v(AL[qt]))
                k.v2("v_mul_f32", v(LACC[qt] + 1), v(LACC[qt] + 1), v(AL[qt]))
        first = [st == 0] * 3
        for blk in range(4):
            for qt in range(3):
                base = sreg(blk, qt, 0)
                for r in range(8):
                    k.v3("v_fma_f32", v(base + r), v(base + r), sC, f"-{v(MC[qt])}")
                for r in range(8):
                    k.v1("v_exp_f32", v(base + r), v(base + r), trans=True)
                for r in range(0, 8, 2):
                    if first[qt]:
                        if r == 0:
                            k.valu(f"v_pk_add_f32 {vr(LACC[qt], 2)}, {vr(base, 2)}, {vr(base + 2, 2)}",
                                   wr=vs(LACC[qt], 2), rd=vs(base, 4))
                        elif r == 2:
                            pass
                        else:
                            k.valu(f"v_pk_add_f32 {vr(LACC[qt], 2)}, {vr(LACC[qt], 2)}, {vr(base + r, 2)}",
                                   wr=vs(LACC[qt], 2), rd=vs(LACC[qt], 2) + vs(base + r, 2))
                    else:
                        k.valu(f"v_pk_add_f32 {vr(LACC[qt], 2)}, {vr(LACC[qt], 2)}, {vr(base + r, 2)}",
                               wr=vs(LACC[qt], 2), rd=vs(LACC[qt], 2) + vs(base + r, 2))
                first[qt] = False
                pd = PB + (blk * 3 + qt) * 4
                for r in range(4):
                    k.v2("v_cvt_pk_bf16_f32", v(pd + r), v(base + 2 * r), v(base + 2 * r + 1))

    def oreg(j, qt):
        o = j * 3 + qt
        return QF + 4 * o if o < 12 else 160 + 4 * (o - 12)

    WO_DMA_AT = 5
    WO_DO_AT = 10
    for c in range(16):
        k.comment(f"---- kv chunk {c}")
        k.wait_vm(("kv", c))
        if c == WO_DO_AT:
            k.wait_vm("wo")
        k.barrier()
        if c == 0:
            dma_kv(2)
        if c + 3 < 16:
            dma_kv(c + 3)
        if c == WO_DMA_AT:
            k.s2("s_lshr_b32", sT0, "s2", 1)
            k.s2("s_lshl_b32", sT0, sT0, 5)
            k.s2("s_lshl_b32", sT1, sW, 2)
            k.s2("s_add_u32", sT0, sT0, sT1)
            k.s2("s_mul_i32", sT0, sT0, 1280)
            k.s2("s_and_b32", sT2, "s2", 1)
            k.s2("s_mul_i32", sT2, sT2, 640)
            k.s2("s_add_u32", sT0, sT0, sT2)
            k.s2("s_mul_i32", sT1, sW, 4 * 640)
            k.s2("s_add_u32", sT1, sT1, WOL)
            k.v2("v_lshlrev_b32", T0, 4, LANE)
            k.salu("s_mov_b32 exec_hi, 0xff")
            for i in range(4):
                k.s1("s_mov_b32", "m0", sT1)
                k.vmem(f"buffer_load_dwordx4 {T0}, {sr(SWO, 4)}, {sT0} offen lds", rd=[T0, sT0], tag="wo", dma=True)
                if i < 3:
                    k.s2("s_add_u32", sT0, sT0, 1280)
                    k.s2("s_add_u32", sT1, sT1, 640)
            k.salu("s_mov_b32 exec_hi, -1")
        slot = c % 4
        if c < 8:
            blk = c % 4
            for t in range(2):
                for ds_ in range(4):
                    d = FR + (t * 4 + ds_) * 4
                    k.ds(f"ds_read_b128 {vr(d, 4)}, {v(KR[ds_])} offset:{slot * 16384 + t * 4096}",
                         wr=vs(d, 4), rd=[v(KR[ds_])], tag=("kf", t, ds_))
            for t in range(2):
                for ds_ in range(4):
                    k.wait_lg(("kf", t, ds_))
                    for qt in range(3):
                        d = sreg(blk, qt, t)
                        k.mfma(d, FR + (t * 4 + ds_) * 4, QF + (qt * 4 + ds_) * 4, d if ds_ else None)
            if c == 3:
                softmax(0)
            if c == 7:
                softmax(1)
                k.v3("v_bfe_u32", T0, LANE, 2, 2)
                k.v2("v_and_b32", T1, 1, vG)
                k.v3("v_lshl_add_u32", T1, T1, 2, T0)
                k.s2("s_lshl_b32", sT0, sKh, 2)
                k.v2("v_xor_b32", T1, sT0, T1)
                k.v3("v_lshl_add_u32", T2, vG, 2, T0)
                k.v2("v_lshlrev_b32", T2, 8, T2)
                k.v2("v_and_b32", T3, 3, LANE)
                k.v3("v_lshl_add_u32", T2, T3, 3, T2)
                k.s2("s_lshl_b32", sT0, sKh, 13)
                k.s2("s_add_u32", sT0, sT0, sRing)
                k.v2("v_add_u32", T2, sT0, T2)
                for j in range(8):
                    k.v2("v_xor_b32", T3, j, T1)
                    k.v3("v_lshl_add_u32", v(VR[j]), T3, 5, T2)
        else:
            cv = c - 8
            PB = (P0 if cv < 4 else P1) + (cv % 4) * 12
            for j in range(8):
                for u in range(2):
                    d = FR + j * 4 + 2 * u
                    k.ds(f"ds_read_b64_tr_b16 {vr(d, 2)}, {v(VR[j])} offset:{slot * 16384 + u * 4096}",
                         wr=vs(d, 2), rd=[v(VR[j])], tag=("vf", j))
            for j in range(8):
                k.wait_lg(("vf", j))
                for qt in range(3):
                    d = oreg(j, qt)
                    k.mfma(d, FR + j * 4, PB + qt * 4, d if cv else None)
            if cv == 3:
                k.comment("rescale O by alpha")
                for j in range(8):
                    for qt in range(3):
                        d = oreg(j, qt)
                        for r in range(4):
                            k.v2("v_mul_f32", v(d + r), v(d + r), v(AL[qt]))
            if c == WO_DO_AT:
                k.comment("wo re-layout: tr reads + stores")
                k.v3("v_bfe_u32", T0, LANE, 2, 2)
                k.v3("v_lshl_add_u32", T0, vG, 2, T0)
                k.v2("v_mul_u32_u24", T0, 640, T0)
                k.v2("v_and_b32", T1, 3, LANE)
                k.v3("v_lshl_add_u32", T0, T1, 3, T0)
                k.s2("s_lshl_b32", sT0, sW, 5)
                k.s2("s_add_u32", sT0, sT0, WOL)
                k.v2("v_add_u32", T0, sT0, T0)
                for i in range(3):
                    for u in range(2):
                        d = FR + i * 4 + 2 * u
                        k.ds(f"ds_read_b64_tr_b16 {vr(d, 2)}, {T0} offset:{u * 10240 + i * 256}",
                             wr=vs(d, 2), rd=[T0], tag="wor")
                k.s2("s_mul_i32", sT0, "s2", 20)
                k.s2("s_add_u32", sT0, sT0, sW)
                k.s2("s_lshl_b32", sT0, sT0, 10)
                k.s2("s_add_u32", sT0, sT0, WOT)
                k.v2("v_lshlrev_b32", T1, 4, LANE)
                k.wait_lg0()
                for i in range(3):
                    if i == 2:
                        k.salu(f"s_cmp_lt_u32 {sW}, 4")
                        k.salu(f"s_cselect_b32 {sT0}, {sT0}, 0x7f000000", wr=[sT0])
                    k.vmem(f"buffer_store_dwordx4 {vr(FR + 4 * i, 4)}, {T1}, {sr(SWS, 4)}, {sT0} offen",
                           rd=vs(FR + 4 * i, 4) + [T1, sT0], tag="wost", store_data=vs(FR + 4 * i, 4))
                    if i < 2:
                        k.s2("s_add_u32", sT0, sT0, 8192)
                k.wait_vm("wost")
    for qt in range(3):
        k.v2("v_add_f32", v(ST + 3 + qt), v(LACC[qt]), v(LACC[qt] + 1))
    for qt in range(3):
        xlane("v_add_f32", ST + 3 + qt, FR + qt)
    k.s2("s_lshl_b32", sT0, sW, 9)
    k.s2("s_add_u32", sT0, sT0, STAT)
    k.v3("v_lshl_add_u32", T0, vQ, 5, sT0)
    k.ds(f"ds_write_b128 {T0}, {vr(ST, 4)}", rd=[T0] + vs(ST, 4), tag="mw")
    k.ds(f"ds_write_b64 {T0}, {vr(ST + 4, 2)} offset:16", rd=[T0] + vs(ST + 4, 2), tag="mw")
    k.s2("s_mul_i32", sT0, sWl, 12288)
    k.s2("s_add_u32", sT0, sT0, sRing)
    k.v3("v_lshl_add_u32", T1, LANE, 4, sT0)
    for j in range(4):
        for qt in range(3):
            d = oreg(4 + j, qt)
            k.ds(f"ds_write_b128 {T1}, {vr(d, 4)} offset:{(j * 3 + qt) * 1024}", rd=[T1] + vs(d, 4), tag="mw")
    k.wait_lg0()
    k.barrier()
    k.v2("v_xor_b32", T0, 1024, T0)
    k.s2("s_xor_b32", sT1, sWl, 2)
    k.s2("s_mul_i32", sT0, sT1, 12288)
    k.s2("s_add_u32", sT0, sT0, sRing)
    k.v3("v_lshl_add_u32", T1, LANE, 4, sT0)
    PS = FR
    k.ds(f"ds_read_b128 {vr(PS, 4)}, {T0}", wr=vs(PS, 4), rd=[T0], tag="ps")
    k.ds(f"ds_read_b64 {vr(PS + 4, 2)}, {T0} offset:16", wr=vs(PS + 4, 2), rd=[T0], tag="ps")
    PO = P0
    for j in range(4):
        for qt in range(3):
            d = PO + (j * 3 + qt) * 4
            k.ds(f"ds_read_b128 {vr(d, 4)}, {T1} offset:{(j * 3 + qt) * 1024}", wr=vs(d, 4), rd=[T1], tag=("po", j))
    k.wait_lg("ps")
    FO = [FR + 8, FR + 9, FR + 10]
    FP = [FR + 12, FR + 13, FR + 14]
    for qt in range(3):
        mm = FR + 16 + qt
        k.v2("v_max_f32", v(mm), v(M[qt]), v(PS + qt))
        k.v2("v_sub_f32", v(FO[qt]), v(M[qt]), v(mm))
        k.v2("v_sub_f32", v(FP[qt]), v(PS + qt), v(mm))
        k.v2("v_mul_f32", v(FO[qt]), sC, v(FO[qt]))
        k.v2("v_mul_f32", v(FP[qt]), sC, v(FP[qt]))
        k.v1("v_exp_f32", v(FO[qt]), v(FO[qt]), trans=True)
        k.v1("v_exp_f32", v(FP[qt]), v(FP[qt]), trans=True)
        k.v2("v_mul_f32", v(mm), v(FO[qt]), v(ST + 3 + qt))
        k.v3("v_fma_f32", v(mm), v(FP[qt]), v(PS + 3 + qt), v(mm))
        k.v1("v_rcp_f32", v(mm), v(mm), trans=True)
        k.v2("v_mul_f32", v(FO[qt]), v(FO[qt]), v(mm))
        k.v2("v_mul_f32", v(FP[qt]), v(FP[qt]), v(mm))
    k.s2("s_lshl_b32", sT0, sB, 1)
    k.s2("s_add_u32", sT0, sT0, sQh)
    k.s2("s_lshl_b32", sT0, sT0, 7)
    k.s2("s_lshl_b32", sT1, sHead, 2)
    k.s2("s_add_u32", sT0, sT0, sT1)
    k.s2("s_lshl_b32", sT1, sKh, 1)
    k.s2("s_add_u32", sT0, sT0, sT1)
    k.s2("s_mul_i32", sT0, sT0, 3072)
    if OWS:
        k.s2("s_add_u32", sT0, sT0, OWS)
    k.s2("s_add_u32", sT1, sT0, 3072)
    k.v2("v_lshlrev_b32", T2, 4, LANE)
    OD = P1
    for jj in range(2):
        for e in range(2):
            j = 2 * jj + e
            k.wait_lg(("po", j))
            for qt in range(3):
                d = oreg(j, qt)
                p = PO + (j * 3 + qt) * 4
                for r in range(4):
                    k.v2("v_mul_f32", v(d + r), v(d + r), v(FO[qt]))
                for r in range(4):
                    k.v3("v_fma_f32", v(d + r), v(p + r), v(FP[qt]), v(d + r))
                od = OD + (jj * 3 + qt) * 4 + 2 * e
                k.v2("v_cvt_pk_bf16_f32", v(od), v(d), v(d + 1))
                k.v2("v_cvt_pk_bf16_f32", v(od + 1), v(d + 2), v(d + 3))
        for qt in range(3):
            od = OD + (jj * 3 + qt) * 4
            so = sT1 if jj else sT0
            k.vmem(f"buffer_store_dwordx4 {vr(od, 4)}, {T2}, {sr(SWS, 4)}, {so} offen offset:{qt * 1024}",
                   rd=vs(od, 4) + [T2, so], tag="ost", store_data=vs(od, 4))
    k.label("K1_END")
    k.salu("s_endpgm")
    return k


def gen_k2(opt):
    k = Kern()
    SWS, SO = 4, 8
    sW, sRb, sCb, sT0, sT1, sT2, sA, sBo = "s48", "s49", "s50", "s51", "s52", "s53", "s54", "s55"
    k.salu("s_cmp_ge_u32 s2, 256")
    k.salu("s_cbranch_scc1 K2_END")
    k.salu("s_load_dwordx8 s[36:43], s[0:1], 32")
    k.v2("v_lshrrev_b32", "v1", 6, "v0")
    k.v2("v_and_b32", "v0", 63, "v0")
    k.valu(f"v_readfirstlane_b32 {sW}, v1", wr=[sW], rd=["v1"], lane=True)
    k.s2("s_and_b32", sT0, "s2", 7)
    k.s2("s_lshr_b32", sT1, "s2", 3)
    k.s2("s_lshr_b32", sRb, sT0, 1)
    k.s2("s_lshl_b32", sRb, sRb, 3)
    k.s2("s_lshr_b32", sT2, sT1, 2)
    k.s2("s_add_u32", sRb, sRb, sT2)
    k.s2("s_and_b32", sCb, sT0, 1)
    k.s2("s_lshl_b32", sCb, sCb, 2)
    k.s2("s_and_b32", sT2, sT1, 3)
    k.s2("s_add_u32", sCb, sCb, sT2)
    k.s2("s_lshl_b32", sA, sRb, 7)
    k.s2("s_add_u32", sA, sA, sW)
    k.s2("s_mul_i32", sA, sA, 3072)
    if OWS:
        k.s2("s_add_u32", sA, sA, OWS)
    k.s2("s_mul_i32", sBo, sW, 40)
    k.s2("s_mul_i32", sT0, sCb, 5)
    k.s2("s_add_u32", sBo, sBo, sT0)
    k.s2("s_lshl_b32", sBo, sBo, 10)
    k.s2("s_add_u32", sBo, sBo, WOT)
    k.v2("v_lshlrev_b32", "v2", 4, "v0")
    k.v2("v_add_u32", "v3", 4096, "v2")
    k.salu("s_waitcnt lgkmcnt(0)")
    build_srd(k, SWS, 42, WS_BYTES)
    build_srd(k, SO, 38, OUT_BYTES)
    D = opt.get("k2depth", 4)
    ACC = 8
    BUF = 68

    def load(j):
        b = BUF + (j % D) * 32
        for mt in range(3):
            k.vmem(f"buffer_load_dwordx4 {vr(b + 4 * mt, 4)}, v2, {sr(SWS, 4)}, {sA} offen offset:{mt * 1024}",
                   wr=vs(b + 4 * mt, 4), rd=["v2", sA], tag=("a", j))
        for nt in range(5):
            d = b + 12 + 4 * nt
            if nt < 4:
                k.vmem(f"buffer_load_dwordx4 {vr(d, 4)}, v2, {sr(SWS, 4)}, {sBo} offen offset:{nt * 1024}",
                       wr=vs(d, 4), rd=["v2", sBo], tag=("b", j, nt))
            else:
                k.vmem(f"buffer_load_dwordx4 {vr(d, 4)}, v3, {sr(SWS, 4)}, {sBo} offen",
                       wr=vs(d, 4), rd=["v3", sBo], tag=("b", j, nt))
        k.s2("s_add_u32", sA, sA, 4 * 3072)
        k.s2("s_add_u32", sBo, sBo, 4 * 40960)

    for j in range(D - 1):
        load(j)
    for j in range(32):
        if j + D - 1 < 32:
            load(j + D - 1)
        b = BUF + (j % D) * 32
        for nt in range(5):
            k.wait_vm(("b", j, nt))
            for mt in range(3):
                d = ACC + (nt * 3 + mt) * 4
                k.mfma(d, b + 12 + 4 * nt, b + 4 * mt, d if j else None)
    k.s2("s_lshl_b32", sT0, sW, 14)
    k.v2("v_add_u32", "v4", sT0, "v2")
    for t in range(15):
        k.ds(f"ds_write_b128 v4, {vr(ACC + 4 * t, 4)} offset:{t * 1024}", rd=["v4"] + vs(ACC + 4 * t, 4), tag="w")
    k.wait_lg0()
    k.barrier()
    k.s2("s_lshl_b32", sT0, sW, 10)
    k.v2("v_add_u32", "v4", sT0, "v2")
    for i in range(4):
        for s in range(4):
            d = BUF + (i * 4 + s) * 4
            k.ds(f"ds_read_b128 {vr(d, 4)}, v4 offset:{s * 16384 + i * 4096}", wr=vs(d, 4), rd=["v4"], tag=("r", i))
    k.v2("v_and_b32", "v5", 15, "v0")
    k.v2("v_mul_u32_u24", "v5", 1280, "v5")
    k.v2("v_lshrrev_b32", "v6", 4, "v0")
    k.v3("v_lshl_add_u32", "v5", "v6", 3, "v5")
    for i in range(4):
        k.s2("s_add_u32", sT0, sW, 4 * i)
        k.s2("s_mul_i32", sT1, sT0, 11)
        k.s2("s_lshr_b32", sT1, sT1, 5)
        k.s2("s_mul_i32", sT2, sT1, 3)
        k.s2("s_sub_u32", sT2, sT0, sT2)
        k.s2("s_mul_i32", sA, sRb, 48)
        k.s2("s_lshl_b32", sT2, sT2, 4)
        k.s2("s_add_u32", sA, sA, sT2)
        k.s2("s_mul_i32", sA, sA, 1280)
        k.s2("s_mul_i32", sBo, sCb, 160)
        k.s2("s_add_u32", sA, sA, sBo)
        k.s2("s_lshl_b32", sT1, sT1, 5)
        k.s2("s_add_u32", sA, sA, sT1)
        if i == 3:
            k.salu(f"s_cmp_lt_u32 {sW}, 3")
            k.salu(f"s_cselect_b32 {sA}, {sA}, 0x7f000000", wr=[sA])
        k.wait_lg(("r", i))
        d = BUF + i * 16
        for h in range(2):
            k.valu(f"v_pk_add_f32 {vr(d + 2 * h, 2)}, {vr(d + 2 * h, 2)}, {vr(d + 4 + 2 * h, 2)}",
                   wr=vs(d + 2 * h, 2), rd=vs(d + 2 * h, 2) + vs(d + 4 + 2 * h, 2))
            k.valu(f"v_pk_add_f32 {vr(d + 8 + 2 * h, 2)}, {vr(d + 8 + 2 * h, 2)}, {vr(d + 12 + 2 * h, 2)}",
                   wr=vs(d + 8 + 2 * h, 2), rd=vs(d + 8 + 2 * h, 2) + vs(d + 12 + 2 * h, 2))
            k.valu(f"v_pk_add_f32 {vr(d + 2 * h, 2)}, {vr(d + 2 * h, 2)}, {vr(d + 8 + 2 * h, 2)}",
                   wr=vs(d + 2 * h, 2), rd=vs(d + 2 * h, 2) + vs(d + 8 + 2 * h, 2))
        k.v2("v_cvt_pk_bf16_f32", f"v{d + 4}", f"v{d}", f"v{d + 1}")
        k.v2("v_cvt_pk_bf16_f32", f"v{d + 5}", f"v{d + 2}", f"v{d + 3}")
        k.vmem(f"buffer_store_dwordx2 {vr(d + 4, 2)}, v5, {sr(SO, 4)}, {sA} offen",
               rd=vs(d + 4, 2) + ["v5", sA], tag="st")
    k.label("K2_END")
    k.salu("s_endpgm")
    return k, BUF + D * 32


HEADER = """; Kernarg layout for this problem (64 bytes, ptrs only, base s[0:1]):
"""


def kd(name, nv, ns=102):
    acc = (nv + 3) // 4 * 4
    return f""".amdhsa_kernel {name}
  .amdhsa_next_free_vgpr {nv}
  .amdhsa_next_free_sgpr {ns}
  .amdhsa_accum_offset {acc}
  .amdhsa_group_segment_fixed_size 0
  .amdhsa_kernarg_size 64
  .amdhsa_user_sgpr_count 2
  .amdhsa_user_sgpr_kernarg_segment_ptr 1
  .amdhsa_system_sgpr_workgroup_id_x 1
.end_amdhsa_kernel
"""


def build(opt):
    k1 = gen_k1(opt)
    k2, nv2 = gen_k2(opt)
    out = HEADER
    out += "; @launch kernel=attn_kernel grid=(256,1,1) block=(512,1,1) lds=163840\n"
    out += "; @launch kernel=oproj_kernel grid=(256,1,1) block=(256,1,1) lds=65536\n"
    out += '.amdgcn_target "amdgcn-amd-amdhsa--gfx950"\n.text\n'
    for name, kk in (("attn_kernel", k1), ("oproj_kernel", k2)):
        out += f".globl {name}\n.p2align 8\n.type {name},@function\n{name}:\n" + kk.text()
    out += '.section .rodata,"a"\n.p2align 6\n'
    out += kd("attn_kernel", 256, 80)
    out += ".p2align 6\n"
    out += kd("oproj_kernel", nv2, 80)
    return out, k1, k2


if __name__ == "__main__":
    opt = {}
    path = sys.argv[1] if len(sys.argv) > 1 else f"cdna_kernels/{NAME}.s"
    for a in sys.argv[2:]:
        kk, vv = a.split("=")
        opt[kk] = int(vv)
    txt, k1, k2 = build(opt)
    open(path, "w").write(txt)
    print("wrote", path, len(txt), "bytes; k1 slots", k1.slot, "k2 slots", k2.slot)
    print({a: b for a, b in sorted(k1.stats.items(), key=lambda x: -x[1])[:14]})
```

```python
import sys
import struct
from dsl import Kern, vr, sr, vs, ss

NAME = "standalone__mha_block_cached__near_ridge"
X_BYTES = 16 * 96 * 640 * 2
KV_BYTES = 16 * 32 * 512 * 128 * 2
W_BYTES = 640 * 4096 * 2
OUT_BYTES = X_BYTES
WS_BYTES = 268435456
OWS = 0
WOT = 16 << 20
QDBG = 32 << 20
CSCALE = (128 ** -0.5) * 1.4426950408889634


def f32bits(x):
    return struct.unpack("<I", struct.pack("<f", x))[0]


def build_srd(k, d, plo, nbytes):
    k.s1("s_mov_b32", f"s{d}", f"s{plo}")
    k.s2("s_and_b32", f"s{d + 1}", f"s{plo + 1}", "0xffff")
    k.s1("s_mov_b32", f"s{d + 2}", hex(nbytes))
    k.s1("s_mov_b32", f"s{d + 3}", "0x20000")


TSBASE = 48 << 20


def add_stamps(k, opt):
    k.nstamp = 0

    def stamp():
        if not opt.get("ts"):
            return
        k.wait_lg0()
        k.salu("s_memtime s[68:69]" if opt.get("ts") == 2 else "s_memrealtime s[68:69]")
        k.salu("s_waitcnt lgkmcnt(0)")
        k.salu(f"s_mov_b32 s{70 + k.nstamp}, s68")
        k.nstamp += 1
        assert k.nstamp <= 32

    def flush(srd, sW, base, nw):
        if not opt.get("ts"):
            return
        stamp()
        k.salu(f"s_mul_i32 s68, s2, {nw}")
        k.salu(f"s_add_u32 s68, s68, {sW}")
        k.salu("s_lshl_b32 s68, s68, 7")
        k.salu(f"s_add_u32 s68, s68, {base}")
        k.salu("s_mov_b64 exec, 1")
        k.v1("v_mov_b32", "v2", 0)
        for i in range(k.nstamp):
            k.v1("v_mov_b32", "v1", f"s{70 + i}")
            k.vmem(f"buffer_store_dword v1, v2, {sr(srd, 4)}, s68 offen offset:{4 * i}", rd=["v1", "v2"])
            k.nop(2)
    k.stamp = stamp
    k.flush_stamps = flush


def code_touch(k, start, end, tid, tmp, dst, nthreads):
    k.salu("s_getpc_b64 s[30:31]")
    lab = k.newlabel(start + "_pc")
    k.label(lab)
    k.v2("v_lshlrev_b32", tmp, 7, tid)
    k.valu(f"v_min_u32 {tmp}, {end}-{lab}-4, {tmp}", wr=[tmp], rd=[tmp])
    k.vmem(f"global_load_dword {dst}, {tmp}, s[30:31]", wr=[dst], rd=[tmp], tag="touch")


def gen_k1(opt):
    k = Kern()
    add_stamps(k, opt)
    NT = " nt" if opt.get("nt", True) else ""
    STF = ["", " sc0 sc1", " nt", " sc1"][opt.get("stf", 0)]
    SX, SK, SV, SWQ, SWO, SWS = 4, 8, 12, 16, 20, 24
    sW, sGrp, sQh, sKh, sWl, sHp, sB = "s48", "s49", "s50", "s51", "s52", "s53", "s54"
    sKV, sT0, sT1, sT2, sC, sRing, sM0K, sM0W, sM0X, sOff = (
        "s55", "s56", "s57", "s58", "s59", "s60", "s61", "s62", "s63", "s64")
    sWqOff, sXOff, sHead = "s65", "s66", "s67"
    XS0 = 131072
    WOL = 131072
    STAT = 155648

    k.salu("s_cmp_ge_u32 s2, 256")
    k.salu("s_cbranch_scc1 K1_END")
    k.salu("s_load_dwordx16 s[32:47], s[0:1], 0")
    if opt.get("ctouch", 1):
        code_touch(k, "K1", "K1_END", "v0", "v2", "v255", 512)
    k.v2("v_lshrrev_b32", "v1", 6, "v0")
    k.v2("v_and_b32", "v0", 63, "v0")
    k.valu(f"v_readfirstlane_b32 {sW}, v1", wr=[sW], rd=["v1"], lane=True)
    k.s2("s_and_b32", sT0, "s2", 7)
    k.s2("s_lshr_b32", sT1, "s2", 3)
    k.s2("s_and_b32", sHp, sT0, 3)
    k.s2("s_lshl_b32", sHp, sHp, 2)
    k.s2("s_and_b32", sT2, sT1, 3)
    k.s2("s_add_u32", sHp, sHp, sT2)
    k.s2("s_lshr_b32", sB, sT0, 2)
    k.s2("s_lshl_b32", sB, sB, 3)
    k.s2("s_lshr_b32", sT2, sT1, 2)
    k.s2("s_add_u32", sB, sB, sT2)
    k.s2("s_lshr_b32", sGrp, sW, 2)
    k.s2("s_and_b32", sQh, sW, 1)
    k.s2("s_bfe_u32", sKh, sW, "0x10001")
    k.s2("s_and_b32", sWl, sW, 3)
    k.s2("s_lshl_b32", sHead, sHp, 1)
    k.s2("s_add_u32", sHead, sHead, sGrp)
    k.s2("s_lshl_b32", sT0, sB, 5)
    k.s2("s_add_u32", sT0, sT0, sHead)
    k.s2("s_lshl_b32", sKV, sT0, 17)
    k.s2("s_lshl_b32", sT1, sWl, 12)
    k.s2("s_add_u32", sKV, sKV, sT1)
    k.s2("s_lshl_b32", sRing, sGrp, 16)
    k.s2("s_add_u32", sM0K, sRing, sT1)
    k.s2("s_lshl_b32", sM0W, sW, 11)
    k.s2("s_add_u32", sM0W, sM0W, 32768)
    k.s2("s_mul_i32", sM0X, sW, 1536)
    k.s2("s_add_u32", sM0X, sM0X, XS0)
    k.s1("s_mov_b32", sC, hex(f32bits(CSCALE)))

    LANE = "v0"
    T0, T1, T2, T3 = "v1", "v2", "v3", "v4"
    vG, vQ = "v5", "v6"
    KD = [8, 9, 10, 11]
    KR = [12, 13, 14, 15]
    VR = [8, 9, 10, 11, 12, 13, 14, 15]
    VD = [16, 17]
    ST = 18
    M = [18, 19, 20]
    LACC = [24, 26, 28]
    AL = [30, 21, 22]
    FR = 32
    QF = 64
    S0 = 112
    P0 = 208
    P1 = 112
    WQD = [160, 161]
    XD = [162, 163]
    WQR = [164, 165, 166, 167]
    XR = [168, 169]
    QW, QR = 170, 171
    ACC = 112

    def v(i):
        return f"v{i}"

    k.v2("v_lshrrev_b32", vG, 4, LANE)
    k.v2("v_and_b32", vQ, 15, LANE)
    k.v2("v_lshrrev_b32", T0, 5, LANE)
    k.s2("s_lshl_b32", sT0, sKh, 2)
    k.v2("v_add_u32", T1, sT0, T0)
    k.s2("s_lshl_b32", sT0, sW, 2)
    k.v2("v_add_u32", T0, sT0, T0)
    k.v2("v_lshlrev_b32", T0, 13, T0)
    k.s2("s_lshl_b32", sT0, sHp, 9)
    k.v2("v_add_u32", T0, sT0, T0)
    k.v3("v_bfe_u32", T2, LANE, 4, 1)
    k.v3("v_lshl_add_u32", T0, T2, 8, T0)
    for i in range(2):
        k.v2("v_add_u32", T2, 2 * i, T1)
        k.v2("v_lshlrev_b32", T2, 1, T2)
        k.v2("v_xor_b32", T2, T2, vQ)
        k.v3("v_lshl_add_u32", v(WQD[i]), T2, 4, T0)
        if i:
            k.v2("v_add_u32", v(WQD[i]), 2 * 8192 - 1024, v(WQD[i]))
    k.s2("s_mul_i32", sT0, sW, 12)
    k.v2("v_lshrrev_b32", T0, 3, LANE)
    k.v2("v_add_u32", T0, sT0, T0)
    k.v2("v_and_b32", T3, 7, LANE)
    k.s2("s_mul_i32", sT1, sB, 96)
    k.s1("s_mov_b32", sT2, 1280)
    for i in range(2):
        if i:
            k.v2("v_add_u32", T0, 8, T0)
        k.v3("v_bfe_u32", T1, T0, 1, 3)
        k.v2("v_xor_b32", T1, T1, T3)
        k.v2("v_add_u32", T2, sT1, T0)
        k.v2("v_mul_lo_u32", T2, T2, sT2)
        k.v3("v_lshl_add_u32", v(XD[i]), T1, 4, T2)
        if i:
            k.v2("v_subrev_u32", v(XD[i]), 1024, v(XD[i]))
    k.v2("v_xor_b32", T0, vQ, vG)
    k.v2("v_lshlrev_b32", T0, 4, T0)
    k.v3("v_lshl_add_u32", v(KD[0]), vG, 8, T0)
    for i in range(1, 4):
        k.v2("v_xor_b32", v(KD[i]), 64 * i, v(KD[0]))
    k.v2("v_lshlrev_b32", T0, 1, vG)
    k.v2("v_xor_b32", T0, T0, vQ)
    k.v2("v_lshlrev_b32", T0, 4, T0)
    k.v3("v_lshl_add_u32", v(VD[0]), vG, 8, T0)
    k.v2("v_xor_b32", v(VD[1]), 128, v(VD[0]))

    k.salu("s_waitcnt lgkmcnt(0)")
    build_srd(k, SX, 32, X_BYTES)
    build_srd(k, SK, 34, KV_BYTES)
    build_srd(k, SV, 36, KV_BYTES)
    build_srd(k, SWQ, 38, W_BYTES)
    build_srd(k, SWO, 40, W_BYTES)
    build_srd(k, SWS, 46, WS_BYTES)

    def wqs_off(pos):
        return (pos & 1) * 16384 + (pos >> 1) * 65536

    def dma_wq(c):
        k.s2("s_add_u32", "m0", sM0W, wqs_off(c % 4)) if wqs_off(c % 4) else k.s1("s_mov_b32", "m0", sM0W)
        k.salu_m0 = k.slot - 1
        k.s1("s_mov_b32", sWqOff, c * 262144)
        for i in range(2):
            k.vmem(f"buffer_load_dwordx4 {v(WQD[i])}, {sr(SWQ, 4)}, {sWqOff} offen offset:{i * 1024} lds",
                   rd=[v(WQD[i]), sWqOff], tag=("wq", c), dma=True)

    def dma_x(j):
        k.s2("s_add_u32", "m0", sM0X, (j & 1) * 12288) if (j & 1) else k.s1("s_mov_b32", "m0", sM0X)
        k.salu_m0 = k.slot - 1
        k.s1("s_mov_b32", sXOff, j * 128)
        k.vmem(f"buffer_load_dwordx4 {v(XD[0])}, {sr(SX, 4)}, {sXOff} offen lds",
               rd=[v(XD[0]), sXOff], tag=("x", j), dma=True)
        k.salu("s_mov_b32 exec_hi, 0")
        k.vmem(f"buffer_load_dwordx4 {v(XD[1])}, {sr(SX, 4)}, {sXOff} offen offset:1024 lds",
               rd=[v(XD[1]), sXOff], tag=("x", j), dma=True)
        k.salu("s_mov_b32 exec_hi, -1")

    def dma_kv(c):
        slot = c % 4
        k.s2("s_add_u32", "m0", sM0K, slot * 16384) if slot else k.s1("s_mov_b32", "m0", sM0K)
        k.salu_m0 = k.slot - 1
        cc = c % 8
        k.s2("s_add_u32", sOff, sKV, cc * 16384) if cc else k.s1("s_mov_b32", sOff, sKV)
        for i in range(4):
            if c < 8:
                k.vmem(f"buffer_load_dwordx4 {v(KD[i])}, {sr(SK, 4)}, {sOff} offen offset:{i * 1024}{NT} lds",
                       rd=[v(KD[i]), sOff], tag=("kv", c), dma=True)
            else:
                k.vmem(f"buffer_load_dwordx4 {v(VD[i & 1])}, {sr(SV, 4)}, {sOff} offen offset:{i * 1024}{NT} lds",
                       rd=[v(VD[i & 1]), sOff], tag=("kv", c), dma=True)

    k.stamp()
    if opt.get("warm", 1):
        WNT = " nt" if opt.get("warmnt", 0) else ""
        k.s2("s_lshr_b32", sT0, "s2", 3)
        k.s2("s_mul_i32", sT1, sT0, 320)
        k.s2("s_mul_i32", sT2, sW, 40)
        k.s2("s_add_u32", sT1, sT1, sT2)
        k.v2("v_min_u32", T0, 39, LANE)
        k.v2("v_add_u32", T0, sT1, T0)
        k.v2("v_lshrrev_b32", T1, 4, T0)
        k.v2("v_lshlrev_b32", T1, 13, T1)
        k.v2("v_and_b32", T0, 15, T0)
        k.v3("v_lshl_add_u32", T0, T0, 7, T1)
        k.s2("s_and_b32", sT2, "s2", 3)
        k.s2("s_lshl_b32", sT2, sT2, 11)
        k.vmem(f"buffer_load_dword v254, {T0}, {sr(SWQ, 4)}, {sT2} offen{WNT}", wr=["v254"], rd=[T0, sT2], tag="touch")
        k.s2("s_mul_i32", sT1, sT0, 240)
        k.s2("s_mul_i32", sT2, sW, 30)
        k.s2("s_add_u32", sT1, sT1, sT2)
        k.v2("v_min_u32", T0, 29, LANE)
        k.v2("v_add_u32", T0, sT1, T0)
        k.v2("v_lshlrev_b32", T0, 7, T0)
        k.s2("s_bfe_u32", sT2, "s2", "0x10002")
        k.s2("s_mul_i32", sT2, sT2, 983040)
        k.vmem(f"buffer_load_dword v253, {T0}, {sr(SX, 4)}, {sT2} offen{WNT}", wr=["v253"], rd=[T0, sT2], tag="touch")
    dma_x(0)
    dma_wq(0)
    dma_wq(1)
    dma_wq(2)

    k.v3("v_bfe_u32", T0, LANE, 2, 2)
    k.v2("v_and_b32", T1, 1, vG)
    k.v3("v_lshl_add_u32", T1, T1, 2, T0)
    k.v3("v_lshl_add_u32", T2, vG, 3, T0)
    k.v2("v_lshlrev_b32", T2, 9, T2)
    k.v2("v_and_b32", T3, 3, LANE)
    k.v3("v_lshl_add_u32", T2, T3, 3, T2)
    k.s2("s_lshl_b32", sT0, sGrp, 8)
    k.s2("s_add_u32", sT0, sT0, 32768)
    k.v2("v_add_u32", T2, sT0, T2)
    k.s2("s_lshl_b32", sT0, sKh, 2)
    k.v2("v_xor_b32", T1, sT0, T1)
    for dt in range(4):
        k.v2("v_xor_b32", T3, dt, T1)
        k.v3("v_lshl_add_u32", v(WQR[dt]), T3, 5, T2)
    k.s2("s_mul_i32", sT0, sQh, 48 * 128)
    k.s2("s_add_u32", sT0, sT0, XS0)
    k.v2("v_lshlrev_b32", T0, 7, vQ)
    k.v2("v_add_u32", T0, sT0, T0)
    k.v2("v_lshrrev_b32", T1, 1, vQ)
    k.v2("v_xor_b32", T1, T1, vG)
    k.v3("v_lshl_add_u32", v(XR[0]), T1, 4, T0)
    k.v2("v_xor_b32", v(XR[1]), 64, v(XR[0]))
    k.s2("s_mul_i32", sT0, sQh, 12 * 1024)
    k.s2("s_add_u32", sT0, sT0, sRing)
    k.s2("s_add_u32", sT0, sT0, 32768)
    k.v3("v_lshl_add_u32", v(QR), LANE, 4, sT0)
    k.s2("s_lshl_b32", sT1, sKh, 11)
    k.s2("s_add_u32", sT0, sT0, sT1)
    k.v2("v_lshrrev_b32", T0, 1, vG)
    k.v2("v_lshlrev_b32", T0, 8, T0)
    k.v3("v_lshl_add_u32", T0, vQ, 4, T0)
    k.v2("v_and_b32", T1, 1, vG)
    k.v3("v_lshl_add_u32", T0, T1, 3, T0)
    k.v2("v_add_u32", v(QW), sT0, T0)
    k.s2("s_lshl_b32", sT0, sKh, 13)
    k.s2("s_add_u32", sT0, sT0, sRing)
    k.v2("v_xor_b32", T0, vG, vQ)
    k.v2("v_lshlrev_b32", T0, 4, T0)
    k.v3("v_lshl_add_u32", T0, vQ, 8, T0)
    k.v2("v_add_u32", v(KR[0]), sT0, T0)
    for ds_ in range(1, 4):
        k.v2("v_xor_b32", v(KR[ds_]), 64 * ds_, v(KR[0]))

    KPRE = opt.get("kpre", 8)
    for c in range(20):
        k.comment(f"---- qproj kstep {c}")
        k.wait_vm(("wq", c))
        k.wait_vm(("x", c // 2))
        k.barrier()
        if c in (0, 4, 8, 12, 16):
            k.stamp()
        if c % 2 == 0 and c // 2 + 1 < 10:
            dma_x(c // 2 + 1)
        if c + 3 < 20:
            dma_wq(c + 3)
        if c == KPRE:
            dma_kv(0)
            dma_kv(1)
        pos = c % 4
        if c > 0 and c % 2 == 0:
            for dt in range(4):
                k.v2("v_xor_b32", v(WQR[dt]), "0x10000", v(WQR[dt]))
        A = FR
        B = FR + 16
        for qt in range(3):
            k.ds(f"ds_read_b128 {vr(B + 4 * qt, 4)}, {v(XR[c & 1])} offset:{qt * 2048 + ((c // 2) & 1) * 12288}",
                 wr=vs(B + 4 * qt, 4), rd=[v(XR[c & 1])], tag=("xb", qt))
        for dt in range(4):
            for u in range(2):
                k.ds(f"ds_read_b64_tr_b16 {vr(A + 4 * dt + 2 * u, 2)}, {v(WQR[dt])} offset:{u * 2048 + (pos & 1) * 16384}",
                     wr=vs(A + 4 * dt + 2 * u, 2), rd=[v(WQR[dt])], tag=("wa", dt))
        for dt in range(4):
            k.wait_lg(("wa", dt))
            for qt in range(3):
                d = ACC + (dt * 3 + qt) * 4
                k.mfma(d, A + 4 * dt, B + 4 * qt, d if c else None)
    k.barrier()
    k.stamp()
    for dt in range(4):
        for qt in range(3):
            d = ACC + (dt * 3 + qt) * 4
            t = FR + ((dt * 3 + qt) % 8) * 2
            k.v2("v_cvt_pk_bf16_f32", v(t), v(d), v(d + 1))
            k.v2("v_cvt_pk_bf16_f32", v(t + 1), v(d + 2), v(d + 3))
            k.ds(f"ds_write_b64 {v(QW)}, {vr(t, 2)} offset:{qt * 4096 + dt * 512}", rd=[v(QW)] + vs(t, 2), tag="qw")
            if (dt * 3 + qt) % 8 == 7:
                k.wait_lg0()
    k.wait_lg0()
    k.barrier()
    for qt in range(3):
        for ds_ in range(4):
            d = QF + (qt * 4 + ds_) * 4
            k.ds(f"ds_read_b128 {vr(d, 4)}, {v(QR)} offset:{(qt * 4 + ds_) * 1024}", wr=vs(d, 4), rd=[v(QR)], tag="qr")
    k.wait_lg0()
    if opt.get("dumpq"):
        k.s2("s_lshl_b32", sT0, "s2", 3)
        k.s2("s_add_u32", sT0, sT0, sW)
        k.s2("s_mul_i32", sT0, sT0, 12288)
        k.s2("s_add_u32", sT0, sT0, QDBG)
        k.v2("v_lshlrev_b32", T0, 4, LANE)
        for f in range(12):
            k.vmem(f"buffer_store_dwordx4 {vr(QF + 4 * f, 4)}, {T0}, {sr(SWS, 4)}, {sT0} offen",
                   rd=vs(QF + 4 * f, 4) + [T0, sT0], tag="dbg", store_data=vs(QF + 4 * f, 4))
            k.s2("s_add_u32", sT0, sT0, 1024)

    def sreg(blk, qt, t):
        return S0 + ((blk * 3 + qt) * 2 + t) * 4

    AL = [30, 31, 7]
    MC = [FR, FR + 1, FR + 2]
    TT = FR + 4

    def xlane(op, r, tmp):
        k.v1("v_mov_b32", v(tmp), v(r))
        k.valu(f"v_permlane32_swap_b32 {v(r)}, {v(tmp)}", wr=[v(r), v(tmp)], rd=[v(r), v(tmp)], perm=True)
        k.v2(op, v(r), v(r), v(tmp))
        k.v1("v_mov_b32", v(tmp), v(r))
        k.valu(f"v_permlane16_swap_b32 {v(r)}, {v(tmp)}", wr=[v(r), v(tmp)], rd=[v(r), v(tmp)], perm=True)
        k.v2(op, v(r), v(r), v(tmp))

    def softmax(st):
        k.comment(f"---- softmax stage {st}")
        PB = P0 if st == 0 else P1
        MN = [TT, TT + 1, TT + 2]
        for qt in range(3):
            regs = [sreg(blk, qt, t) + r for blk in range(4) for t in range(2) for r in range(4)]
            mn = MN[qt]
            if st == 0:
                k.v3("v_max3_f32", v(mn), v(regs[0]), v(regs[1]), v(regs[2]))
                rest = regs[3:]
            else:
                k.v3("v_max3_f32", v(mn), v(M[qt]), v(regs[0]), v(regs[1]))
                rest = regs[2:]
            while len(rest) >= 2:
                k.v3("v_max3_f32", v(mn), v(mn), v(rest[0]), v(rest[1]))
                rest = rest[2:]
            if rest:
                k.v2("v_max_f32", v(mn), v(mn), v(rest[0]))
        for qt in range(3):
            xlane("v_max_f32", MN[qt], TT + 4 + qt)
        for qt in range(3):
            k.v2("v_mul_f32", v(MC[qt]), sC, v(MN[qt]))
            if st == 1:
                k.v3("v_fma_f32", v(AL[qt]), v(M[qt]), sC, f"-{v(MC[qt])}")
                k.v1("v_exp_f32", v(AL[qt]), v(AL[qt]), trans=True)
            k.v1("v_mov_b32", v(M[qt]), v(MN[qt]))
        if st == 1:
            for qt in range(3):
                k.v2("v_mul_f32", v(LACC[qt]), v(LACC[qt]), v(AL[qt]))
                k.v2("v_mul_f32", v(LACC[qt] + 1), v(LACC[qt] + 1), v(AL[qt]))
        first = [st == 0] * 3
        for blk in range(4):
            for qt in range(3):
                base = sreg(blk, qt, 0)
                for r in range(8):
                    k.v3("v_fma_f32", v(base + r), v(base + r), sC, f"-{v(MC[qt])}")
                for r in range(8):
                    k.v1("v_exp_f32", v(base + r), v(base + r), trans=True)
                for r in range(0, 8, 2):
                    if first[qt]:
                        if r == 0:
                            k.valu(f"v_pk_add_f32 {vr(LACC[qt], 2)}, {vr(base, 2)}, {vr(base + 2, 2)}",
                                   wr=vs(LACC[qt], 2), rd=vs(base, 4))
                        elif r == 2:
                            pass
                        else:
                            k.valu(f"v_pk_add_f32 {vr(LACC[qt], 2)}, {vr(LACC[qt], 2)}, {vr(base + r, 2)}",
                                   wr=vs(LACC[qt], 2), rd=vs(LACC[qt], 2) + vs(base + r, 2))
                    else:
                        k.valu(f"v_pk_add_f32 {vr(LACC[qt], 2)}, {vr(LACC[qt], 2)}, {vr(base + r, 2)}",
                               wr=vs(LACC[qt], 2), rd=vs(LACC[qt], 2) + vs(base + r, 2))
                first[qt] = False
                pd = PB + (blk * 3 + qt) * 4
                for r in range(4):
                    k.v2("v_cvt_pk_bf16_f32", v(pd + r), v(base + 2 * r), v(base + 2 * r + 1))

    def oreg(j, qt):
        o = j * 3 + qt
        return QF + 4 * o if o < 12 else 160 + 4 * (o - 12)

    WO_DMA_AT = 5
    WO_DO_AT = 10
    for c in range(16):
        k.comment(f"---- kv chunk {c}")
        k.wait_vm(("kv", c))
        if c == WO_DO_AT:
            k.wait_vm("wo")
        k.barrier()
        k.stamp()
        if c == 0:
            dma_kv(2)
        if c + 3 < 16:
            dma_kv(c + 3)
        if c == WO_DMA_AT:
            k.s2("s_lshr_b32", sT0, "s2", 1)
            k.s2("s_lshl_b32", sT0, sT0, 5)
            k.s2("s_lshl_b32", sT1, sW, 2)
            k.s2("s_add_u32", sT0, sT0, sT1)
            k.s2("s_mul_i32", sT0, sT0, 1280)
            k.s2("s_and_b32", sT2, "s2", 1)
            k.s2("s_mul_i32", sT2, sT2, 640)
            k.s2("s_add_u32", sT0, sT0, sT2)
            k.s2("s_mul_i32", sT1, sW, 4 * 640)
            k.s2("s_add_u32", sT1, sT1, WOL)
            k.v2("v_lshlrev_b32", T0, 4, LANE)
            k.salu("s_mov_b32 exec_hi, 0xff")
            for i in range(4):
                k.s1("s_mov_b32", "m0", sT1)
                k.vmem(f"buffer_load_dwordx4 {T0}, {sr(SWO, 4)}, {sT0} offen lds", rd=[T0, sT0], tag="wo", dma=True)
                if i < 3:
                    k.s2("s_add_u32", sT0, sT0, 1280)
                    k.s2("s_add_u32", sT1, sT1, 640)
            k.salu("s_mov_b32 exec_hi, -1")
        slot = c % 4
        if c < 8:
            blk = c % 4
            for t in range(2):
                for ds_ in range(4):
                    d = FR + (t * 4 + ds_) * 4
                    k.ds(f"ds_read_b128 {vr(d, 4)}, {v(KR[ds_])} offset:{slot * 16384 + t * 4096}",
                         wr=vs(d, 4), rd=[v(KR[ds_])], tag=("kf", t, ds_))
            for t in range(2):
                for ds_ in range(4):
                    k.wait_lg(("kf", t, ds_))
                    for qt in range(3):
                        d = sreg(blk, qt, t)
                        k.mfma(d, FR + (t * 4 + ds_) * 4, QF + (qt * 4 + ds_) * 4, d if ds_ else None)
            if c == 3:
                softmax(0)
            if c == 7:
                softmax(1)
                k.v3("v_bfe_u32", T0, LANE, 2, 2)
                k.v2("v_and_b32", T1, 1, vG)
                k.v3("v_lshl_add_u32", T1, T1, 2, T0)
                k.s2("s_lshl_b32", sT0, sKh, 2)
                k.v2("v_xor_b32", T1, sT0, T1)
                k.v3("v_lshl_add_u32", T2, vG, 2, T0)
                k.v2("v_lshlrev_b32", T2, 8, T2)
                k.v2("v_and_b32", T3, 3, LANE)
                k.v3("v_lshl_add_u32", T2, T3, 3, T2)
                k.s2("s_lshl_b32", sT0, sKh, 13)
                k.s2("s_add_u32", sT0, sT0, sRing)
                k.v2("v_add_u32", T2, sT0, T2)
                for j in range(8):
                    k.v2("v_xor_b32", T3, j, T1)
                    k.v3("v_lshl_add_u32", v(VR[j]), T3, 5, T2)
        else:
            cv = c - 8
            PB = (P0 if cv < 4 else P1) + (cv % 4) * 12
            for j in range(8):
                for u in range(2):
                    d = FR + j * 4 + 2 * u
                    k.ds(f"ds_read_b64_tr_b16 {vr(d, 2)}, {v(VR[j])} offset:{slot * 16384 + u * 4096}",
                         wr=vs(d, 2), rd=[v(VR[j])], tag=("vf", j))
            for j in range(8):
                k.wait_lg(("vf", j))
                for qt in range(3):
                    d = oreg(j, qt)
                    k.mfma(d, FR + j * 4, PB + qt * 4, d if cv else None)
            if cv == 3:
                k.comment("rescale O by alpha")
                for j in range(8):
                    for qt in range(3):
                        d = oreg(j, qt)
                        for r in range(4):
                            k.v2("v_mul_f32", v(d + r), v(d + r), v(AL[qt]))
            if c == WO_DO_AT:
                k.comment("wo re-layout: tr reads + stores")
                k.v3("v_bfe_u32", T0, LANE, 2, 2)
                k.v3("v_lshl_add_u32", T0, vG, 2, T0)
                k.v2("v_mul_u32_u24", T0, 640, T0)
                k.v2("v_and_b32", T1, 3, LANE)
                k.v3("v_lshl_add_u32", T0, T1, 3, T0)
                k.s2("s_lshl_b32", sT0, sW, 5)
                k.s2("s_add_u32", sT0, sT0, WOL)
                k.v2("v_add_u32", T0, sT0, T0)
                for i in range(3):
                    for u in range(2):
                        d = FR + i * 4 + 2 * u
                        k.ds(f"ds_read_b64_tr_b16 {vr(d, 2)}, {T0} offset:{u * 10240 + i * 256}",
                             wr=vs(d, 2), rd=[T0], tag="wor")
                k.s2("s_mul_i32", sT0, "s2", 20)
                k.s2("s_add_u32", sT0, sT0, sW)
                k.s2("s_lshl_b32", sT0, sT0, 10)
                k.s2("s_add_u32", sT0, sT0, WOT)
                k.v2("v_lshlrev_b32", T1, 4, LANE)
                k.wait_lg0()
                for i in range(3):
                    if i == 2:
                        k.salu(f"s_cmp_lt_u32 {sW}, 4")
                        k.salu(f"s_cselect_b32 {sT0}, {sT0}, 0x7f000000", wr=[sT0])
                    k.vmem(f"buffer_store_dwordx4 {vr(FR + 4 * i, 4)}, {T1}, {sr(SWS, 4)}, {sT0} offen{STF}",
                           rd=vs(FR + 4 * i, 4) + [T1, sT0], tag="wost", store_data=vs(FR + 4 * i, 4))
                    if i < 2:
                        k.s2("s_add_u32", sT0, sT0, 8192)
                k.wait_vm("wost")
    k.stamp()
    for qt in range(3):
        k.v2("v_add_f32", v(ST + 3 + qt), v(LACC[qt]), v(LACC[qt] + 1))
    for qt in range(3):
        xlane("v_add_f32", ST + 3 + qt, FR + qt)
    k.s2("s_lshl_b32", sT0, sW, 9)
    k.s2("s_add_u32", sT0, sT0, STAT)
    k.v3("v_lshl_add_u32", T0, vQ, 5, sT0)
    k.ds(f"ds_write_b128 {T0}, {vr(ST, 4)}", rd=[T0] + vs(ST, 4), tag="mw")
    k.ds(f"ds_write_b64 {T0}, {vr(ST + 4, 2)} offset:16", rd=[T0] + vs(ST + 4, 2), tag="mw")
    k.s2("s_mul_i32", sT0, sWl, 12288)
    k.s2("s_add_u32", sT0, sT0, sRing)
    k.v3("v_lshl_add_u32", T1, LANE, 4, sT0)
    for j in range(4):
        for qt in range(3):
            d = oreg(4 + j, qt)
            k.ds(f"ds_write_b128 {T1}, {vr(d, 4)} offset:{(j * 3 + qt) * 1024}", rd=[T1] + vs(d, 4), tag="mw")
    k.wait_lg0()
    k.barrier()
    k.v2("v_xor_b32", T0, 1024, T0)
    k.s2("s_xor_b32", sT1, sWl, 2)
    k.s2("s_mul_i32", sT0, sT1, 12288)
    k.s2("s_add_u32", sT0, sT0, sRing)
    k.v3("v_lshl_add_u32", T1, LANE, 4, sT0)
    PS = FR
    k.ds(f"ds_read_b128 {vr(PS, 4)}, {T0}", wr=vs(PS, 4), rd=[T0], tag="ps")
    k.ds(f"ds_read_b64 {vr(PS + 4, 2)}, {T0} offset:16", wr=vs(PS + 4, 2), rd=[T0], tag="ps")
    PO = P0
    for j in range(4):
        for qt in range(3):
            d = PO + (j * 3 + qt) * 4
            k.ds(f"ds_read_b128 {vr(d, 4)}, {T1} offset:{(j * 3 + qt) * 1024}", wr=vs(d, 4), rd=[T1], tag=("po", j))
    k.wait_lg("ps")
    FO = [FR + 8, FR + 9, FR + 10]
    FP = [FR + 12, FR + 13, FR + 14]
    for qt in range(3):
        mm = FR + 16 + qt
        k.v2("v_max_f32", v(mm), v(M[qt]), v(PS + qt))
        k.v2("v_sub_f32", v(FO[qt]), v(M[qt]), v(mm))
        k.v2("v_sub_f32", v(FP[qt]), v(PS + qt), v(mm))
        k.v2("v_mul_f32", v(FO[qt]), sC, v(FO[qt]))
        k.v2("v_mul_f32", v(FP[qt]), sC, v(FP[qt]))
        k.v1("v_exp_f32", v(FO[qt]), v(FO[qt]), trans=True)
        k.v1("v_exp_f32", v(FP[qt]), v(FP[qt]), trans=True)
        k.v2("v_mul_f32", v(mm), v(FO[qt]), v(ST + 3 + qt))
        k.v3("v_fma_f32", v(mm), v(FP[qt]), v(PS + 3 + qt), v(mm))
        k.v1("v_rcp_f32", v(mm), v(mm), trans=True)
        k.v2("v_mul_f32", v(FO[qt]), v(FO[qt]), v(mm))
        k.v2("v_mul_f32", v(FP[qt]), v(FP[qt]), v(mm))
    k.s2("s_lshl_b32", sT0, sB, 1)
    k.s2("s_add_u32", sT0, sT0, sQh)
    k.s2("s_lshl_b32", sT0, sT0, 7)
    k.s2("s_lshl_b32", sT1, sHead, 2)
    k.s2("s_add_u32", sT0, sT0, sT1)
    k.s2("s_lshl_b32", sT1, sKh, 1)
    k.s2("s_add_u32", sT0, sT0, sT1)
    k.s2("s_mul_i32", sT0, sT0, 3072)
    if OWS:
        k.s2("s_add_u32", sT0, sT0, OWS)
    k.s2("s_add_u32", sT1, sT0, 3072)
    k.v2("v_lshlrev_b32", T2, 4, LANE)
    OD = P1
    for jj in range(2):
        for e in range(2):
            j = 2 * jj + e
            k.wait_lg(("po", j))
            for qt in range(3):
                d = oreg(j, qt)
                p = PO + (j * 3 + qt) * 4
                for r in range(4):
                    k.v2("v_mul_f32", v(d + r), v(d + r), v(FO[qt]))
                for r in range(4):
                    k.v3("v_fma_f32", v(d + r), v(p + r), v(FP[qt]), v(d + r))
                od = OD + (jj * 3 + qt) * 4 + 2 * e
                k.v2("v_cvt_pk_bf16_f32", v(od), v(d), v(d + 1))
                k.v2("v_cvt_pk_bf16_f32", v(od + 1), v(d + 2), v(d + 3))
        for qt in range(3):
            od = OD + (jj * 3 + qt) * 4
            so = sT1 if jj else sT0
            k.vmem(f"buffer_store_dwordx4 {vr(od, 4)}, {T2}, {sr(SWS, 4)}, {so} offen offset:{qt * 1024}{STF}",
                   rd=vs(od, 4) + [T2, so], tag="ost", store_data=vs(od, 4))
    if opt.get("ts"):
        k.wait_vm0()
    k.flush_stamps(SWS, sW, TSBASE, 8)
    k.label("K1_END")
    k.salu("s_endpgm")
    return k


def gen_k2(opt):
    k = Kern()
    add_stamps(k, opt)
    SWS, SO = 4, 8
    sW, sRb, sCb, sT0, sT1, sT2, sA, sBo = "s48", "s49", "s50", "s51", "s52", "s53", "s54", "s55"
    k.salu("s_cmp_ge_u32 s2, 256")
    k.salu("s_cbranch_scc1 K2_END")
    k.salu("s_load_dwordx8 s[36:43], s[0:1], 32")
    if opt.get("ctouch", 1):
        code_touch(k, "K2", "K2_END", "v0", "v2", "v7", 256)
    k.v2("v_lshrrev_b32", "v1", 6, "v0")
    k.v2("v_and_b32", "v0", 63, "v0")
    k.valu(f"v_readfirstlane_b32 {sW}, v1", wr=[sW], rd=["v1"], lane=True)
    k.s2("s_and_b32", sT0, "s2", 7)
    k.s2("s_lshr_b32", sT1, "s2", 3)
    k.s2("s_lshr_b32", sRb, sT0, 1)
    k.s2("s_lshl_b32", sRb, sRb, 3)
    k.s2("s_lshr_b32", sT2, sT1, 2)
    k.s2("s_add_u32", sRb, sRb, sT2)
    k.s2("s_and_b32", sCb, sT0, 1)
    k.s2("s_lshl_b32", sCb, sCb, 2)
    k.s2("s_and_b32", sT2, sT1, 3)
    k.s2("s_add_u32", sCb, sCb, sT2)
    k.s2("s_lshl_b32", sA, sRb, 7)
    k.s2("s_add_u32", sA, sA, sW)
    k.s2("s_mul_i32", sA, sA, 3072)
    if OWS:
        k.s2("s_add_u32", sA, sA, OWS)
    k.s2("s_mul_i32", sBo, sW, 40)
    k.s2("s_mul_i32", sT0, sCb, 5)
    k.s2("s_add_u32", sBo, sBo, sT0)
    k.s2("s_lshl_b32", sBo, sBo, 10)
    k.s2("s_add_u32", sBo, sBo, WOT)
    k.v2("v_lshlrev_b32", "v2", 4, "v0")
    k.v2("v_add_u32", "v3", 4096, "v2")
    k.salu("s_waitcnt lgkmcnt(0)")
    build_srd(k, SWS, 42, WS_BYTES)
    build_srd(k, SO, 38, OUT_BYTES)
    D = opt.get("k2depth", 4)
    ACC = 8
    BUF = 68

    def load(j):
        b = BUF + (j % D) * 32
        for mt in range(3):
            k.vmem(f"buffer_load_dwordx4 {vr(b + 4 * mt, 4)}, v2, {sr(SWS, 4)}, {sA} offen offset:{mt * 1024}",
                   wr=vs(b + 4 * mt, 4), rd=["v2", sA], tag=("a", j))
        for nt in range(5):
            d = b + 12 + 4 * nt
            if nt < 4:
                k.vmem(f"buffer_load_dwordx4 {vr(d, 4)}, v2, {sr(SWS, 4)}, {sBo} offen offset:{nt * 1024}",
                       wr=vs(d, 4), rd=["v2", sBo], tag=("b", j, nt))
            else:
                k.vmem(f"buffer_load_dwordx4 {vr(d, 4)}, v3, {sr(SWS, 4)}, {sBo} offen",
                       wr=vs(d, 4), rd=["v3", sBo], tag=("b", j, nt))
        k.s2("s_add_u32", sA, sA, 4 * 3072)
        k.s2("s_add_u32", sBo, sBo, 4 * 40960)

    k.stamp()
    for j in range(D - 1):
        load(j)
    for j in range(32):
        if j % 4 == 1:
            k.stamp()
        if j + D - 1 < 32:
            load(j + D - 1)
        b = BUF + (j % D) * 32
        for nt in range(5):
            k.wait_vm(("b", j, nt))
            for mt in range(3):
                d = ACC + (nt * 3 + mt) * 4
                k.mfma(d, b + 12 + 4 * nt, b + 4 * mt, d if j else None)
    k.stamp()
    k.s2("s_lshl_b32", sT0, sW, 14)
    k.v2("v_add_u32", "v4", sT0, "v2")
    for t in range(15):
        k.ds(f"ds_write_b128 v4, {vr(ACC + 4 * t, 4)} offset:{t * 1024}", rd=["v4"] + vs(ACC + 4 * t, 4), tag="w")
    k.wait_lg0()
    k.barrier()
    k.s2("s_lshl_b32", sT0, sW, 10)
    k.v2("v_add_u32", "v4", sT0, "v2")
    for i in range(4):
        for s in range(4):
            d = BUF + (i * 4 + s) * 4
            k.ds(f"ds_read_b128 {vr(d, 4)}, v4 offset:{s * 16384 + i * 4096}", wr=vs(d, 4), rd=["v4"], tag=("r", i))
    k.v2("v_and_b32", "v5", 15, "v0")
    k.v2("v_mul_u32_u24", "v5", 1280, "v5")
    k.v2("v_lshrrev_b32", "v6", 4, "v0")
    k.v3("v_lshl_add_u32", "v5", "v6", 3, "v5")
    for i in range(4):
        k.s2("s_add_u32", sT0, sW, 4 * i)
        k.s2("s_mul_i32", sT1, sT0, 11)
        k.s2("s_lshr_b32", sT1, sT1, 5)
        k.s2("s_mul_i32", sT2, sT1, 3)
        k.s2("s_sub_u32", sT2, sT0, sT2)
        k.s2("s_mul_i32", sA, sRb, 48)
        k.s2("s_lshl_b32", sT2, sT2, 4)
        k.s2("s_add_u32", sA, sA, sT2)
        k.s2("s_mul_i32", sA, sA, 1280)
        k.s2("s_mul_i32", sBo, sCb, 160)
        k.s2("s_add_u32", sA, sA, sBo)
        k.s2("s_lshl_b32", sT1, sT1, 5)
        k.s2("s_add_u32", sA, sA, sT1)
        if i == 3:
            k.salu(f"s_cmp_lt_u32 {sW}, 3")
            k.salu(f"s_cselect_b32 {sA}, {sA}, 0x7f000000", wr=[sA])
        k.wait_lg(("r", i))
        d = BUF + i * 16
        for h in range(2):
            k.valu(f"v_pk_add_f32 {vr(d + 2 * h, 2)}, {vr(d + 2 * h, 2)}, {vr(d + 4 + 2 * h, 2)}",
                   wr=vs(d + 2 * h, 2), rd=vs(d + 2 * h, 2) + vs(d + 4 + 2 * h, 2))
            k.valu(f"v_pk_add_f32 {vr(d + 8 + 2 * h, 2)}, {vr(d + 8 + 2 * h, 2)}, {vr(d + 12 + 2 * h, 2)}",
                   wr=vs(d + 8 + 2 * h, 2), rd=vs(d + 8 + 2 * h, 2) + vs(d + 12 + 2 * h, 2))
            k.valu(f"v_pk_add_f32 {vr(d + 2 * h, 2)}, {vr(d + 2 * h, 2)}, {vr(d + 8 + 2 * h, 2)}",
                   wr=vs(d + 2 * h, 2), rd=vs(d + 2 * h, 2) + vs(d + 8 + 2 * h, 2))
        k.v2("v_cvt_pk_bf16_f32", f"v{d + 4}", f"v{d}", f"v{d + 1}")
        k.v2("v_cvt_pk_bf16_f32", f"v{d + 5}", f"v{d + 2}", f"v{d + 3}")
        k.vmem(f"buffer_store_dwordx2 {vr(d + 4, 2)}, v5, {sr(SO, 4)}, {sA} offen",
               rd=vs(d + 4, 2) + ["v5", sA], tag="st")
    if opt.get("ts"):
        k.wait_vm0()
    k.flush_stamps(SWS, sW, TSBASE + (1 << 20), 4)
    k.label("K2_END")
    k.salu("s_endpgm")
    return k, BUF + D * 32


HEADER = """; Kernarg layout for this problem (64 bytes, ptrs only, base s[0:1]):
"""


def kd(name, nv, ns=102):
    acc = (nv + 3) // 4 * 4
    return f""".amdhsa_kernel {name}
  .amdhsa_next_free_vgpr {nv}
  .amdhsa_next_free_sgpr {ns}
  .amdhsa_accum_offset {acc}
  .amdhsa_group_segment_fixed_size 0
  .amdhsa_kernarg_size 64
  .amdhsa_user_sgpr_count 2
  .amdhsa_user_sgpr_kernarg_segment_ptr 1
  .amdhsa_system_sgpr_workgroup_id_x 1
.end_amdhsa_kernel
"""


def build(opt):
    k1 = gen_k1(opt)
    k2, nv2 = gen_k2(opt)
    out = HEADER
    out += "; @launch kernel=attn_kernel grid=(256,1,1) block=(512,1,1) lds=163840\n"
    out += "; @launch kernel=oproj_kernel grid=(256,1,1) block=(256,1,1) lds=65536\n"
    out += '.amdgcn_target "amdgcn-amd-amdhsa--gfx950"\n.text\n'
    for name, kk in (("attn_kernel", k1), ("oproj_kernel", k2)):
        out += f".globl {name}\n.p2align 8\n.type {name},@function\n{name}:\n" + kk.text()
    out += '.section .rodata,"a"\n.p2align 6\n'
    out += kd("attn_kernel", 256, 102 if opt.get("ts") else 80)
    out += ".p2align 6\n"
    out += kd("oproj_kernel", nv2, 102 if opt.get("ts") else 80)
    return out, k1, k2


if __name__ == "__main__":
    opt = {}
    path = sys.argv[1] if len(sys.argv) > 1 else f"cdna_kernels/{NAME}.s"
    for a in sys.argv[2:]:
        kk, vv = a.split("=")
        opt[kk] = int(vv)
    txt, k1, k2 = build(opt)
    open(path, "w").write(txt)
    print("wrote", path, len(txt), "bytes; k1 slots", k1.slot, "k2 slots", k2.slot)
    print({a: b for a, b in sorted(k1.stats.items(), key=lambda x: -x[1])[:14]})
```

```python
import sys
from dsl import Kern, vr, sr, vs, ss
from gen1 import (NAME, X_BYTES, KV_BYTES, W_BYTES, OUT_BYTES, WS_BYTES, OWS, WOT, QDBG, CSCALE, TSBASE,
                  f32bits, build_srd, add_stamps, code_touch, gen_k2, HEADER, kd)

THRESH = 10.0
FLG = 24 << 20


def v(i):
    return f"v{i}"


def gen_k1(opt, G, CLS=0):
    k = Kern()
    add_stamps(k, opt)
    sfx = f"_{G}{CLS}"
    NT = " nt" if opt.get("nt", 1) else ""
    STF = " sc1"
    SDBG, SOUT = 36, 32
    SX, SK, SV, SWQ, SWO, SWS = 4, 8, 12, 16, 20, 24
    sW, sGrp, sQh, sKh, sWl, sHp, sB = "s48", "s49", "s50", "s51", "s52", "s53", "s54"
    sKV, sT0, sT1, sT2, sC, sRing, sM0K, sM0W, sM0X, sOff = (
        "s55", "s56", "s57", "s58", "s59", "s60", "s61", "s62", "s63", "s64")
    sWqOff, sXOff, sHead, sRet, sThr = "s65", "s66", "s67", "s28", "s29"
    sKW, sKX = "s3", "s47"
    sWoG, sWoL = "s44", "s45"
    XS0 = 131072
    WOL = 131072
    STAT = 155648

    k.salu("s_cmp_ge_u32 s2, 256")
    k.salu("s_cbranch_scc1 K1_END")
    k.salu("s_load_dwordx16 s[32:47], s[0:1], 0")
    if opt.get("ctouch", 1):
        code_touch(k, "K1", "K1_CODE_END", "v0", "v2", "v31", 512)
    k.v2("v_lshrrev_b32", "v1", 6, "v0")
    k.v2("v_and_b32", "v0", 63, "v0")
    k.valu(f"v_readfirstlane_b32 {sW}, v1", wr=[sW], rd=["v1"], lane=True)
    k.s2("s_and_b32", sT0, "s2", 7)
    k.s2("s_lshr_b32", sT1, "s2", 3)
    k.s2("s_and_b32", sHp, sT0, 3)
    k.s2("s_lshl_b32", sHp, sHp, 2)
    k.s2("s_and_b32", sT2, sT1, 3)
    k.s2("s_add_u32", sHp, sHp, sT2)
    k.s2("s_mul_i32", sKW, sT2, 10)
    k.s2("s_lshr_b32", sT2, sT1, 2)
    k.s2("s_mul_i32", sOff, sT2, 5)
    k.s2("s_add_u32", sKW, sKW, sOff)
    k.s2("s_lshr_b32", sKW, sKW, 2)
    k.s2("s_sub_u32", sOff, sKW, 10)
    k.salu(f"s_cmp_ge_u32 {sKW}, 10")
    k.salu(f"s_cselect_b32 {sKW}, {sOff}, {sKW}", wr=[sKW])
    if not opt.get("rot", 1):
        k.s1("s_mov_b32", sKW, 0)
    k.s2("s_lshr_b32", sB, sT0, 2)
    k.s2("s_lshl_b32", sB, sB, 3)
    k.s2("s_add_u32", sB, sB, sT2)
    k.s2("s_lshr_b32", sGrp, sW, 2)
    k.s2("s_and_b32", sQh, sW, 1)
    k.s2("s_bfe_u32", sKh, sW, "0x10001")
    k.s2("s_and_b32", sWl, sW, 3)
    k.s2("s_lshl_b32", sHead, sHp, 1)
    k.s2("s_add_u32", sHead, sHead, sGrp)
    k.s2("s_lshl_b32", sT0, sB, 5)
    k.s2("s_add_u32", sT0, sT0, sHead)
    k.s2("s_lshl_b32", sKV, sT0, 17)
    k.s2("s_lshl_b32", sT1, sWl, 12)
    k.s2("s_add_u32", sKV, sKV, sT1)
    k.s2("s_lshl_b32", sRing, sGrp, 16)
    k.s2("s_add_u32", sM0K, sRing, sT1)
    k.s2("s_lshl_b32", sM0W, sW, 11)
    k.s2("s_add_u32", sM0W, sM0W, 32768)
    k.s2("s_mul_i32", sM0X, sW, 1536)
    k.s2("s_add_u32", sM0X, sM0X, XS0)
    k.s1("s_mov_b32", sC, hex(f32bits(CSCALE)))
    k.s1("s_mov_b32", sThr, hex(f32bits(opt.get("thr", THRESH))))

    LANE = "v0"
    T0, T1, T2, T3 = "v1", "v2", "v3", "v4"
    vG, vQ = "v5", "v6"
    L16 = "v7"
    KD = [8, 9, 10, 11]
    KR = [12, 13, 14, 15]
    VD = [16, 17]
    ST = 18
    MC = [18, 19, 20]
    LS = [21, 22, 23]
    VR = [24, 25, 26, 27, 28, 29, 30, 31]
    FR = 32
    QF = 64
    S0 = 112
    SP = 136
    ACC = 64
    QA = [32, 112]
    WQD = [24, 25]
    XD = [26, 27]
    WQR = [28, 29, 30, 60]
    XR = [18, 19]
    QW, QR = 20, 21
    STG = 160

    def preg(c):
        return 148 if c == 0 else 160 + 12 * (c - 1)

    def oreg(j, qt):
        o = j * 3 + qt
        return QF + 4 * o if o < 21 else 244 + 4 * (o - 21)

    k.v2("v_lshrrev_b32", vG, 4, LANE)
    k.v2("v_and_b32", vQ, 15, LANE)
    k.v2("v_lshlrev_b32", L16, 4, LANE)
    k.v2("v_lshrrev_b32", T0, 5, LANE)
    k.s2("s_lshl_b32", sT0, sKh, 2)
    k.v2("v_add_u32", T1, sT0, T0)
    k.s2("s_lshl_b32", sT0, sW, 2)
    k.v2("v_add_u32", T0, sT0, T0)
    k.v2("v_lshlrev_b32", T0, 13, T0)
    k.s2("s_lshl_b32", sT0, sHp, 9)
    k.v2("v_add_u32", T0, sT0, T0)
    k.v3("v_bfe_u32", T2, LANE, 4, 1)
    k.v3("v_lshl_add_u32", T0, T2, 8, T0)
    for i in range(2):
        k.v2("v_add_u32", T2, 2 * i, T1)
        k.v2("v_lshlrev_b32", T2, 1, T2)
        k.v2("v_xor_b32", T2, T2, vQ)
        k.v3("v_lshl_add_u32", v(WQD[i]), T2, 4, T0)
        if i:
            k.v2("v_add_u32", v(WQD[i]), 2 * 8192 - 1024, v(WQD[i]))
    k.s2("s_mul_i32", sT0, sW, 12)
    k.v2("v_lshrrev_b32", T0, 3, LANE)
    k.v2("v_add_u32", T0, sT0, T0)
    k.v2("v_and_b32", T3, 7, LANE)
    k.s2("s_mul_i32", sT1, sB, 96)
    k.s1("s_mov_b32", sT2, 1280)
    for i in range(2):
        if i:
            k.v2("v_add_u32", T0, 8, T0)
        k.v3("v_bfe_u32", T1, T0, 1, 3)
        k.v2("v_xor_b32", T1, T1, T3)
        k.v2("v_add_u32", T2, sT1, T0)
        k.v2("v_mul_lo_u32", T2, T2, sT2)
        k.v3("v_lshl_add_u32", v(XD[i]), T1, 4, T2)
        if i:
            k.v2("v_subrev_u32", v(XD[i]), 1024, v(XD[i]))
    k.v2("v_xor_b32", T0, vQ, vG)
    k.v2("v_lshlrev_b32", T0, 4, T0)
    k.v3("v_lshl_add_u32", v(KD[0]), vG, 8, T0)
    for i in range(1, 4):
        k.v2("v_xor_b32", v(KD[i]), 64 * i, v(KD[0]))
    k.v2("v_lshlrev_b32", T0, 1, vG)
    k.v2("v_xor_b32", T0, T0, vQ)
    k.v2("v_lshlrev_b32", T0, 4, T0)
    k.v3("v_lshl_add_u32", v(VD[0]), vG, 8, T0)
    k.v2("v_xor_b32", v(VD[1]), 128, v(VD[0]))

    k.salu("s_waitcnt lgkmcnt(0)")
    build_srd(k, SX, 32, X_BYTES)
    build_srd(k, SWQ, 38, W_BYTES)
    build_srd(k, SWS, 46, WS_BYTES)
    build_srd(k, SK, 34, KV_BYTES)
    build_srd(k, SV, 36, KV_BYTES)
    build_srd(k, SWO, 40, W_BYTES)
    build_srd(k, SOUT, 42, OUT_BYTES)
    build_srd(k, SDBG, 44, 256)
    k.s1("s_mov_b32", sKX, sKW)
    k.stamp()
    split = len(k.lines)
    k.fence()

    def wqs_off(pos):
        return (pos & 1) * 16384 + (pos >> 1) * 65536

    def setm0(base, off):
        if off:
            k.s2("s_add_u32", "m0", base, off)
        else:
            k.s1("s_mov_b32", "m0", base)

    def bump(ctr):
        k.s2("s_add_u32", ctr, ctr, 1)
        k.salu(f"s_cmp_eq_u32 {ctr}, 10")
        k.salu(f"s_cselect_b32 {ctr}, 0, {ctr}", wr=[ctr])

    def dma_wq(c):
        def p0():
            setm0(sM0W, wqs_off(c % 4))
            if c % 2 == 0:
                k.s2("s_lshl_b32", sWqOff, sKW, 19)
            else:
                k.s2("s_add_u32", sWqOff, sWqOff, 262144)
            k.vmem(f"buffer_load_dwordx4 {v(WQD[0])}, {sr(SWQ, 4)}, {sWqOff} offen lds",
                   rd=[v(WQD[0]), sWqOff], tag=("wq", c), dma=True)
            k.vmem(f"buffer_load_dwordx4 {v(WQD[1])}, {sr(SWQ, 4)}, {sWqOff} offen offset:1024 lds",
                   rd=[v(WQD[1]), sWqOff], tag=("wq", c), dma=True)
            if c % 2 == 1:
                bump(sKW)
        return [p0]

    def dma_x(j):
        def p0():
            setm0(sM0X, (j & 1) * 12288)
            k.s2("s_lshl_b32", sXOff, sKX, 7)
            k.vmem(f"buffer_load_dwordx4 {v(XD[0])}, {sr(SX, 4)}, {sXOff} offen lds",
                   rd=[v(XD[0]), sXOff], tag=("x", j), dma=True)
            k.salu("s_mov_b32 exec_hi, 0")
            k.vmem(f"buffer_load_dwordx4 {v(XD[1])}, {sr(SX, 4)}, {sXOff} offen offset:1024 lds",
                   rd=[v(XD[1]), sXOff], tag=("x", j), dma=True)
            k.salu("s_mov_b32 exec_hi, -1")
            bump(sKX)
        return [p0]

    def dma_kv(c, staged=None):
        slot = c % 4
        cc = c % 8

        def piece(i):
            def p():
                if staged is None:
                    setm0(sM0K, slot * 16384)
                if cc:
                    k.s2("s_add_u32", sOff, sKV, cc * 16384)
                else:
                    k.s1("s_mov_b32", sOff, sKV)
                a, srd = (v(KD[i]), SK) if c < 8 else (v(VD[i & 1]), SV)
                if staged is None:
                    k.vmem(f"buffer_load_dwordx4 {a}, {sr(srd, 4)}, {sOff} offen offset:{i * 1024}{NT} lds",
                           rd=[a, sOff], tag=("kv", c), dma=True)
                else:
                    d = staged + 4 * i
                    k.vmem(f"buffer_load_dwordx4 {vr(d, 4)}, {a}, {sr(srd, 4)}, {sOff} offen offset:{i * 1024}{NT}",
                           wr=vs(d, 4), rd=[a, sOff], tag=("kv", c))
            return p
        return [piece(i) for i in range(4)]

    def run(ps):
        for p in ps:
            p()

    NSTG = opt.get(f"nstg{CLS}", opt.get("nstg", 2))
    kp0 = opt.get(f"kpre{CLS}", opt.get("kpre", 6))
    kstep = opt.get(f"kstep{CLS}", opt.get("kstep", 3))
    kpre = {}
    for n in range(2 + NSTG):
        it = min(kp0 + n * kstep, 19)
        kpre.setdefault(it, []).extend(dma_kv(n, None if n < 2 else STG + 16 * (n - 2)))

    k.s2("s_lshl_b32", sT0, "s2", 12)
    k.s2("s_add_u32", sT0, sT0, FLG)
    k.s2("s_lshl_b32", sT1, sW, 4)
    k.s2("s_or_b32", sT1, sT1, "s2")
    k.salu(f"s_cmp_lt_u32 {sT1}, 16")
    k.salu(f"s_cselect_b32 {sT0}, {sT0}, 0x7f000000", wr=[sT0])
    k.v1("v_mov_b32", T1, 0)
    k.salu("s_mov_b64 exec, 1")
    k.vmem(f"buffer_store_dword {T1}, {T1}, {sr(SWS, 4)}, {sT0} offen sc1", rd=[T1, sT0], tag="zero")
    k.salu("s_mov_b64 exec, -1")
    k.nop(2)
    run(kpre.get(-2, []))
    run(dma_x(0) + dma_wq(0) + dma_wq(1) + dma_x(1) + dma_wq(2) + dma_wq(3))
    run(kpre.get(-1, []))

    k.v3("v_bfe_u32", T0, LANE, 2, 2)
    k.v2("v_and_b32", T1, 1, vG)
    k.v3("v_lshl_add_u32", T1, T1, 2, T0)
    k.v3("v_lshl_add_u32", T2, vG, 3, T0)
    k.v2("v_lshlrev_b32", T2, 9, T2)
    k.v2("v_and_b32", T3, 3, LANE)
    k.v3("v_lshl_add_u32", T2, T3, 3, T2)
    k.v2("v_add_u32", T2, 32768 + G * 256, T2)
    k.s2("s_lshl_b32", sT0, sKh, 2)
    k.v2("v_xor_b32", T1, sT0, T1)
    for dt in range(4):
        k.v2("v_xor_b32", T3, dt, T1)
        k.v3("v_lshl_add_u32", v(WQR[dt]), T3, 5, T2)
    k.s2("s_mul_i32", sT0, sQh, 48 * 128)
    k.s2("s_add_u32", sT0, sT0, XS0)
    k.v2("v_lshlrev_b32", T0, 7, vQ)
    k.v2("v_add_u32", T0, sT0, T0)
    k.v2("v_lshrrev_b32", T1, 1, vQ)
    k.v2("v_xor_b32", T1, T1, vG)
    k.v3("v_lshl_add_u32", v(XR[0]), T1, 4, T0)
    k.v2("v_xor_b32", v(XR[1]), 64, v(XR[0]))
    k.s2("s_mul_i32", sT0, sQh, 12 * 1024)
    k.s2("s_add_u32", sT0, sT0, G * 65536 + 32768)
    k.v2("v_add_u32", v(QR), sT0, L16)
    k.s2("s_lshl_b32", sT1, sKh, 11)
    k.s2("s_add_u32", sT0, sT0, sT1)
    k.v2("v_lshrrev_b32", T0, 1, vG)
    k.v2("v_lshlrev_b32", T0, 8, T0)
    k.v3("v_lshl_add_u32", T0, vQ, 4, T0)
    k.v2("v_and_b32", T1, 1, vG)
    k.v3("v_lshl_add_u32", T0, T1, 3, T0)
    k.v2("v_add_u32", v(QW), sT0, T0)
    k.s2("s_lshl_b32", sT0, sKh, 13)
    k.s2("s_add_u32", sT0, sT0, sRing)
    k.v2("v_xor_b32", T0, vG, vQ)
    k.v2("v_lshlrev_b32", T0, 4, T0)
    k.v3("v_lshl_add_u32", T0, vQ, 8, T0)
    k.v2("v_add_u32", v(KR[0]), sT0, T0)
    for ds_ in range(1, 4):
        k.v2("v_xor_b32", v(KR[ds_]), 64 * ds_, v(KR[0]))

    def weave(prim, *secs):
        secs = [(list(l), st, sd, per) for (l, st, sd, per) in secs]
        for i, p in enumerate(prim):
            p()
            for (l, st, sd, per) in secs:
                if i >= st and (i - st) % sd == 0:
                    for _ in range(per):
                        if l:
                            l.pop(0)()
        for (l, st, sd, per) in secs:
            run(l)

    def q_reads(c):
        ops = []
        A = QA[c & 1]
        B = A + 16
        for qt in range(3):
            ops.append(lambda qt=qt: k.ds(
                f"ds_read_b128 {vr(B + 4 * qt, 4)}, {v(XR[c & 1])} offset:{qt * 2048 + ((c // 2) & 1) * 12288}",
                wr=vs(B + 4 * qt, 4), rd=[v(XR[c & 1])], tag="qf"))
        for dt in range(4):
            def rd2(dt=dt):
                if c > 0 and c % 2 == 0:
                    k.v2("v_xor_b32", v(WQR[dt]), "0x10000", v(WQR[dt]))
                for u in range(2):
                    k.ds(f"ds_read_b64_tr_b16 {vr(A + 4 * dt + 2 * u, 2)}, {v(WQR[dt])} offset:{u * 2048 + (c & 1) * 16384}",
                         wr=vs(A + 4 * dt + 2 * u, 2), rd=[v(WQR[dt])], tag="qf")
            ops.append(rd2)
        return ops

    k.wait_vm(("x", 0))
    k.wait_vm(("wq", 0))
    k.barrier()
    k.stamp()
    run(q_reads(0))
    for c in range(20):
        k.comment(f"---- qproj kstep {c}")
        if c + 1 < 20:
            k.wait_vm(("x", (c + 1) // 2))
            k.wait_vm(("wq", c + 1))
        k.wait_lg0()
        if not opt.get("qp_nobar"):
            k.barrier()
        if c in (3, 7, 11, 15):
            k.stamp()
        pieces = []
        if c % 2 == 1 and (c + 1) // 2 + 1 < 10:
            pieces += dma_x((c + 1) // 2 + 1)
        if c + 4 < 20:
            pieces += dma_wq(c + 4)
        pieces += kpre.get(c, [])
        A = QA[c & 1]
        B = A + 16

        mf = []
        for dt in range(4):
            for qt in range(3):
                d = ACC + (dt * 3 + qt) * 4
                mf.append(lambda d=d, dt=dt, qt=qt: k.mfma(d, A + 4 * dt, B + 4 * qt, d if c else None))
        rds = q_reads(c + 1) if c + 1 < 20 else []
        weave(mf, (rds, 0, 1, 1), (pieces, opt.get("qdma0", 1) if G == 0 else opt.get("qdma1", 7), 3, 1))
    k.stamp()
    TQ = 32
    for dt in range(4):
        for qt in range(3):
            d = ACC + (dt * 3 + qt) * 4
            t = TQ + (dt * 3 + qt) * 2
            k.v2("v_cvt_pk_bf16_f32", v(t), v(d), v(d + 1))
            k.v2("v_cvt_pk_bf16_f32", v(t + 1), v(d + 2), v(d + 3))
            k.ds(f"ds_write_b64 {v(QW)}, {vr(t, 2)} offset:{qt * 4096 + dt * 512}", rd=[v(QW)] + vs(t, 2), tag="qw")
    k.v3("v_bfe_u32", T0, LANE, 2, 2)
    k.v2("v_and_b32", T1, 1, vG)
    k.v3("v_lshl_add_u32", T1, T1, 2, T0)
    k.s2("s_lshl_b32", sT0, sKh, 2)
    k.v2("v_xor_b32", T1, sT0, T1)
    k.v3("v_lshl_add_u32", T2, vG, 2, T0)
    k.v2("v_lshlrev_b32", T2, 8, T2)
    k.v2("v_and_b32", T3, 3, LANE)
    k.v3("v_lshl_add_u32", T2, T3, 3, T2)
    k.s2("s_lshl_b32", sT0, sKh, 13)
    k.s2("s_add_u32", sT0, sT0, sRing)
    k.v2("v_add_u32", T2, sT0, T2)
    for j in range(8):
        k.v2("v_xor_b32", T3, j, T1)
        k.v3("v_lshl_add_u32", v(VR[j]), T3, 5, T2)

    def k_reads(c):
        slot = c % 4
        ops = []
        for t in range(2):
            for ds_ in range(4):
                d = FR + (t * 4 + ds_) * 4
                ops.append(lambda d=d, t=t, ds_=ds_: k.ds(
                    f"ds_read_b128 {vr(d, 4)}, {v(KR[ds_])} offset:{slot * 16384 + t * 4096}",
                    wr=vs(d, 4), rd=[v(KR[ds_])], tag=("kf", t, ds_)))
        return ops

    def v_reads(c, half):
        slot = c % 4
        ops = []
        for j in range(4 * half, 4 * half + 4):
            for u in range(2):
                d = FR + j * 4 + 2 * u
                ops.append(lambda d=d, j=j, u=u: k.ds(
                    f"ds_read_b64_tr_b16 {vr(d, 2)}, {v(VR[j])} offset:{slot * 16384 + u * 4096}",
                    wr=vs(d, 2), rd=[v(VR[j])], tag=("vf", j)))
        return ops

    def sreg(qt, t):
        return S0 + (qt * 2 + t) * 4

    def xlane3(op, rs, tmps):
        for r, t in zip(rs, tmps):
            k.v1("v_mov_b32", v(t), v(r))
        for r, t in zip(rs, tmps):
            k.valu(f"v_permlane32_swap_b32 {v(r)}, {v(t)}", wr=[v(r), v(t)], rd=[v(r), v(t)], perm=True)
        for r, t in zip(rs, tmps):
            k.v2(op, v(r), v(r), v(t))
        for r, t in zip(rs, tmps):
            k.v1("v_mov_b32", v(t), v(r))
        for r, t in zip(rs, tmps):
            k.valu(f"v_permlane16_swap_b32 {v(r)}, {v(t)}", wr=[v(r), v(t)], rd=[v(r), v(t)], perm=True)
        for r, t in zip(rs, tmps):
            k.v2(op, v(r), v(r), v(t))

    def max8x3(dsts):
        for qt in range(3):
            b = sreg(qt, 0)
            k.v3("v_max3_f32", v(dsts[qt]), v(b), v(b + 1), v(b + 2))
        for i in (3, 5):
            for qt in range(3):
                b = sreg(qt, 0)
                k.v3("v_max3_f32", v(dsts[qt]), v(dsts[qt]), v(b + i), v(b + i + 1))
        for qt in range(3):
            b = sreg(qt, 0)
            k.v2("v_max_f32", v(dsts[qt]), v(dsts[qt]), v(b + 7))

    sites = []

    def s_mfma(c):
        ops = []
        for t in range(2):
            for ds_ in range(4):
                for qt in range(3):
                    def op(t=t, ds_=ds_, qt=qt):
                        if qt == 0:
                            k.wait_lg(("kf", t, ds_))
                        d = sreg(qt, t)
                        k.mfma(d, FR + (t * 4 + ds_) * 4, QF + (qt * 4 + ds_) * 4, d if ds_ else None)
                    ops.append(op)
        return ops

    def softmax(c):
        ops = []

        def head():
            k.comment(f"softmax {c}")
            if c == 0:
                max8x3(MC)
                xlane3("v_max_f32", MC, [SP, SP + 1, SP + 2])
                for qt in range(3):
                    k.v2("v_mul_f32", v(MC[qt]), sC, v(MC[qt]))
            for r in range(4):
                for qt in range(3):
                    x = sreg(qt, 0) + r
                    k.v3("v_fma_f32", v(x), v(x), sC, f"-{v(MC[qt])}")

        def head2():
            for r in range(4, 8):
                for qt in range(3):
                    x = sreg(qt, 0) + r
                    k.v3("v_fma_f32", v(x), v(x), sC, f"-{v(MC[qt])}")

        def check():
            if c > 0:
                max8x3([SP, SP + 1, SP + 2])
                k.v3("v_max3_f32", v(SP + 3), v(SP), v(SP + 1), v(SP + 2))
                k.valu(f"v_cmp_lt_f32 vcc, {sThr}, {v(SP + 3)}", wr=["vcc"], rd=[sThr, v(SP + 3)])
                k.s1("s_mov_b32", sRet, c)
                k.nop(4)
                k.salu(f"s_cbranch_vccnz K1_SLOW{sfx}")
                k.label(f"K1_RET{c}{sfx}")
                sites.append(c)
                k.fence()
        ops += [head, head2, check]

        def body(r):
            if r < 8:
                for qt in range(3):
                    x = sreg(qt, 0) + r
                    k.v1("v_exp_f32", v(x), v(x), trans=True)
            if r >= 1:
                rr = r - 1
                for qt in range(3):
                    b = sreg(qt, 0)
                    if c == 0 and rr == 0:
                        continue
                    if c == 0 and rr == 1:
                        k.v2("v_add_f32", v(LS[qt]), v(b), v(b + 1))
                    else:
                        k.v2("v_add_f32", v(LS[qt]), v(LS[qt]), v(b + rr))
                if rr % 2 == 1:
                    for qt in range(3):
                        b = sreg(qt, 0)
                        k.v2("v_cvt_pk_bf16_f32", v(preg(c) + qt * 4 + rr // 2), v(b + rr - 1), v(b + rr))
        for r in range(9):
            ops.append(lambda r=r: body(r))
        return ops

    def pv_mfma(c, half):
        cv = c - 8
        ops = []
        for j in range(4 * half, 4 * half + 4):
            for qt in range(3):
                def op(j=j, qt=qt):
                    if qt == 0:
                        k.wait_lg(("vf", j))
                    d = oreg(j, qt)
                    k.mfma(d, FR + j * 4, preg(cv) + qt * 4, d if cv else None)
                ops.append(op)
        return ops

    def wo_dma():
        k.s2("s_lshr_b32", sWoG, "s2", 1)
        k.s2("s_lshl_b32", sWoG, sWoG, 5)
        k.s2("s_lshl_b32", sT1, sW, 2)
        k.s2("s_add_u32", sWoG, sWoG, sT1)
        k.s2("s_mul_i32", sWoG, sWoG, 1280)
        k.s2("s_and_b32", sT2, "s2", 1)
        k.s2("s_mul_i32", sT2, sT2, 640)
        k.s2("s_add_u32", sWoG, sWoG, sT2)
        k.s2("s_mul_i32", sWoL, sW, 4 * 640)
        k.s2("s_add_u32", sWoL, sWoL, WOL)
        k.salu("s_mov_b32 exec_hi, 0xff")
        for i in range(4):
            k.s1("s_mov_b32", "m0", sWoL)
            k.vmem(f"buffer_load_dwordx4 {L16}, {sr(SWO, 4)}, {sWoG} offen lds", rd=[L16, sWoG], tag="wo", dma=True)
            k.s2("s_add_u32", sWoG, sWoG, 1280)
            k.s2("s_add_u32", sWoL, sWoL, 640)
        k.salu("s_mov_b32 exec_hi, -1")

    def wo_do():
        k.comment("wo re-layout: tr reads + stores")
        k.v3("v_bfe_u32", T0, LANE, 2, 2)
        k.v3("v_lshl_add_u32", T0, vG, 2, T0)
        k.v2("v_mul_u32_u24", T0, 640, T0)
        k.v2("v_and_b32", T1, 3, LANE)
        k.v3("v_lshl_add_u32", T0, T1, 3, T0)
        k.s2("s_lshl_b32", sT0, sW, 5)
        k.s2("s_add_u32", sT0, sT0, WOL)
        k.v2("v_add_u32", T0, sT0, T0)
        n = 3 if G == 0 else 2
        WD = 244
        for i in range(n):
            for u in range(2):
                d = WD + i * 4 + 2 * u
                k.ds(f"ds_read_b64_tr_b16 {vr(d, 2)}, {T0} offset:{u * 10240 + i * 256}",
                     wr=vs(d, 2), rd=[T0], tag="wor")
        k.s2("s_mul_i32", sT0, "s2", 20)
        k.s2("s_add_u32", sT0, sT0, sW)
        k.s2("s_lshl_b32", sT0, sT0, 10)
        k.s2("s_add_u32", sT0, sT0, WOT)
        k.wait_lg("wor")
        for i in range(n):
            k.vmem(f"buffer_store_dwordx4 {vr(WD + 4 * i, 4)}, {L16}, {sr(SWS, 4)}, {sT0} offen{STF}",
                   rd=vs(WD + 4 * i, 4) + [L16, sT0], tag="wost", store_data=vs(WD + 4 * i, 4))
            if i < n - 1:
                k.s2("s_add_u32", sT0, sT0, 8192)

    def signal(off_expr, SRD=None):
        SRD = SDBG if SRD is None else SRD
        k.salu(f"s_cmp_eq_u32 {sW}, 0")
        k.salu(f"s_cselect_b32 {sT2}, {off_expr}, 0x7f000000", wr=[sT2])
        k.v1("v_mov_b32", T0, 1)
        k.v1("v_mov_b32", T1, 0)
        k.salu("s_mov_b64 exec, 1")
        k.vmem(f"buffer_atomic_add {T0}, {T1}, {sr(SRD, 4)}, {sT2} offen sc1", rd=[T0, T1, sT2], tag="sig")
        k.salu("s_mov_b64 exec, -1")
        k.nop(2)

    def stage_out(n):
        k.wait_vm(("kv", n))
        k.s2("s_add_u32", sT2, sM0K, (n % 4) * 16384)
        k.v2("v_add_u32", T3, sT2, L16)
        for i in range(4):
            d = STG + 16 * (n - 2) + 4 * i
            k.ds(f"ds_write_b128 {T3}, {vr(d, 4)} offset:{i * 1024}", rd=[T3] + vs(d, 4), tag="stg")

    def mem_work(c):
        so, dm = [], []
        if c == 0:
            return so, dm
        todo = [2, 3, 4] if c == 1 else [c + 3]
        for n in todo:
            if n >= 16:
                continue
            if n < 2 + NSTG:
                so.append(lambda n=n: stage_out(n))
            else:
                dm += dma_kv(n)
        if c == WO_DMA_AT:
            dm.append(wo_dma)
        return so, dm

    WO_DMA_AT = opt.get("wodma", 4)
    WO_DO_AT = opt.get("wodo", 7)
    WCHK = opt.get("wchk", 15)

    def sync(c):
        if c < 16 and not (2 <= c < 2 + NSTG):
            k.wait_vm(("kv", c))
        if c == WO_DO_AT:
            k.wait_vm("wo")
        if c == WO_DO_AT + 2:
            k.wait_vm("wost")
        if c == WCHK and G == 0:
            k.wait_vm("wp")
            k.valu(f"v_readfirstlane_b32 {sT2}, {T2}", wr=[sT2], rd=[T2], lane=True)
            k.s1("s_mov_b32", sT1, 0)
            k.salu(f"s_cmp_ge_u32 {sT2}, 256", rd=[sT2])
            k.salu(f"s_cbranch_scc1 K1_WOK{sfx}")
            k.label(f"K1_WSPIN{sfx}")
            k._emit("s_sleep 8")
            k._emit(f"buffer_load_dword {T2}, {T3}, {sr(SDBG, 4)}, 0 offen offset:64 sc1")
            k._emit("s_waitcnt vmcnt(0)")
            k._emit(f"v_readfirstlane_b32 {sT2}, {T2}")
            k._emit(f"s_add_u32 {sT1}, {sT1}, 1")
            k._emit(f"s_cmp_ge_u32 {sT1}, 0x40000")
            k._emit(f"s_cbranch_scc1 K1_WOK{sfx}")
            k._emit(f"s_cmp_lt_u32 {sT2}, 256")
            k._emit(f"s_cbranch_scc1 K1_WSPIN{sfx}")
            k.label(f"K1_WOK{sfx}")
        k.wait_lg0()
        k.barrier()
        k.stamp()
        if c == WO_DO_AT + 2 and G == 0:
            signal(64)
        if c == WCHK - 2 and G == 0:
            k.v1("v_mov_b32", T3, 0)
            k.vmem(f"buffer_load_dword {T2}, {T3}, {sr(SDBG, 4)}, 0 offen offset:64 sc1", wr=[T2], rd=[T3], tag="wp")

    for c in range(17):
        k.comment(f"---- interval {c}")
        if c < 16:
            sync(c)
        so, dm = mem_work(c)
        if c == 0:
            for ds_ in range(4):
                for qt in range(3):
                    d = QF + (qt * 4 + ds_) * 4
                    k.ds(f"ds_read_b128 {vr(d, 4)}, {v(QR)} offset:{(qt * 4 + ds_) * 1024}",
                         wr=vs(d, 4), rd=[v(QR)], tag="qr")
            run(k_reads(0))
            if G == 0:
                run(s_mfma(0))
        elif c <= 8:
            rds = k_reads(c) if c < 8 else v_reads(8, 0)
            if G == 1:
                weave(s_mfma(c - 1), (so, 2, 6, 1))
            else:
                run(so)
            weave(softmax(c - 1), (rds, 0, 1, 2), (dm, 3, 2, 1))
            if c < 8:
                if G == 0:
                    run(s_mfma(c))
            else:
                weave(pv_mfma(8, 0), (v_reads(8, 1), 0, 1, 1))
        elif c < 16:
            weave(pv_mfma(c - 1, 1), (v_reads(c, 0), 0, 1, 1), (dm if G == 0 else [], 1, 3, 1))
            weave(pv_mfma(c, 0), (v_reads(c, 1), 0, 1, 1), (dm if G == 1 else [], 1, 3, 1))
        else:
            run(pv_mfma(15, 1))
        if c == WO_DO_AT:
            wo_do()
    k.stamp()
    xlane3("v_add_f32", LS, [FR, FR + 1, FR + 2])
    k.s2("s_lshl_b32", sT0, sW, 9)
    k.s2("s_add_u32", sT0, sT0, STAT)
    k.v3("v_lshl_add_u32", T0, vQ, 5, sT0)
    k.ds(f"ds_write_b128 {T0}, {vr(ST, 4)}", rd=[T0] + vs(ST, 4), tag="mw")
    k.ds(f"ds_write_b64 {T0}, {vr(ST + 4, 2)} offset:16", rd=[T0] + vs(ST + 4, 2), tag="mw")
    k.s2("s_mul_i32", sT0, sWl, 12288)
    k.s2("s_add_u32", sT0, sT0, sRing)
    k.v2("v_add_u32", T1, sT0, L16)
    for j in range(4):
        for qt in range(3):
            d = oreg(4 + j, qt)
            k.ds(f"ds_write_b128 {T1}, {vr(d, 4)} offset:{(j * 3 + qt) * 1024}", rd=[T1] + vs(d, 4), tag="mw")
    k.wait_lg0()
    k.barrier()
    k.v2("v_xor_b32", T0, 1024, T0)
    k.s2("s_xor_b32", sT1, sWl, 2)
    k.s2("s_mul_i32", sT0, sT1, 12288)
    k.s2("s_add_u32", sT0, sT0, sRing)
    k.v2("v_add_u32", T1, sT0, L16)
    PS = FR
    k.ds(f"ds_read_b128 {vr(PS, 4)}, {T0}", wr=vs(PS, 4), rd=[T0], tag="ps")
    k.ds(f"ds_read_b64 {vr(PS + 4, 2)}, {T0} offset:16", wr=vs(PS + 4, 2), rd=[T0], tag="ps")
    PO = 160
    for j in range(4):
        for qt in range(3):
            d = PO + (j * 3 + qt) * 4
            k.ds(f"ds_read_b128 {vr(d, 4)}, {T1} offset:{(j * 3 + qt) * 1024}", wr=vs(d, 4), rd=[T1], tag=("po", j))
    k.wait_lg("ps")
    FO = [FR + 8, FR + 9, FR + 10]
    FP = [FR + 12, FR + 13, FR + 14]
    MM = [FR + 16, FR + 17, FR + 18]
    R3 = range(3)
    for qt in R3:
        k.v2("v_max_f32", v(MM[qt]), v(MC[qt]), v(PS + qt))
    for qt in R3:
        k.v2("v_sub_f32", v(FO[qt]), v(MC[qt]), v(MM[qt]))
        k.v2("v_sub_f32", v(FP[qt]), v(PS + qt), v(MM[qt]))
    for qt in R3:
        k.v1("v_exp_f32", v(FO[qt]), v(FO[qt]), trans=True)
        k.v1("v_exp_f32", v(FP[qt]), v(FP[qt]), trans=True)
    for qt in R3:
        k.v2("v_mul_f32", v(MM[qt]), v(FO[qt]), v(LS[qt]))
    for qt in R3:
        k.v3("v_fma_f32", v(MM[qt]), v(FP[qt]), v(PS + 3 + qt), v(MM[qt]))
    for qt in R3:
        k.v1("v_rcp_f32", v(MM[qt]), v(MM[qt]), trans=True)
    for qt in R3:
        k.v2("v_mul_f32", v(FO[qt]), v(FO[qt]), v(MM[qt]))
        k.v2("v_mul_f32", v(FP[qt]), v(FP[qt]), v(MM[qt]))
    k.s2("s_lshl_b32", sT0, sB, 1)
    k.s2("s_add_u32", sT0, sT0, sQh)
    k.s2("s_lshl_b32", sT0, sT0, 7)
    k.s2("s_lshl_b32", sT1, sHead, 2)
    k.s2("s_add_u32", sT0, sT0, sT1)
    k.s2("s_lshl_b32", sT1, sKh, 1)
    k.s2("s_add_u32", sT0, sT0, sT1)
    k.s2("s_mul_i32", sT0, sT0, 3072)
    if OWS:
        k.s2("s_add_u32", sT0, sT0, OWS)
    k.s2("s_add_u32", sT1, sT0, 3072)
    OD = 208
    for jj in range(2):
        for e in range(2):
            j = 2 * jj + e
            k.wait_lg(("po", j))
            for qt in range(3):
                d = oreg(j, qt)
                p = PO + (j * 3 + qt) * 4
                for r in range(4):
                    k.v2("v_mul_f32", v(d + r), v(d + r), v(FO[qt]))
                for r in range(4):
                    k.valu(f"v_fmac_f32 {v(d + r)}, {v(p + r)}, {v(FP[qt])}", wr=[v(d + r)],
                           rd=[v(d + r), v(p + r), v(FP[qt])])
                od = OD + (jj * 3 + qt) * 4 + 2 * e
                k.v2("v_cvt_pk_bf16_f32", v(od), v(d), v(d + 1))
                k.v2("v_cvt_pk_bf16_f32", v(od + 1), v(d + 2), v(d + 3))
        for qt in range(3):
            od = OD + (jj * 3 + qt) * 4
            so = sT1 if jj else sT0
            k.vmem(f"buffer_store_dwordx4 {vr(od, 4)}, {L16}, {sr(SWS, 4)}, {so} offen offset:{qt * 1024}{STF}",
                   rd=vs(od, 4) + [L16, so], tag="ost", store_data=vs(od, 4))
    k.salu("s_branch K1_TAIL")
    mark_tail = len(k.lines)
    k.label("K1_TAIL")
    k.wait_vm0()
    k.wait_lg0(force=True)
    k.barrier()
    k.stamp()
    sRb, sCb, sA, sBo, sCnt = "s49", "s50", "s51", "s52", "s53"
    k.s2("s_lshl_b32", sT1, sB, 12)
    k.s2("s_add_u32", sT1, sT1, FLG)
    signal(sT1, SWS)
    k.s2("s_and_b32", sT0, "s2", 7)
    k.s2("s_lshr_b32", sT1, "s2", 3)
    k.s2("s_lshr_b32", sRb, sT0, 1)
    k.s2("s_lshl_b32", sRb, sRb, 3)
    k.s2("s_lshr_b32", sT2, sT1, 2)
    k.s2("s_add_u32", sRb, sRb, sT2)
    k.s2("s_and_b32", sCb, sT0, 1)
    k.s2("s_lshl_b32", sCb, sCb, 2)
    k.s2("s_and_b32", sT2, sT1, 3)
    k.s2("s_add_u32", sCb, sCb, sT2)
    k.s2("s_lshl_b32", sA, sRb, 7)
    k.s2("s_add_u32", sA, sA, sW)
    k.s2("s_mul_i32", sA, sA, 3072)
    if OWS:
        k.s2("s_add_u32", sA, sA, OWS)
    k.s2("s_mul_i32", sBo, sW, 40)
    k.s2("s_mul_i32", sT0, sCb, 5)
    k.s2("s_add_u32", sBo, sBo, sT0)
    k.s2("s_lshl_b32", sBo, sBo, 10)
    k.s2("s_add_u32", sBo, sBo, WOT)
    L16B = "v8"
    k.v2("v_add_u32", L16B, 4096, L16)

    def poll(off, target, name):
        k.salu(f"s_cmp_lg_u32 {sW}, 0")
        k.salu(f"s_cbranch_scc1 K1_PD{name}")
        k.s1("s_mov_b32", sCnt, 0)
        k.v1("v_mov_b32", T1, 0)
        k.label(f"K1_PL{name}")
        k._emit(f"buffer_load_dword {T0}, {T1}, {sr(SWS, 4)}, {off} offen sc1")
        k._emit("s_waitcnt vmcnt(0)")
        k._emit(f"v_readfirstlane_b32 {sT2}, {T0}")
        k._emit(f"s_add_u32 {sCnt}, {sCnt}, 1")
        k._emit(f"s_cmp_ge_u32 {sCnt}, 0x40000")
        k._emit(f"s_cbranch_scc1 K1_PD{name}")
        k._emit(f"s_cmp_ge_u32 {sT2}, {target}")
        k._emit(f"s_cbranch_scc1 K1_PD{name}")
        k._emit(f"s_sleep {opt.get('slp', 4)}")
        k._emit(f"s_branch K1_PL{name}")
        k.label(f"K1_PD{name}")
        k.barrier()

    NB = opt.get("nb", 7)
    NA = opt.get("na", 3)
    OACC = 12
    BB = 72
    AB = BB + 20 * NB
    assert AB + 12 * NA <= 256

    def loadB(j):
        b = BB + (j % NB) * 20
        ops = []
        for nt in range(5):
            def op(nt=nt):
                d = b + 4 * nt
                if nt < 4:
                    k.vmem(f"buffer_load_dwordx4 {vr(d, 4)}, {L16}, {sr(SWS, 4)}, {sBo} offen offset:{nt * 1024} sc1",
                           wr=vs(d, 4), rd=[L16, sBo], tag=("b", j, nt))
                else:
                    k.vmem(f"buffer_load_dwordx4 {vr(d, 4)}, {L16B}, {sr(SWS, 4)}, {sBo} offen sc1",
                           wr=vs(d, 4), rd=[L16B, sBo], tag=("b", j, nt))
                    k.s2("s_add_u32", sBo, sBo, 8 * 40960)
            ops.append(op)
        return ops

    def loadA(j):
        a = AB + (j % NA) * 12
        ops = []
        for mt in range(3):
            def op(mt=mt):
                k.vmem(f"buffer_load_dwordx4 {vr(a + 4 * mt, 4)}, {L16}, {sr(SWS, 4)}, {sA} offen offset:{mt * 1024} sc1",
                       wr=vs(a + 4 * mt, 4), rd=[L16, sA], tag=("a", j))
                if mt == 2:
                    k.s2("s_add_u32", sA, sA, 8 * 3072)
            ops.append(op)
        return ops

    for j in range(NB):
        run(loadB(j))
    k.s2("s_lshr_b32", sT0, sRb, 1)
    k.s2("s_lshl_b32", sT0, sT0, 12)
    k.s2("s_add_u32", sT0, sT0, FLG)
    poll(sT0, 16, "O")
    k.stamp()
    for j in range(NA):
        run(loadA(j))
    for j in range(16):
        a = AB + (j % NA) * 12
        b = BB + (j % NB) * 20
        k.wait_vm(("a", j))
        k.wait_vm(("b", j, 4))
        for nt in range(5):
            for mt in range(3):
                d = OACC + (nt * 3 + mt) * 4
                k.mfma(d, b + 4 * nt, a + 4 * mt, d if j else None)
        if j + NA < 16:
            run(loadA(j + NA))
        if j + NB < 16:
            run(loadB(j + NB))
        if j in (3, 7, 11):
            k.stamp()
    k.stamp()
    k.s2("s_mul_i32", sT0, sW, 15360)
    k.v2("v_add_u32", T0, sT0, L16)
    for t in range(15):
        k.ds(f"ds_write_b128 {T0}, {vr(OACC + 4 * t, 4)} offset:{t * 1024}", rd=[T0] + vs(OACC + 4 * t, 4), tag="w")
    k.wait_lg0()
    k.barrier()
    k.s2("s_lshl_b32", sT0, sW, 10)
    k.v2("v_add_u32", T0, sT0, L16)
    k.v2("v_add_u32", T1, 4 * 15360, T0)
    RB = 72
    for i in range(2):
        for s_ in range(8):
            d = RB + (i * 8 + s_) * 4
            a_, o_ = (T0, s_ * 15360 + i * 8192) if s_ < 4 else (T1, (s_ - 4) * 15360 + i * 8192)
            k.ds(f"ds_read_b128 {vr(d, 4)}, {a_} offset:{o_}", wr=vs(d, 4), rd=[a_], tag=("r", i))
    k.v2("v_mul_u32_u24", T2, 1280, vQ)
    k.v3("v_lshl_add_u32", T2, vG, 3, T2)
    for i in range(2):
        k.s2("s_add_u32", sT0, sW, 8 * i)
        k.s2("s_mul_i32", sT1, sT0, 11)
        k.s2("s_lshr_b32", sT1, sT1, 5)
        k.s2("s_mul_i32", sT2, sT1, 3)
        k.s2("s_sub_u32", sT2, sT0, sT2)
        k.s2("s_mul_i32", sA, sRb, 48)
        k.s2("s_lshl_b32", sT2, sT2, 4)
        k.s2("s_add_u32", sA, sA, sT2)
        k.s2("s_mul_i32", sA, sA, 1280)
        k.s2("s_mul_i32", sBo, sCb, 160)
        k.s2("s_add_u32", sA, sA, sBo)
        k.s2("s_lshl_b32", sT1, sT1, 5)
        k.s2("s_add_u32", sA, sA, sT1)
        if i == 1:
            k.salu(f"s_cmp_lt_u32 {sW}, 7")
            k.salu(f"s_cselect_b32 {sA}, {sA}, 0x7f000000", wr=[sA])
        k.wait_lg(("r", i))
        d = RB + i * 32
        for step in (16, 8, 4):
            for o in range(0, step):
                k.v2("v_add_f32", v(d + o), v(d + o), v(d + o + step))
        k.v2("v_cvt_pk_bf16_f32", v(d + 4), v(d), v(d + 1))
        k.v2("v_cvt_pk_bf16_f32", v(d + 5), v(d + 2), v(d + 3))
        k.vmem(f"buffer_store_dwordx2 {vr(d + 4, 2)}, {T2}, {sr(SOUT, 4)}, {sA} offen",
               rd=vs(d + 4, 2) + [T2, sA], tag="st")
    if opt.get("ts"):
        k.wait_vm0()
    k.flush_stamps(SWS, sW, TSBASE, 8)
    k.salu("s_endpgm")
    k.tail = k.lines[mark_tail:]
    del k.lines[mark_tail:]

    k.label(f"K1_SLOW{sfx}")
    k.nop(8)
    D = [SP, SP + 1, SP + 2]
    F = [SP + 4, SP + 5, SP + 6]
    xlane3("v_max_f32", D, [SP + 8, SP + 9, SP + 10])
    for qt in range(3):
        k.v1("v_ceil_f32", v(D[qt]), v(D[qt]))
        k.v2("v_max_f32", v(D[qt]), 0, v(D[qt]))
        k.v2("v_add_f32", v(MC[qt]), v(MC[qt]), v(D[qt]))
        for r in range(8):
            x = sreg(qt, 0) + r
            k.v2("v_sub_f32", v(x), v(x), v(D[qt]))
        k.v2("v_sub_f32", v(F[qt]), 0, v(D[qt]))
        k.v1("v_exp_f32", v(F[qt]), v(F[qt]), trans=True)
        k.v2("v_mul_f32", v(LS[qt]), v(LS[qt]), v(F[qt]))
    for cc in range(7):
        if cc > 0:
            k.salu(f"s_cmp_le_u32 {sRet}, {cc}")
            k.salu(f"s_cbranch_scc1 K1_SLOW_DONE{sfx}")
        for qt in range(3):
            for r in range(4):
                x = preg(cc) + qt * 4 + r
                a, b = SP + 8, SP + 9
                k.v2("v_lshlrev_b32", v(a), 16, v(x))
                k.v2("v_and_b32", v(b), "0xffff0000", v(x))
                k.v2("v_mul_f32", v(a), v(a), v(F[qt]))
                k.v2("v_mul_f32", v(b), v(b), v(F[qt]))
                k.v2("v_cvt_pk_bf16_f32", v(x), v(a), v(b))
    k.label(f"K1_SLOW_DONE{sfx}")
    k.nop(4)
    for c in sites[:-1]:
        k.salu(f"s_cmp_eq_u32 {sRet}, {c}")
        k.salu(f"s_cbranch_scc1 K1_RET{c}{sfx}")
    k.salu(f"s_branch K1_RET{sites[-1]}{sfx}")
    return k, split


def k1_text(opt):
    ncls = opt.get("ncls", 1)
    parts = {}
    for cls in range(ncls):
        for g in range(2):
            parts[(g, cls)] = gen_k1(opt, g, cls)
    k0, split = parts[(0, 0)]
    lines = k0.lines[:split]
    if ncls == 2:
        lines += [f"    s_bfe_u32 s56, s2, {hex(0x10000 + opt.get('clsbit', 3))}",
                  "    s_cmp_eq_u32 s56, 1", "    s_cbranch_scc1 K1_CLS1"]
    for cls in range(ncls):
        if cls:
            lines.append("K1_CLS1:")
        lines += ["    s_cmp_eq_u32 s49, 1", f"    s_cbranch_scc1 K1_G1_{cls}"]
        lines += parts[(0, cls)][0].lines[split:]
        lines.append(f"K1_G1_{cls}:")
        lines += parts[(1, cls)][0].lines[split:]
    lines += k0.tail
    lines += ["K1_END:", "    s_endpgm", "K1_CODE_END:"]
    return "\n".join(lines) + "\n", k0


def build(opt):
    t1, k1 = k1_text(opt)
    name = NAME + "_kernel"
    out = HEADER
    out += "; @launch grid=(256,1,1) block=(512,1,1) lds=163840\n"
    out += '.amdgcn_target "amdgcn-amd-amdhsa--gfx950"\n.text\n'
    out += f".globl {name}\n.p2align 8\n.type {name},@function\n{name}:\n" + t1
    out += '.section .rodata,"a"\n.p2align 6\n'
    out += kd(name, 256, 102)
    return out, k1, k1


if __name__ == "__main__":
    opt = {}
    path = sys.argv[1] if len(sys.argv) > 1 else f"cdna_kernels/{NAME}.s"
    for a in sys.argv[2:]:
        kk, vv = a.split("=")
        opt[kk] = float(vv) if "." in vv else int(vv)
    txt, k1, k2 = build(opt)
    open(path, "w").write(txt)
    print("wrote", path, len(txt), "bytes; k1 slots", k1.slot, "k2 slots", k2.slot, "stamps", k1.nstamp, k2.nstamp)
```

```python
def vr(a, n=1):
    return f"v{a}" if n == 1 else f"v[{a}:{a + n - 1}]"


def sr(a, n=1):
    return f"s{a}" if n == 1 else f"s[{a}:{a + n - 1}]"


def vs(a, n=1):
    return [f"v{i}" for i in range(a, a + n)]


def ss(a, n=1):
    return [f"s{i}" for i in range(a, a + n)]


class Kern:
    def __init__(self):
        self.lines = []
        self.slot = 0
        self.valu_w = {}
        self.trans_w = {}
        self.mfma_w = {}
        self.mfma_c = {}
        self.salu_m0 = -100
        self.store_d = {}
        self.vmq = []
        self.lgq = []
        self.nlabel = 0
        self.stats = {}

    def comment(self, t):
        self.lines.append(f"    ; {t}")

    def label(self, name):
        self.lines.append(f"{name}:")

    def newlabel(self, p="L"):
        self.nlabel += 1
        return f"{p}_{self.nlabel}"

    def _emit(self, text, slots=1):
        self.lines.append("    " + text)
        self.slot += slots
        op = text.split()[0]
        self.stats[op] = self.stats.get(op, 0) + 1

    def nop(self, n):
        while n > 0:
            k = min(n, 16)
            self._emit(f"s_nop {k - 1}", k)
            n -= k

    def _need(self, prod_slot, ws):
        return max(0, ws - (self.slot - prod_slot - 1))

    def fence(self, n=20):
        need = 0
        for r, s in self.valu_w.items():
            need = max(need, self._need(s, 5))
        for r, (s, p, b, k) in self.mfma_w.items():
            need = max(need, self._need(s, 8 if p == 4 else 12))
        for r, (s, p) in self.mfma_c.items():
            need = max(need, self._need(s, 3 if p == 4 else 7))
        for r, s in self.store_d.items():
            need = max(need, self._need(s, 2))
        need = max(need, self._need(self.salu_m0, 1))
        self.nop(need)

    def salu(self, text, wr=(), rd=()):
        need = 0
        for r in rd:
            if r in self.valu_w and r.startswith("s"):
                need = max(need, self._need(self.valu_w[r], 1))
        self.nop(need)
        if "m0" in wr:
            self.salu_m0 = self.slot
        for r in wr:
            self.valu_w.pop(r, None)
        self._emit(text)

    def valu(self, text, wr=(), rd=(), trans=False, perm=False, lane=False):
        need = 0
        for r in rd:
            if r.startswith("v"):
                if r in self.mfma_w:
                    s, p, _, _ = self.mfma_w[r]
                    need = max(need, self._need(s, 8 if p == 4 else 12))
                if r in self.trans_w and not trans:
                    need = max(need, self._need(self.trans_w[r], 1))
                if perm and r in self.valu_w:
                    need = max(need, self._need(self.valu_w[r], 2))
                if lane and r in self.valu_w:
                    need = max(need, self._need(self.valu_w[r], 1))
            else:
                if r in self.valu_w:
                    need = max(need, self._need(self.valu_w[r], 2))
        for r in wr:
            if r in self.mfma_w:
                s, p, _, _ = self.mfma_w[r]
                need = max(need, self._need(s, 8 if p == 4 else 12))
            if r in self.mfma_c:
                s, p = self.mfma_c[r]
                need = max(need, self._need(s, 3 if p == 4 else 7))
            if r in self.store_d:
                need = max(need, self._need(self.store_d[r], 2))
        self.nop(need)
        for r in wr:
            self.valu_w[r] = self.slot
            self.mfma_w.pop(r, None)
            if trans:
                self.trans_w[r] = self.slot
            else:
                self.trans_w.pop(r, None)
        self._emit(text)

    def mfma(self, d, a, b, c=None, shape="16x16x32"):
        nd = 4 if shape == "16x16x32" else 16
        p = 4 if shape == "16x16x32" else 8
        need = 0
        for r in vs(a, 4) + vs(b, 4):
            if r in self.valu_w:
                need = max(need, self._need(self.valu_w[r], 2))
            if r in self.mfma_w:
                s, pp, _, _ = self.mfma_w[r]
                need = max(need, self._need(s, 8 if pp == 4 else 12))
        if c is not None:
            for r in vs(c, nd):
                if r in self.valu_w:
                    need = max(need, self._need(self.valu_w[r], 2))
                if r in self.mfma_w:
                    s, pp, bb, nn = self.mfma_w[r]
                    if not (bb == c and nn == nd and pp == p):
                        need = max(need, self._need(s, 6 if pp == 4 else 10))
        for r in vs(d, nd):
            if r in self.mfma_w:
                s, pp, bb, nn = self.mfma_w[r]
                if not (bb == d and nn == nd and pp == p) :
                    need = max(need, self._need(s, 6 if pp == 4 else 10))
            if r in self.store_d:
                need = max(need, self._need(self.store_d[r], 2))
        self.nop(need)
        for r in vs(d, nd):
            self.mfma_w[r] = (self.slot, p, d, nd)
            self.valu_w.pop(r, None)
            self.trans_w.pop(r, None)
        if c is not None:
            for r in vs(c, nd):
                self.mfma_c[r] = (self.slot, p)
        ctext = vr(c, nd) if c is not None else "0"
        self._emit(f"v_mfma_f32_{shape}_bf16 {vr(d, nd)}, {vr(a, 4)}, {vr(b, 4)}, {ctext}")

    def _mem_need(self, wr, rd):
        need = 0
        for r in list(rd) + list(wr):
            if r in self.mfma_w:
                s, p, _, _ = self.mfma_w[r]
                need = max(need, self._need(s, 8 if p == 4 else 12))
        for r in wr:
            if r in self.store_d:
                need = max(need, self._need(self.store_d[r], 1))
        for r in rd:
            if r.startswith("s") and r in self.valu_w:
                need = max(need, self._need(self.valu_w[r], 5))
            if r.startswith("v") and r in self.trans_w:
                need = max(need, self._need(self.trans_w[r], 1))
        return need

    def ds(self, text, wr=(), rd=(), tag=None):
        self.nop(self._mem_need(wr, rd))
        for r in wr:
            self.valu_w.pop(r, None)
            self.mfma_w.pop(r, None)
            self.trans_w.pop(r, None)
        self.lgq.append(tag)
        self._emit(text)

    def vmem(self, text, wr=(), rd=(), tag=None, dma=False, store_data=()):
        need = self._mem_need(wr, rd)
        if dma:
            need = max(need, self._need(self.salu_m0, 1))
        self.nop(need)
        for r in wr:
            self.valu_w.pop(r, None)
            self.mfma_w.pop(r, None)
            self.trans_w.pop(r, None)
        for r in store_data:
            self.store_d[r] = self.slot
        is_store = ("store" in text.split()[0]) or ("atomic" in text.split()[0])
        self.vmq.append((tag, is_store))
        self._emit(text)

    def wait_vm(self, tag):
        idx = [i for i, (t, st) in enumerate(self.vmq) if t == tag]
        if not idx:
            return
        if self.vmq[idx[-1]][1]:
            self.wait_vm0()
            return
        n = sum(1 for (t, st) in self.vmq[idx[-1] + 1:] if not st)
        assert n <= 63, n
        self.vmq = [e for e in self.vmq[:idx[-1] + 1] if e[1]] + self.vmq[idx[-1] + 1:]
        self._emit(f"s_waitcnt vmcnt({n})")

    def wait_vm0(self):
        self.vmq = []
        self._emit("s_waitcnt vmcnt(0)")

    def wait_lg(self, tag):
        idx = [i for i, t in enumerate(self.lgq) if t == tag]
        if not idx:
            return
        n = len(self.lgq) - 1 - idx[-1]
        n = min(n, 15)
        self.lgq = self.lgq[len(self.lgq) - n:] if n else []
        self._emit(f"s_waitcnt lgkmcnt({n})")

    def wait_lg0(self, force=False):
        if self.lgq or force:
            self.lgq = []
            self._emit("s_waitcnt lgkmcnt(0)")

    def barrier(self):
        self._emit("s_barrier")

    def v2(self, op, d, a, b):
        rd = [x for x in (a, b) if isinstance(x, str) and x[0] in "vs" and x[1:].isdigit()]
        self.valu(f"{op} {d}, {a}, {b}", wr=[d], rd=rd)

    def v3(self, op, d, a, b, c):
        rd = []
        for x in (a, b, c):
            if isinstance(x, str):
                y = x.lstrip("-")
                if y[0] in "vs" and y[1:].isdigit():
                    rd.append(y)
        self.valu(f"{op} {d}, {a}, {b}, {c}", wr=[d], rd=rd)

    def v1(self, op, d, a, trans=False):
        rd = [a] if isinstance(a, str) and a[0] in "vs" and a[1:].isdigit() else []
        self.valu(f"{op} {d}, {a}", wr=[d], rd=rd, trans=trans)

    def s2(self, op, d, a, b):
        rd = [x for x in (a, b) if isinstance(x, str) and x[0] == "s" and x[1:].isdigit()]
        self.salu(f"{op} {d}, {a}, {b}", wr=[d], rd=rd)

    def s1(self, op, d, a):
        rd = [a] if isinstance(a, str) and a[0] == "s" and a[1:].isdigit() else []
        self.salu(f"{op} {d}, {a}", wr=[d], rd=rd)

    def text(self):
        return "\n".join(self.lines) + "\n"
```

```python
import sys
from dsl import Kern, vr, sr, vs, ss
from gen1 import (NAME, X_BYTES, KV_BYTES, W_BYTES, OUT_BYTES, WS_BYTES, OWS, WOT, CSCALE, TSBASE,
                  f32bits, build_srd, add_stamps, code_touch, HEADER, kd)

THRESH = 10.0
FLG = 24 << 20
WFL = 25 << 20
OOB = "0x7f000000"


def v(i):
    return f"v{i}"


def gen(opt, G):
    k = Kern()
    add_stamps(k, opt)
    sfx = f"_{G}"
    NT = " nt" if opt.get("nt", 1) else ""
    SX, SK, SV, SWQ, SWO, SWS, SOUT, SDBG = 4, 8, 12, 16, 20, 24, 32, 36
    sW, sGrp, sQh, sKh, sWl, sHp, sB = "s48", "s49", "s50", "s51", "s52", "s53", "s54"
    sKV, sT0, sT1, sT2, sC, sRing, sM0K, sM0W, sM0X, sOff = (
        "s55", "s56", "s57", "s58", "s59", "s60", "s61", "s62", "s63", "s64")
    sWqOff, sXOff, sHead, sRet, sThr = "s65", "s66", "s67", "s28", "s29"
    sKW, sKX = "s3", "s47"
    sRb, sCb, sA, sBo, sFl = "s40", "s41", "s42", "s43", "s44"
    XS0 = 131072
    STAT = 155648

    k.salu("s_cmp_ge_u32 s2, 256")
    k.salu("s_cbranch_scc1 K1_END")
    k.salu("s_load_dwordx16 s[32:47], s[0:1], 0")
    code_touch(k, "K1", "K1_CODE_END", "v0", "v2", "v31", 512)
    k.v2("v_lshrrev_b32", "v1", 6, "v0")
    k.v2("v_and_b32", "v0", 63, "v0")
    k.valu(f"v_readfirstlane_b32 {sW}, v1", wr=[sW], rd=["v1"], lane=True)
    k.s2("s_and_b32", sT0, "s2", 7)
    k.s2("s_lshr_b32", sT1, "s2", 3)
    k.s2("s_and_b32", sHp, sT0, 3)
    k.s2("s_lshl_b32", sHp, sHp, 2)
    k.s2("s_and_b32", sT2, sT1, 3)
    k.s2("s_add_u32", sHp, sHp, sT2)
    k.s2("s_mul_i32", sKW, sT2, 10)
    k.s2("s_lshr_b32", sT2, sT1, 2)
    k.s2("s_mul_i32", sOff, sT2, 5)
    k.s2("s_add_u32", sKW, sKW, sOff)
    k.s2("s_lshr_b32", sKW, sKW, 2)
    k.s2("s_sub_u32", sOff, sKW, 10)
    k.salu(f"s_cmp_ge_u32 {sKW}, 10")
    k.salu(f"s_cselect_b32 {sKW}, {sOff}, {sKW}", wr=[sKW])
    k.s2("s_lshr_b32", sB, sT0, 2)
    k.s2("s_lshl_b32", sB, sB, 3)
    k.s2("s_add_u32", sB, sB, sT2)
    k.s2("s_lshr_b32", sGrp, sW, 2)
    k.s2("s_and_b32", sQh, sW, 1)
    k.s2("s_bfe_u32", sKh, sW, "0x10001")
    k.s2("s_and_b32", sWl, sW, 3)
    k.s2("s_lshl_b32", sHead, sHp, 1)
    k.s2("s_add_u32", sHead, sHead, sGrp)
    k.s2("s_lshl_b32", sT0, sB, 5)
    k.s2("s_add_u32", sT0, sT0, sHead)
    k.s2("s_lshl_b32", sKV, sT0, 17)
    k.s2("s_lshl_b32", sT1, sWl, 12)
    k.s2("s_add_u32", sKV, sKV, sT1)
    k.s2("s_lshl_b32", sRing, sGrp, 16)
    k.s2("s_add_u32", sM0K, sRing, sT1)
    k.s2("s_lshl_b32", sM0W, sW, 11)
    k.s2("s_add_u32", sM0W, sM0W, 32768)
    k.s2("s_mul_i32", sM0X, sW, 1536)
    k.s2("s_add_u32", sM0X, sM0X, XS0)
    k.s1("s_mov_b32", sC, hex(f32bits(CSCALE)))
    k.s1("s_mov_b32", sThr, hex(f32bits(opt.get("thr", THRESH))))

    LANE = "v0"
    T0, T1, T2, T3 = "v1", "v2", "v3", "v4"
    vG, vQ, L16 = "v5", "v6", "v7"
    KD = [8, 9, 10, 11]
    KR = [12, 13, 14, 15]
    VD = [16, 17]
    ST = 18
    MC = [18, 19, 20]
    LS = [21, 22, 23]
    VR = [24, 25, 26, 27, 28, 29, 30, 31]
    FR, QF, S0, SP = 32, 64, 112, 136
    ACC = 64
    QA = [32, 112]
    WQD = [24, 25]
    XD = [26, 27]
    WQR = [28, 29, 30, 60]
    XR = [18, 19]
    QW, QR = 20, 21
    STG = 160

    def preg(c):
        return 148 if c == 0 else 160 + 12 * (c - 1)

    def oreg(j, qt):
        o = j * 3 + qt
        return QF + 4 * o if o < 21 else 244 + 4 * (o - 21)

    k.v2("v_lshrrev_b32", vG, 4, LANE)
    k.v2("v_and_b32", vQ, 15, LANE)
    k.v2("v_lshlrev_b32", L16, 4, LANE)
    k.v2("v_lshrrev_b32", T0, 5, LANE)
    k.s2("s_lshl_b32", sT0, sKh, 2)
    k.v2("v_add_u32", T1, sT0, T0)
    k.s2("s_lshl_b32", sT0, sW, 2)
    k.v2("v_add_u32", T0, sT0, T0)
    k.v2("v_lshlrev_b32", T0, 13, T0)
    k.s2("s_lshl_b32", sT0, sHp, 9)
    k.v2("v_add_u32", T0, sT0, T0)
    k.v3("v_bfe_u32", T2, LANE, 4, 1)
    k.v3("v_lshl_add_u32", T0, T2, 8, T0)
    for i in range(2):
        k.v2("v_add_u32", T2, 2 * i, T1)
        k.v2("v_lshlrev_b32", T2, 1, T2)
        k.v2("v_xor_b32", T2, T2, vQ)
        k.v3("v_lshl_add_u32", v(WQD[i]), T2, 4, T0)
        if i:
            k.v2("v_add_u32", v(WQD[i]), 2 * 8192 - 1024, v(WQD[i]))
    k.s2("s_mul_i32", sT0, sW, 12)
    k.v2("v_lshrrev_b32", T0, 3, LANE)
    k.v2("v_add_u32", T0, sT0, T0)
    k.v2("v_and_b32", T3, 7, LANE)
    k.s2("s_mul_i32", sT1, sB, 96)
    k.s1("s_mov_b32", sT2, 1280)
    for i in range(2):
        if i:
            k.v2("v_add_u32", T0, 8, T0)
        k.v3("v_bfe_u32", T1, T0, 1, 3)
        k.v2("v_xor_b32", T1, T1, T3)
        k.v2("v_add_u32", T2, sT1, T0)
        k.v2("v_mul_lo_u32", T2, T2, sT2)
        k.v3("v_lshl_add_u32", v(XD[i]), T1, 4, T2)
        if i:
            k.v2("v_subrev_u32", v(XD[i]), 1024, v(XD[i]))

    k.salu("s_waitcnt lgkmcnt(0)")
    build_srd(k, SX, 32, X_BYTES)
    build_srd(k, SWQ, 38, W_BYTES)
    build_srd(k, SWS, 46, WS_BYTES)
    k.s1("s_mov_b32", sKX, sKW)
    k.stamp()

    def run(ps):
        for p in ps:
            p()

    def weave(prim, *secs):
        secs = [(list(l), st, sd, per) for (l, st, sd, per) in secs]
        for i, p in enumerate(prim):
            p()
            for (l, st, sd, per) in secs:
                if i >= st and (i - st) % sd == 0:
                    for _ in range(per):
                        if l:
                            l.pop(0)()
        for (l, st, sd, per) in secs:
            run(l)

    def wqs_off(pos):
        return (pos & 1) * 16384 + (pos >> 1) * 65536

    def setm0(base, off):
        if off:
            k.s2("s_add_u32", "m0", base, off)
        else:
            k.s1("s_mov_b32", "m0", base)

    def bump(ctr):
        k.s2("s_add_u32", ctr, ctr, 1)
        k.salu(f"s_cmp_eq_u32 {ctr}, 10")
        k.salu(f"s_cselect_b32 {ctr}, 0, {ctr}", wr=[ctr])

    def dma_wq(c):
        def p0():
            setm0(sM0W, wqs_off(c % 4))
            if c % 2 == 0:
                k.s2("s_lshl_b32", sWqOff, sKW, 19)
            else:
                k.s2("s_add_u32", sWqOff, sWqOff, 262144)
            k.vmem(f"buffer_load_dwordx4 {v(WQD[0])}, {sr(SWQ, 4)}, {sWqOff} offen lds",
                   rd=[v(WQD[0]), sWqOff], tag=("wq", c), dma=True)
            k.vmem(f"buffer_load_dwordx4 {v(WQD[1])}, {sr(SWQ, 4)}, {sWqOff} offen offset:1024 lds",
                   rd=[v(WQD[1]), sWqOff], tag=("wq", c), dma=True)
            if c % 2 == 1:
                bump(sKW)
        return [p0]

    def dma_x(j):
        def p0():
            setm0(sM0X, (j & 1) * 12288)
            k.s2("s_lshl_b32", sXOff, sKX, 7)
            k.vmem(f"buffer_load_dwordx4 {v(XD[0])}, {sr(SX, 4)}, {sXOff} offen lds",
                   rd=[v(XD[0]), sXOff], tag=("x", j), dma=True)
            k.salu("s_mov_b32 exec_hi, 0")
            k.vmem(f"buffer_load_dwordx4 {v(XD[1])}, {sr(SX, 4)}, {sXOff} offen offset:1024 lds",
                   rd=[v(XD[1]), sXOff], tag=("x", j), dma=True)
            k.salu("s_mov_b32 exec_hi, -1")
            bump(sKX)
        return [p0]

    run(dma_x(0) + dma_wq(0) + dma_wq(1))
    build_srd(k, SK, 34, KV_BYTES)
    build_srd(k, SV, 36, KV_BYTES)
    build_srd(k, SWO, 40, W_BYTES)
    build_srd(k, SOUT, 42, OUT_BYTES)
    build_srd(k, SDBG, 44, 256)
    k.v2("v_xor_b32", T0, vQ, vG)
    k.v2("v_lshlrev_b32", T0, 4, T0)
    k.v3("v_lshl_add_u32", v(KD[0]), vG, 8, T0)
    for i in range(1, 4):
        k.v2("v_xor_b32", v(KD[i]), 64 * i, v(KD[0]))
    k.v2("v_lshlrev_b32", T0, 1, vG)
    k.v2("v_xor_b32", T0, T0, vQ)
    k.v2("v_lshlrev_b32", T0, 4, T0)
    k.v3("v_lshl_add_u32", v(VD[0]), vG, 8, T0)
    k.v2("v_xor_b32", v(VD[1]), 128, v(VD[0]))
    k.v3("v_bfe_u32", T0, LANE, 2, 2)
    k.v2("v_and_b32", T1, 1, vG)
    k.v3("v_lshl_add_u32", T1, T1, 2, T0)
    k.v3("v_lshl_add_u32", T2, vG, 3, T0)
    k.v2("v_lshlrev_b32", T2, 9, T2)
    k.v2("v_and_b32", T3, 3, LANE)
    k.v3("v_lshl_add_u32", T2, T3, 3, T2)
    k.s2("s_lshl_b32", sT0, sGrp, 8)
    k.s2("s_add_u32", sT0, sT0, 32768)
    k.v2("v_add_u32", T2, sT0, T2)
    k.s2("s_lshl_b32", sT0, sKh, 2)
    k.v2("v_xor_b32", T1, sT0, T1)
    for dt in range(4):
        k.v2("v_xor_b32", T3, dt, T1)
        k.v3("v_lshl_add_u32", v(WQR[dt]), T3, 5, T2)
    k.s2("s_mul_i32", sT0, sQh, 48 * 128)
    k.s2("s_add_u32", sT0, sT0, XS0)
    k.v2("v_lshlrev_b32", T0, 7, vQ)
    k.v2("v_add_u32", T0, sT0, T0)
    k.v2("v_lshrrev_b32", T1, 1, vQ)
    k.v2("v_xor_b32", T1, T1, vG)
    k.v3("v_lshl_add_u32", v(XR[0]), T1, 4, T0)
    k.v2("v_xor_b32", v(XR[1]), 64, v(XR[0]))
    k.s2("s_mul_i32", sT0, sQh, 12 * 1024)
    k.s2("s_add_u32", sT0, sT0, sRing)
    k.s2("s_add_u32", sT0, sT0, 32768)
    k.v2("v_add_u32", v(QR), sT0, L16)
    k.s2("s_lshl_b32", sT1, sKh, 11)
    k.s2("s_add_u32", sT0, sT0, sT1)
    k.v2("v_lshrrev_b32", T0, 1, vG)
    k.v2("v_lshlrev_b32", T0, 8, T0)
    k.v3("v_lshl_add_u32", T0, vQ, 4, T0)
    k.v2("v_and_b32", T1, 1, vG)
    k.v3("v_lshl_add_u32", T0, T1, 3, T0)
    k.v2("v_add_u32", v(QW), sT0, T0)
    k.s2("s_lshl_b32", sT0, sKh, 13)
    k.s2("s_add_u32", sT0, sT0, sRing)
    k.v2("v_xor_b32", T0, vG, vQ)
    k.v2("v_lshlrev_b32", T0, 4, T0)
    k.v3("v_lshl_add_u32", T0, vQ, 8, T0)
    k.v2("v_add_u32", v(KR[0]), sT0, T0)
    for ds_ in range(1, 4):
        k.v2("v_xor_b32", v(KR[ds_]), 64 * ds_, v(KR[0]))
    k.s2("s_and_b32", sT0, "s2", 7)
    k.s2("s_lshr_b32", sT1, "s2", 3)
    k.s2("s_lshr_b32", sRb, sT0, 1)
    k.s2("s_lshl_b32", sRb, sRb, 3)
    k.s2("s_lshr_b32", sT2, sT1, 2)
    k.s2("s_add_u32", sRb, sRb, sT2)
    k.s2("s_and_b32", sCb, sT0, 1)
    k.s2("s_lshl_b32", sCb, sCb, 2)
    k.s2("s_and_b32", sT2, sT1, 3)
    k.s2("s_add_u32", sCb, sCb, sT2)
    k.s2("s_lshl_b32", sA, sRb, 7)
    k.s2("s_lshl_b32", sT0, sW, 3)
    k.s2("s_add_u32", sA, sA, sT0)
    k.s2("s_mul_i32", sA, sA, 3072)
    if OWS:
        k.s2("s_add_u32", sA, sA, OWS)
    k.s2("s_mul_i32", sBo, sW, 320)
    k.s2("s_mul_i32", sT0, sCb, 5)
    k.s2("s_add_u32", sBo, sBo, sT0)
    k.s2("s_lshl_b32", sBo, sBo, 10)
    k.s2("s_add_u32", sBo, sBo, WOT)
    sRho = "s46"
    k.s2("s_lshr_b32", sT1, "s2", 3)
    k.s2("s_lshr_b32", sRho, sT1, 2)
    k.s2("s_and_b32", sT1, sT1, 3)
    k.s2("s_lshl_b32", sT1, sT1, 1)
    k.s2("s_add_u32", sRho, sRho, sT1)
    if not opt.get("orot", 1):
        k.s1("s_mov_b32", sRho, 0)
    k.s2("s_lshl_b32", sFl, sB, 4)
    k.s2("s_add_u32", sFl, sFl, sHp)
    k.s2("s_lshl_b32", sFl, sFl, 8)
    k.s2("s_add_u32", sFl, sFl, FLG)
    k.salu(f"s_cmp_eq_u32 {sW}, 0")
    k.salu(f"s_cselect_b32 {sFl}, {sFl}, {OOB}", wr=[sFl])

    sN0, sN1 = "s30", "s31"

    def flag_store(saddr, srd=SWS):
        k.v1("v_mov_b32", "v2", sN0)
        k.v1("v_mov_b32", "v3", sN1)
        k.v1("v_mov_b32", T0, 0)
        k.salu("s_mov_b64 exec, 1")
        k.vmem(f"buffer_store_dwordx2 v[2:3], {T0}, {sr(srd, 4)}, {saddr} offen sc1", rd=["v2", "v3", T0, saddr], tag="flag")
        k.salu("s_mov_b64 exec, -1")
        k.nop(2)

    k.salu("s_memrealtime s[30:31]")
    k.s2("s_or_b32", sT0, "s2", sW)
    k.salu(f"s_cmp_eq_u32 {sT0}, 0")
    k.salu(f"s_cselect_b32 {sT0}, 0, {OOB}", wr=[sT0])
    k.salu("s_waitcnt lgkmcnt(0)")
    k.s2("s_or_b32", sN1, sN1, "0x80000000")
    flag_store(sT0, SDBG)
    run(dma_x(1) + dma_wq(2) + dma_wq(3))
    split = len(k.lines)
    k.fence()

    def dma_kv(c, staged=None):
        slot = c % 4
        cc = c % 8

        def piece(i):
            def p():
                if staged is None:
                    setm0(sM0K, slot * 16384)
                if cc:
                    k.s2("s_add_u32", sOff, sKV, cc * 16384)
                else:
                    k.s1("s_mov_b32", sOff, sKV)
                a, srd = (v(KD[i]), SK) if c < 8 else (v(VD[i & 1]), SV)
                if staged is None:
                    k.vmem(f"buffer_load_dwordx4 {a}, {sr(srd, 4)}, {sOff} offen offset:{i * 1024}{NT} lds",
                           rd=[a, sOff], tag=("kv", c), dma=True)
                else:
                    d = staged + 4 * i
                    k.vmem(f"buffer_load_dwordx4 {vr(d, 4)}, {a}, {sr(srd, 4)}, {sOff} offen offset:{i * 1024}{NT}",
                           wr=vs(d, 4), rd=[a, sOff], tag=("kv", c))
            return p
        return [piece(i) for i in range(4)]

    NSTG = opt.get("nstg", 4)
    sched = [opt.get(f"k{n}", d) for n, d in enumerate([7, 10, 13, 16, 19, 20, 21, 22])]
    issue = {}
    for n in range(2 + NSTG):
        issue.setdefault(sched[n], []).extend(dma_kv(n, None if n < 2 else STG + 16 * (n - 2)))

    WOL = 0
    WO_DMA, WO_DO, WO_SIG = opt.get("wodma", 0), opt.get("wodo", 4), opt.get("wosig", 7)
    assert WO_DO < sched[0] - 0

    def wo_dma():
        k.s2("s_lshr_b32", sT0, "s2", 1)
        k.s2("s_lshl_b32", sT0, sT0, 5)
        k.s2("s_lshl_b32", sT1, sW, 2)
        k.s2("s_add_u32", sT0, sT0, sT1)
        k.s2("s_mul_i32", sT0, sT0, 1280)
        k.s2("s_and_b32", sT2, "s2", 1)
        k.s2("s_mul_i32", sT2, sT2, 640)
        k.s2("s_add_u32", sT0, sT0, sT2)
        k.s2("s_mul_i32", sT1, sW, 4 * 640)
        if WOL:
            k.s2("s_add_u32", sT1, sT1, WOL)
        k.salu("s_mov_b32 exec_hi, 0xff")
        for i in range(4):
            k.s1("s_mov_b32", "m0", sT1)
            k.vmem(f"buffer_load_dwordx4 {L16}, {sr(SWO, 4)}, {sT0} offen lds", rd=[L16, sT0], tag="wo", dma=True)
            k.s2("s_add_u32", sT0, sT0, 1280)
            k.s2("s_add_u32", sT1, sT1, 640)
        k.salu("s_mov_b32 exec_hi, -1")

    WD = 144
    NWO = 3 if G == 0 else 2

    def wo_read():
        k.v3("v_bfe_u32", T0, LANE, 2, 2)
        k.v3("v_lshl_add_u32", T0, vG, 2, T0)
        k.v2("v_mul_u32_u24", T0, 640, T0)
        k.v2("v_and_b32", T1, 3, LANE)
        k.v3("v_lshl_add_u32", T0, T1, 3, T0)
        k.s2("s_lshl_b32", sT0, sW, 5)
        if WOL:
            k.s2("s_add_u32", sT0, sT0, WOL)
        k.v2("v_add_u32", T0, sT0, T0)
        for i in range(NWO):
            for u in range(2):
                d = WD + i * 4 + 2 * u
                k.ds(f"ds_read_b64_tr_b16 {vr(d, 2)}, {T0} offset:{u * 10240 + i * 256}",
                     wr=vs(d, 2), rd=[T0], tag="wor")

    def wo_store():
        k.s2("s_mul_i32", sT0, "s2", 20)
        k.s2("s_add_u32", sT0, sT0, sW)
        k.s2("s_lshl_b32", sT0, sT0, 10)
        k.s2("s_add_u32", sT0, sT0, WOT)
        for i in range(NWO):
            k.vmem(f"buffer_store_dwordx4 {vr(WD + 4 * i, 4)}, {L16}, {sr(SWS, 4)}, {sT0} offen sc1",
                   rd=vs(WD + 4 * i, 4) + [L16, sT0], tag="wost", store_data=vs(WD + 4 * i, 4))
            if i < NWO - 1:
                k.s2("s_add_u32", sT0, sT0, 8192)

    def w_signal():
        k.s2("s_lshl_b32", sT2, "s2", 6)
        k.s2("s_add_u32", sT2, sT2, WFL)
        k.salu(f"s_cmp_eq_u32 {sW}, 0")
        k.salu(f"s_cselect_b32 {sT2}, {sT2}, {OOB}", wr=[sT2])
        flag_store(sT2)

    NV = 62

    def nonce_load():
        k.v1("v_mov_b32", v(61), 0)
        k.vmem(f"buffer_load_dwordx2 {vr(NV, 2)}, v61, {sr(SDBG, 4)}, 0 offen sc1", wr=vs(NV, 2), rd=["v61"], tag="nonce")

    def nonce_check():
        name = f"K1_N{sfx}"
        k.wait_vm("nonce")
        k.s1("s_mov_b32", sT1, 0)
        k.label(f"{name}_CMP")
        k._emit(f"v_readfirstlane_b32 {sN0}, v{NV}")
        k._emit(f"v_readfirstlane_b32 {sN1}, v{NV + 1}")
        k._emit(f"s_add_u32 {sT1}, {sT1}, 1")
        k._emit(f"s_cmp_lg_u32 {sN1}, 0")
        k._emit(f"s_cbranch_scc1 {name}_OK")
        k._emit(f"s_cmp_ge_u32 {sT1}, 0x40000")
        k._emit(f"s_cbranch_scc1 {name}_OK")
        k._emit("s_sleep 4")
        k._emit(f"buffer_load_dwordx2 {vr(NV, 2)}, v61, {sr(SDBG, 4)}, 0 offen sc1")
        k._emit("s_waitcnt vmcnt(0)")
        k._emit(f"s_branch {name}_CMP")
        k.label(f"{name}_OK")
        k.nop(4)

    def q_reads(c):
        ops = []
        A = QA[c & 1]
        B = A + 16
        for qt in range(3):
            ops.append(lambda qt=qt: k.ds(
                f"ds_read_b128 {vr(B + 4 * qt, 4)}, {v(XR[c & 1])} offset:{qt * 2048 + ((c // 2) & 1) * 12288}",
                wr=vs(B + 4 * qt, 4), rd=[v(XR[c & 1])], tag="qf"))
        for dt in range(4):
            def rd2(dt=dt):
                if c > 0 and c % 2 == 0:
                    k.v2("v_xor_b32", v(WQR[dt]), "0x10000", v(WQR[dt]))
                for u in range(2):
                    k.ds(f"ds_read_b64_tr_b16 {vr(A + 4 * dt + 2 * u, 2)}, {v(WQR[dt])} offset:{u * 2048 + (c & 1) * 16384}",
                         wr=vs(A + 4 * dt + 2 * u, 2), rd=[v(WQR[dt])], tag="qf")
            ops.append(rd2)
        return ops

    k.wait_vm(("x", 0))
    k.wait_vm(("wq", 0))
    k.barrier()
    k.stamp()
    run(q_reads(0))
    for c in range(20):
        k.comment(f"---- qproj kstep {c}")
        if c + 1 < 20:
            k.wait_vm(("x", (c + 1) // 2))
            k.wait_vm(("wq", c + 1))
        if c == WO_DO:
            k.wait_vm("wo")
        if c == WO_SIG - 1:
            nonce_check()
        if c == WO_SIG:
            k.wait_vm("wost")
        k.wait_lg0()
        k.barrier()
        if c in (3, 7, 11, 15):
            k.stamp()
        pieces = []
        if c % 2 == 1 and (c + 1) // 2 + 1 < 10:
            pieces += dma_x((c + 1) // 2 + 1)
        if c + 4 < 20:
            pieces += dma_wq(c + 4)
        if c == WO_DMA:
            pieces.append(wo_dma)
        if c == WO_DO + 1:
            pieces.append(wo_store)
        if c == WO_SIG - 4:
            pieces.insert(0, nonce_load)
        if c == WO_SIG and G == 0:
            pieces.append(w_signal)
        pieces += issue.get(c, [])
        A = QA[c & 1]
        B = A + 16
        mf = []
        for dt in range(4):
            for qt in range(3):
                d = ACC + (dt * 3 + qt) * 4
                mf.append(lambda d=d, dt=dt, qt=qt: k.mfma(d, A + 4 * dt, B + 4 * qt, d if c else None))
        rds = q_reads(c + 1) if c + 1 < 20 else []
        if c == WO_DO:
            rds.append(wo_read)
        weave(mf, (rds, 0, 1, 1), (pieces, opt.get("qdma0", 1) if G == 0 else opt.get("qdma1", 7), 3, 1))
    k.stamp()
    TQ = 32
    for dt in range(4):
        for qt in range(3):
            d = ACC + (dt * 3 + qt) * 4
            t = TQ + (dt * 3 + qt) * 2
            k.v2("v_cvt_pk_bf16_f32", v(t), v(d), v(d + 1))
            k.v2("v_cvt_pk_bf16_f32", v(t + 1), v(d + 2), v(d + 3))
            k.ds(f"ds_write_b64 {v(QW)}, {vr(t, 2)} offset:{qt * 4096 + dt * 512}", rd=[v(QW)] + vs(t, 2), tag="qw")
    k.v3("v_bfe_u32", T0, LANE, 2, 2)
    k.v2("v_and_b32", T1, 1, vG)
    k.v3("v_lshl_add_u32", T1, T1, 2, T0)
    k.s2("s_lshl_b32", sT0, sKh, 2)
    k.v2("v_xor_b32", T1, sT0, T1)
    k.v3("v_lshl_add_u32", T2, vG, 2, T0)
    k.v2("v_lshlrev_b32", T2, 8, T2)
    k.v2("v_and_b32", T3, 3, LANE)
    k.v3("v_lshl_add_u32", T2, T3, 3, T2)
    k.s2("s_lshl_b32", sT0, sKh, 13)
    k.s2("s_add_u32", sT0, sT0, sRing)
    k.v2("v_add_u32", T2, sT0, T2)
    for j in range(8):
        k.v2("v_xor_b32", T3, j, T1)
        k.v3("v_lshl_add_u32", v(VR[j]), T3, 5, T2)

    def k_reads(c):
        slot = c % 4
        ops = []
        for t in range(2):
            for ds_ in range(4):
                d = FR + (t * 4 + ds_) * 4
                ops.append(lambda d=d, t=t, ds_=ds_: k.ds(
                    f"ds_read_b128 {vr(d, 4)}, {v(KR[ds_])} offset:{slot * 16384 + t * 4096}",
                    wr=vs(d, 4), rd=[v(KR[ds_])], tag=("kf", t, ds_)))
        return ops

    def v_reads(c, half):
        slot = c % 4
        ops = []
        for j in range(4 * half, 4 * half + 4):
            for u in range(2):
                d = FR + j * 4 + 2 * u
                ops.append(lambda d=d, j=j, u=u: k.ds(
                    f"ds_read_b64_tr_b16 {vr(d, 2)}, {v(VR[j])} offset:{slot * 16384 + u * 4096}",
                    wr=vs(d, 2), rd=[v(VR[j])], tag=("vf", j)))
        return ops

    def sreg(qt, t):
        return S0 + (qt * 2 + t) * 4

    def xlane3(op, rs, tmps):
        for sw in ("v_permlane32_swap_b32", "v_permlane16_swap_b32"):
            for r, t in zip(rs, tmps):
                k.v1("v_mov_b32", v(t), v(r))
            for r, t in zip(rs, tmps):
                k.valu(f"{sw} {v(r)}, {v(t)}", wr=[v(r), v(t)], rd=[v(r), v(t)], perm=True)
            for r, t in zip(rs, tmps):
                k.v2(op, v(r), v(r), v(t))

    def max8x3(dsts):
        for qt in range(3):
            b = sreg(qt, 0)
            k.v3("v_max3_f32", v(dsts[qt]), v(b), v(b + 1), v(b + 2))
        for i in (3, 5):
            for qt in range(3):
                b = sreg(qt, 0)
                k.v3("v_max3_f32", v(dsts[qt]), v(dsts[qt]), v(b + i), v(b + i + 1))
        for qt in range(3):
            b = sreg(qt, 0)
            k.v2("v_max_f32", v(dsts[qt]), v(dsts[qt]), v(b + 7))

    sites = []

    def s_mfma(c):
        ops = []
        for t in range(2):
            for ds_ in range(4):
                for qt in range(3):
                    def op(t=t, ds_=ds_, qt=qt):
                        if qt == 0:
                            k.wait_lg(("kf", t, ds_))
                        d = sreg(qt, t)
                        k.mfma(d, FR + (t * 4 + ds_) * 4, QF + (qt * 4 + ds_) * 4, d if ds_ else None)
                    ops.append(op)
        return ops

    def softmax(c):
        ops = []

        def fm(r0):
            for r in range(r0, r0 + 4):
                for qt in range(3):
                    x = sreg(qt, 0) + r
                    k.v3("v_fma_f32", v(x), v(x), sC, f"-{v(MC[qt])}")

        def head():
            k.comment(f"softmax {c}")
            if c == 0:
                max8x3(MC)
                xlane3("v_max_f32", MC, [SP, SP + 1, SP + 2])
                for qt in range(3):
                    k.v2("v_mul_f32", v(MC[qt]), sC, v(MC[qt]))
            fm(0)

        def check():
            if c > 0:
                max8x3([SP, SP + 1, SP + 2])
                k.v3("v_max3_f32", v(SP + 3), v(SP), v(SP + 1), v(SP + 2))
                k.valu(f"v_cmp_lt_f32 vcc, {sThr}, {v(SP + 3)}", wr=["vcc"], rd=[sThr, v(SP + 3)])
                k.s1("s_mov_b32", sRet, c)
                k.nop(4)
                k.salu(f"s_cbranch_vccnz K1_SLOW{sfx}")
                k.label(f"K1_RET{c}{sfx}")
                sites.append(c)
                k.fence()
        ops += [head, lambda: fm(4), check]

        def body(r):
            if r < 8:
                for qt in range(3):
                    x = sreg(qt, 0) + r
                    k.v1("v_exp_f32", v(x), v(x), trans=True)
            if r >= 1:
                rr = r - 1
                for qt in range(3):
                    b = sreg(qt, 0)
                    if c == 0 and rr == 0:
                        continue
                    if c == 0 and rr == 1:
                        k.v2("v_add_f32", v(LS[qt]), v(b), v(b + 1))
                    else:
                        k.v2("v_add_f32", v(LS[qt]), v(LS[qt]), v(b + rr))
                if rr % 2 == 1:
                    for qt in range(3):
                        b = sreg(qt, 0)
                        k.v2("v_cvt_pk_bf16_f32", v(preg(c) + qt * 4 + rr // 2), v(b + rr - 1), v(b + rr))
        for r in range(9):
            ops.append(lambda r=r: body(r))
        return ops

    def pv_mfma(c, half):
        cv = c - 8
        ops = []
        for j in range(4 * half, 4 * half + 4):
            for qt in range(3):
                def op(j=j, qt=qt):
                    if qt == 0:
                        k.wait_lg(("vf", j))
                    d = oreg(j, qt)
                    k.mfma(d, FR + j * 4, preg(cv) + qt * 4, d if cv else None)
                ops.append(op)
        return ops

    def stage_out(n):
        k.wait_vm(("kv", n))
        k.s2("s_add_u32", sT2, sM0K, (n % 4) * 16384)
        k.v2("v_add_u32", T3, sT2, L16)
        for i in range(4):
            d = STG + 16 * (n - 2) + 4 * i
            k.ds(f"ds_write_b128 {T3}, {vr(d, 4)} offset:{i * 1024}", rd=[T3] + vs(d, 4), tag="stg")

    so_at = {n: (1 if n < 4 else opt.get("solag", 2) + n - 3 - 1) for n in range(2, 2 + NSTG)}
    for n, c_ in so_at.items():
        assert max(n - 3, 1) <= c_ <= n - 1, (n, c_)

    BSL = [148, 168, 188, 72, 92, 112]
    NB, NL, NA = 6, 4, 4
    AB = 208
    OACC = 12
    L16B = "v8"

    def rot_off(j, base, stride):
        k.s2("s_add_u32", sOff, sRho, j % 8)
        k.s2("s_and_b32", sOff, sOff, 7)
        if j // 8:
            k.s2("s_add_u32", sOff, sOff, 64)
        k.s2("s_mul_i32", sOff, sOff, stride)
        k.s2("s_add_u32", sOff, sOff, base)

    sOB, sOA = "s65", "s66"

    def loadB(j, lds=False):
        ops = []
        for nt in range(5):
            def op(nt=nt):
                if nt == 0:
                    rot_off(j, sBo, 40960)
                    k.s1("s_mov_b32", sOB, sOff)
                a, o = (L16, nt * 1024) if nt < 4 else (L16B, 0)
                if lds:
                    k.s2("s_add_u32", "m0", sM0X, (j - NB) * 5120 + (4096 if nt == 4 else 0))
                    k.vmem(f"buffer_load_dwordx4 {a}, {sr(SWS, 4)}, {sOB} offen offset:{o} sc1 lds",
                           rd=[a, sOB], tag=("bl", j), dma=True)
                else:
                    d = BSL[j % NB] + 4 * nt
                    k.vmem(f"buffer_load_dwordx4 {vr(d, 4)}, {a}, {sr(SWS, 4)}, {sOB} offen offset:{o} sc1",
                           wr=vs(d, 4), rd=[a, sOB], tag=("b", j))
            ops.append(op)
        return ops

    def loadA(j):
        a = AB + (j % NA) * 12
        ops = []
        for mt in range(3):
            def op(mt=mt):
                if mt == 0:
                    rot_off(j, sA, 3072)
                k.vmem(f"buffer_load_dwordx4 {vr(a + 4 * mt, 4)}, {L16}, {sr(SWS, 4)}, {sOff} offen offset:{mt * 1024} sc1",
                       wr=vs(a + 4 * mt, 4), rd=[L16, sOff], tag=("a", j))
            ops.append(op)
        return ops

    WCHK = opt.get("wchk", 10)
    EARLYB = opt.get("earlyb", 1)

    def flag_load(soff, imm, tag):
        k.vmem(f"buffer_load_dwordx2 v[2:3], {T3}, {sr(SWS, 4)}, {soff} offen offset:{imm} sc1", wr=["v2", "v3"],
               rd=[T3] + ([soff] if isinstance(soff, str) else []), tag=tag)

    def flag_check(soff, imm, name, tag):
        k.wait_vm(tag)
        k.s1("s_mov_b32", sT1, 0)
        k.label(f"{name}_CMP")
        k._emit(f"v_cmp_ne_u64 vcc, s[30:31], v[2:3]")
        k._emit(f"s_add_u32 {sT1}, {sT1}, 1")
        k._emit("s_nop 3")
        k._emit(f"s_cbranch_vccz {name}_OK")
        k._emit(f"s_cmp_ge_u32 {sT1}, 0x40000")
        k._emit(f"s_cbranch_scc1 {name}_OK")
        k._emit(f"s_sleep {opt.get('slp', 4)}")
        k._emit(f"buffer_load_dwordx2 v[2:3], {T3}, {sr(SWS, 4)}, {soff} offen offset:{imm} sc1")
        k._emit("s_waitcnt vmcnt(0)")
        k._emit(f"s_branch {name}_CMP")
        k.label(f"{name}_OK")

    sWf = "s45"

    def sync(c):
        if c < 16 and not (2 <= c < 2 + NSTG):
            k.wait_vm(("kv", c))
        if c == WCHK:
            flag_check(sWf, 0, f"K1_W{sfx}", "wp")
        k.wait_lg0()
        k.barrier()
        k.stamp()
        if c == WCHK - 2:
            k.v2("v_and_b32", T3, 7, LANE)
            k.v3("v_bfe_u32", T0, LANE, 3, 1)
            k.v3("v_lshl_add_u32", T3, T0, 6, T3)
            k.v2("v_lshlrev_b32", T3, 7, T3)
            k.s2("s_lshl_b32", sWf, sW, 10)
            k.s2("s_lshr_b32", sT0, sCb, 2)
            k.s2("s_lshl_b32", sT0, sT0, 6)
            k.s2("s_add_u32", sWf, sWf, sT0)
            k.s2("s_add_u32", sWf, sWf, WFL)
            flag_load(sWf, 0, "wp")

    for c in range(17):
        k.comment(f"---- interval {c}")
        if c < 16:
            sync(c)
        so = [(lambda n=n: stage_out(n)) for n in sorted(so_at) if so_at[n] == c]
        dm = list(issue.get(20 + c, []))
        if c >= 1:
            for n in ([2, 3, 4] if c == 1 else [c + 3]):
                if 2 + NSTG <= n < 16:
                    dm += dma_kv(n)
        if c == 0:
            for ds_ in range(4):
                for qt in range(3):
                    d = QF + (qt * 4 + ds_) * 4
                    k.ds(f"ds_read_b128 {vr(d, 4)}, {v(QR)} offset:{(qt * 4 + ds_) * 1024}",
                         wr=vs(d, 4), rd=[v(QR)], tag="qr")
            run(k_reads(0))
            run(dm)
            if G == 0:
                run(s_mfma(0))
        elif c <= 8:
            rds = k_reads(c) if c < 8 else v_reads(8, 0)
            if G == 1:
                weave(s_mfma(c - 1), (so, 2, 6, 1))
            else:
                run(so)
            weave(softmax(c - 1), (rds, 0, 1, 2), (dm, 3, 2, 1))
            if c < 8:
                if G == 0:
                    run(s_mfma(c))
            else:
                weave(pv_mfma(8, 0), (v_reads(8, 1), 0, 1, 1))
        elif c < 16:
            if c == 13:
                k.v2("v_add_u32", L16B, 4096, L16)
            if EARLYB and c >= 14:
                dm = dm + (loadB(0) + loadB(1) if c == 14 else loadB(2))
            d0, d1 = (dm, []) if G == 0 else ([], dm)
            if len(dm) > 4:
                d0, d1 = dm[:len(dm) // 2], dm[len(dm) // 2:]
            weave(pv_mfma(c - 1, 1), (v_reads(c, 0), 0, 1, 1), (d0, 1, 2, 1))
            weave(pv_mfma(c, 0), (v_reads(c, 1), 0, 1, 1), (d1, 1, 2, 1))
        else:
            run(pv_mfma(15, 1))
    k.stamp()
    xlane3("v_add_f32", LS, [FR, FR + 1, FR + 2])
    k.s2("s_lshl_b32", sT0, sW, 9)
    k.s2("s_add_u32", sT0, sT0, STAT)
    k.v3("v_lshl_add_u32", T0, vQ, 5, sT0)
    k.ds(f"ds_write_b128 {T0}, {vr(ST, 4)}", rd=[T0] + vs(ST, 4), tag="mw")
    k.ds(f"ds_write_b64 {T0}, {vr(ST + 4, 2)} offset:16", rd=[T0] + vs(ST + 4, 2), tag="mw")
    k.s2("s_mul_i32", sT0, sWl, 12288)
    k.s2("s_add_u32", sT0, sT0, sRing)
    k.v2("v_add_u32", T1, sT0, L16)
    for j in range(4):
        for qt in range(3):
            d = oreg(4 + j, qt)
            k.ds(f"ds_write_b128 {T1}, {vr(d, 4)} offset:{(j * 3 + qt) * 1024}", rd=[T1] + vs(d, 4), tag="mw")
    k.wait_lg0()
    k.barrier()
    k.v2("v_xor_b32", T0, 1024, T0)
    k.s2("s_xor_b32", sT1, sWl, 2)
    k.s2("s_mul_i32", sT0, sT1, 12288)
    k.s2("s_add_u32", sT0, sT0, sRing)
    k.v2("v_add_u32", T1, sT0, L16)
    PS = FR
    k.ds(f"ds_read_b128 {vr(PS, 4)}, {T0}", wr=vs(PS, 4), rd=[T0], tag="ps")
    k.ds(f"ds_read_b64 {vr(PS + 4, 2)}, {T0} offset:16", wr=vs(PS + 4, 2), rd=[T0], tag="ps")
    for j in range(4):
        for qt in range(3):
            d = oreg(4 + j, qt)
            k.ds(f"ds_read_b128 {vr(d, 4)}, {T1} offset:{(j * 3 + qt) * 1024}", wr=vs(d, 4), rd=[T1], tag=("po", j))
    k.wait_lg("ps")
    FO = [FR + 8, FR + 9, FR + 10]
    FP = [FR + 12, FR + 13, FR + 14]
    MM = [FR + 16, FR + 17, FR + 18]
    R3 = range(3)
    for qt in R3:
        k.v2("v_max_f32", v(MM[qt]), v(MC[qt]), v(PS + qt))
    for qt in R3:
        k.v2("v_sub_f32", v(FO[qt]), v(MC[qt]), v(MM[qt]))
        k.v2("v_sub_f32", v(FP[qt]), v(PS + qt), v(MM[qt]))
    for qt in R3:
        k.v1("v_exp_f32", v(FO[qt]), v(FO[qt]), trans=True)
        k.v1("v_exp_f32", v(FP[qt]), v(FP[qt]), trans=True)
    for qt in R3:
        k.v2("v_mul_f32", v(MM[qt]), v(FO[qt]), v(LS[qt]))
    for qt in R3:
        k.v3("v_fma_f32", v(MM[qt]), v(FP[qt]), v(PS + 3 + qt), v(MM[qt]))
    for qt in R3:
        k.v1("v_rcp_f32", v(MM[qt]), v(MM[qt]), trans=True)
    for qt in R3:
        k.v2("v_mul_f32", v(FO[qt]), v(FO[qt]), v(MM[qt]))
        k.v2("v_mul_f32", v(FP[qt]), v(FP[qt]), v(MM[qt]))
    k.s2("s_lshl_b32", sT0, sB, 1)
    k.s2("s_add_u32", sT0, sT0, sQh)
    k.s2("s_lshl_b32", sT0, sT0, 7)
    k.s2("s_lshl_b32", sT1, sHead, 2)
    k.s2("s_add_u32", sT0, sT0, sT1)
    k.s2("s_lshl_b32", sT1, sKh, 1)
    k.s2("s_add_u32", sT0, sT0, sT1)
    k.s2("s_mul_i32", sT0, sT0, 3072)
    if OWS:
        k.s2("s_add_u32", sT0, sT0, OWS)
    k.s2("s_add_u32", sT1, sT0, 3072)
    OD = 208
    for jj in range(2):
        for e in range(2):
            j = 2 * jj + e
            k.wait_lg(("po", j))
            for qt in range(3):
                d = oreg(j, qt)
                p = oreg(4 + j, qt)
                for r in range(4):
                    k.v2("v_mul_f32", v(d + r), v(d + r), v(FO[qt]))
                for r in range(4):
                    k.valu(f"v_fmac_f32 {v(d + r)}, {v(p + r)}, {v(FP[qt])}", wr=[v(d + r)],
                           rd=[v(d + r), v(p + r), v(FP[qt])])
                od = OD + (jj * 3 + qt) * 4 + 2 * e
                k.v2("v_cvt_pk_bf16_f32", v(od), v(d), v(d + 1))
                k.v2("v_cvt_pk_bf16_f32", v(od + 1), v(d + 2), v(d + 3))
        for qt in range(3):
            od = OD + (jj * 3 + qt) * 4
            so = sT1 if jj else sT0
            k.vmem(f"buffer_store_dwordx4 {vr(od, 4)}, {L16}, {sr(SWS, 4)}, {so} offen offset:{qt * 1024} sc1",
                   rd=vs(od, 4) + [L16, so], tag="ost", store_data=vs(od, 4))
    k.salu("s_branch K1_TAIL")
    mark_tail = len(k.lines)

    k.label("K1_TAIL")
    k.fence()
    k.wait_vm0()
    k.barrier()
    k.stamp()
    flag_store(sFl)
    for j in range(0 if not EARLYB else 3, NB):
        run(loadB(j))
    k.s2("s_mul_i32", sM0X, sW, 20480)
    for j in range(NB, NB + NL):
        run(loadB(j, lds=True))
    k.s2("s_lshr_b32", sFl, sRb, 1)
    k.s2("s_lshl_b32", sFl, sFl, 4)
    k.s2("s_add_u32", sFl, sFl, sW)
    k.s2("s_lshl_b32", sFl, sFl, 8)
    k.s2("s_add_u32", sFl, sFl, FLG)
    k.v1("v_mov_b32", T3, 0)
    k.v2("v_add_u32", T0, sM0X, L16)
    flag_load(sFl, 0, "f0")
    flag_check(sFl, 0, "K1_F0", "f0")
    k.stamp()
    for j in range(NA):
        run(loadA(j))
    for j in range(16):
        a = AB + (j % NA) * 12
        b = BSL[j % NB]
        k.wait_vm(("a", j))
        k.wait_vm(("b", j))
        k.wait_lg(("bs", j))
        for nt in range(5):
            for mt in range(3):
                d = OACC + (nt * 3 + mt) * 4
                k.mfma(d, b + 4 * nt, a + 4 * mt, d if j else None)
        if j == 8 - NA - 2:
            flag_load(sFl, 2048, "f1")
        if j == 8 - NA:
            flag_check(sFl, 2048, "K1_F1", "f1")
        if j + NA < 16:
            run(loadA(j + NA))
        jb = j + NB
        if jb < NB + NL:
            k.wait_vm(("bl", jb))
            for nt in range(5):
                d = b + 4 * nt
                k.ds(f"ds_read_b128 {vr(d, 4)}, {T0} offset:{(jb - NB) * 5120 + nt * 1024}", wr=vs(d, 4), rd=[T0], tag=("bs", jb))
        elif jb < 16:
            run(loadB(jb))
        if j in (3, 7, 11):
            k.stamp()
    k.stamp()
    for t in range(15):
        k.ds(f"ds_write_b128 {T0}, {vr(OACC + 4 * t, 4)} offset:{t * 1024}", rd=[T0] + vs(OACC + 4 * t, 4), tag="w")
    k.wait_lg0()
    k.barrier()
    k.s2("s_lshl_b32", sT0, sW, 10)
    k.v2("v_add_u32", T0, sT0, L16)
    k.v2("v_add_u32", T1, 3 * 20480, T0)
    k.v2("v_add_u32", T3, 6 * 20480, T0)
    RB = 72
    for i in range(2):
        for s_ in range(8):
            d = RB + (i * 8 + s_) * 4
            a_ = [T0, T1, T3][s_ // 3]
            o_ = (s_ % 3) * 20480 + i * 8192
            k.ds(f"ds_read_b128 {vr(d, 4)}, {a_} offset:{o_}", wr=vs(d, 4), rd=[a_], tag=("r", i))
    k.v2("v_mul_u32_u24", T2, 1280, vQ)
    k.v3("v_lshl_add_u32", T2, vG, 3, T2)
    for i in range(2):
        k.s2("s_add_u32", sT0, sW, 8 * i)
        k.s2("s_mul_i32", sT1, sT0, 11)
        k.s2("s_lshr_b32", sT1, sT1, 5)
        k.s2("s_mul_i32", sT2, sT1, 3)
        k.s2("s_sub_u32", sT2, sT0, sT2)
        k.s2("s_mul_i32", sA, sRb, 48)
        k.s2("s_lshl_b32", sT2, sT2, 4)
        k.s2("s_add_u32", sA, sA, sT2)
        k.s2("s_mul_i32", sA, sA, 1280)
        k.s2("s_mul_i32", sBo, sCb, 160)
        k.s2("s_add_u32", sA, sA, sBo)
        k.s2("s_lshl_b32", sT1, sT1, 5)
        k.s2("s_add_u32", sA, sA, sT1)
        if i == 1:
            k.salu(f"s_cmp_lt_u32 {sW}, 7")
            k.salu(f"s_cselect_b32 {sA}, {sA}, {OOB}", wr=[sA])
        k.wait_lg(("r", i))
        d = RB + i * 32
        for step in (16, 8, 4):
            for o in range(0, step):
                k.v2("v_add_f32", v(d + o), v(d + o), v(d + o + step))
        k.v2("v_cvt_pk_bf16_f32", v(d + 4), v(d), v(d + 1))
        k.v2("v_cvt_pk_bf16_f32", v(d + 5), v(d + 2), v(d + 3))
        k.vmem(f"buffer_store_dwordx2 {vr(d + 4, 2)}, {T2}, {sr(SOUT, 4)}, {sA} offen",
               rd=vs(d + 4, 2) + [T2, sA], tag="st")
    if opt.get("ts"):
        k.wait_vm0()
    k.flush_stamps(SWS, sW, TSBASE, 8)
    k.salu("s_endpgm")
    k.tail = k.lines[mark_tail:]
    del k.lines[mark_tail:]

    k.label(f"K1_SLOW{sfx}")
    k.nop(8)
    D = [SP, SP + 1, SP + 2]
    F = [SP + 4, SP + 5, SP + 6]
    xlane3("v_max_f32", D, [SP + 8, SP + 9, SP + 10])
    for qt in range(3):
        k.v1("v_ceil_f32", v(D[qt]), v(D[qt]))
        k.v2("v_max_f32", v(D[qt]), 0, v(D[qt]))
        k.v2("v_add_f32", v(MC[qt]), v(MC[qt]), v(D[qt]))
        for r in range(8):
            x = sreg(qt, 0) + r
            k.v2("v_sub_f32", v(x), v(x), v(D[qt]))
        k.v2("v_sub_f32", v(F[qt]), 0, v(D[qt]))
        k.v1("v_exp_f32", v(F[qt]), v(F[qt]), trans=True)
        k.v2("v_mul_f32", v(LS[qt]), v(LS[qt]), v(F[qt]))
    for cc in range(7):
        if cc > 0:
            k.salu(f"s_cmp_le_u32 {sRet}, {cc}")
            k.salu(f"s_cbranch_scc1 K1_SLOW_DONE{sfx}")
        for qt in range(3):
            for r in range(4):
                x = preg(cc) + qt * 4 + r
                a, b = SP + 8, SP + 9
                k.v2("v_lshlrev_b32", v(a), 16, v(x))
                k.v2("v_and_b32", v(b), "0xffff0000", v(x))
                k.v2("v_mul_f32", v(a), v(a), v(F[qt]))
                k.v2("v_mul_f32", v(b), v(b), v(F[qt]))
                k.v2("v_cvt_pk_bf16_f32", v(x), v(a), v(b))
    k.label(f"K1_SLOW_DONE{sfx}")
    k.nop(4)
    for c in sites[:-1]:
        k.salu(f"s_cmp_eq_u32 {sRet}, {c}")
        k.salu(f"s_cbranch_scc1 K1_RET{c}{sfx}")
    k.salu(f"s_branch K1_RET{sites[-1]}{sfx}")
    return k, split


def build(opt):
    k0, split = gen(opt, 0)
    k1, _ = gen(opt, 1)
    assert k0.tail == k1.tail
    lines = k0.lines[:split]
    lines += ["    s_cmp_eq_u32 s49, 1", "    s_cbranch_scc1 K1_G1"]
    lines += k0.lines[split:]
    lines.append("K1_G1:")
    lines += k1.lines[split:]
    lines += k0.tail
    lines += ["K1_END:", "    s_endpgm", "K1_CODE_END:"]
    name = NAME + "_kernel"
    out = HEADER
    out += "; @launch grid=(256,1,1) block=(512,1,1) lds=163840\n"
    out += '.amdgcn_target "amdgcn-amd-amdhsa--gfx950"\n.text\n'
    out += f".globl {name}\n.p2align 8\n.type {name},@function\n{name}:\n" + "\n".join(lines) + "\n"
    out += '.section .rodata,"a"\n.p2align 6\n'
    out += kd(name, 256, 102)
    return out, k0


if __name__ == "__main__":
    opt = {}
    path = sys.argv[1] if len(sys.argv) > 1 else f"cdna_kernels/{NAME}.s"
    for a in sys.argv[2:]:
        kk, vv = a.split("=")
        opt[kk] = float(vv) if "." in vv else int(vv)
    txt, k1 = build(opt)
    open(path, "w").write(txt)
    print("wrote", path, len(txt), "bytes; slots", k1.slot, "stamps", k1.nstamp)
```

```python
import os
EXACT_VM = bool(int(os.environ.get("EXACT_VM", "0")))


def vr(a, n=1):
    return f"v{a}" if n == 1 else f"v[{a}:{a + n - 1}]"


def sr(a, n=1):
    return f"s{a}" if n == 1 else f"s[{a}:{a + n - 1}]"


def vs(a, n=1):
    return [f"v{i}" for i in range(a, a + n)]


def ss(a, n=1):
    return [f"s{i}" for i in range(a, a + n)]


class Kern:
    def __init__(self):
        self.lines = []
        self.slot = 0
        self.valu_w = {}
        self.trans_w = {}
        self.mfma_w = {}
        self.mfma_c = {}
        self.salu_m0 = -100
        self.store_d = {}
        self.vmq = []
        self.lgq = []
        self.nlabel = 0
        self.stats = {}

    def comment(self, t):
        self.lines.append(f"    ; {t}")

    def label(self, name):
        self.lines.append(f"{name}:")

    def newlabel(self, p="L"):
        self.nlabel += 1
        return f"{p}_{self.nlabel}"

    def _emit(self, text, slots=1):
        self.lines.append("    " + text)
        self.slot += slots
        op = text.split()[0]
        self.stats[op] = self.stats.get(op, 0) + 1

    def nop(self, n):
        while n > 0:
            k = min(n, 16)
            self._emit(f"s_nop {k - 1}", k)
            n -= k

    def _need(self, prod_slot, ws):
        return max(0, ws - (self.slot - prod_slot - 1))

    def fence(self, n=20):
        need = 0
        for r, s in self.valu_w.items():
            need = max(need, self._need(s, 5))
        for r, (s, p, b, k) in self.mfma_w.items():
            need = max(need, self._need(s, 8 if p == 4 else 12))
        for r, (s, p) in self.mfma_c.items():
            need = max(need, self._need(s, 3 if p == 4 else 7))
        for r, s in self.store_d.items():
            need = max(need, self._need(s, 2))
        need = max(need, self._need(self.salu_m0, 1))
        self.nop(need)

    def salu(self, text, wr=(), rd=()):
        need = 0
        for r in rd:
            if r in self.valu_w and r.startswith("s"):
                need = max(need, self._need(self.valu_w[r], 1))
        self.nop(need)
        if "m0" in wr:
            self.salu_m0 = self.slot
        for r in wr:
            self.valu_w.pop(r, None)
        self._emit(text)

    def valu(self, text, wr=(), rd=(), trans=False, perm=False, lane=False):
        need = 0
        for r in rd:
            if r.startswith("v"):
                if r in self.mfma_w:
                    s, p, _, _ = self.mfma_w[r]
                    need = max(need, self._need(s, 8 if p == 4 else 12))
                if r in self.trans_w and not trans:
                    need = max(need, self._need(self.trans_w[r], 1))
                if perm and r in self.valu_w:
                    need = max(need, self._need(self.valu_w[r], 2))
                if lane and r in self.valu_w:
                    need = max(need, self._need(self.valu_w[r], 1))
            else:
                if r in self.valu_w:
                    need = max(need, self._need(self.valu_w[r], 2))
        for r in wr:
            if r in self.mfma_w:
                s, p, _, _ = self.mfma_w[r]
                need = max(need, self._need(s, 8 if p == 4 else 12))
            if r in self.mfma_c:
                s, p = self.mfma_c[r]
                need = max(need, self._need(s, 3 if p == 4 else 7))
            if r in self.store_d:
                need = max(need, self._need(self.store_d[r], 2))
        self.nop(need)
        for r in wr:
            self.valu_w[r] = self.slot
            self.mfma_w.pop(r, None)
            if trans:
                self.trans_w[r] = self.slot
            else:
                self.trans_w.pop(r, None)
        self._emit(text)

    def mfma(self, d, a, b, c=None, shape="16x16x32"):
        nd = 4 if shape == "16x16x32" else 16
        p = 4 if shape == "16x16x32" else 8
        need = 0
        for r in vs(a, 4) + vs(b, 4):
            if r in self.valu_w:
                need = max(need, self._need(self.valu_w[r], 2))
            if r in self.mfma_w:
                s, pp, _, _ = self.mfma_w[r]
                need = max(need, self._need(s, 8 if pp == 4 else 12))
        if c is not None:
            for r in vs(c, nd):
                if r in self.valu_w:
                    need = max(need, self._need(self.valu_w[r], 2))
                if r in self.mfma_w:
                    s, pp, bb, nn = self.mfma_w[r]
                    if not (bb == c and nn == nd and pp == p):
                        need = max(need, self._need(s, 6 if pp == 4 else 10))
        for r in vs(d, nd):
            if r in self.mfma_w:
                s, pp, bb, nn = self.mfma_w[r]
                if not (bb == d and nn == nd and pp == p) :
                    need = max(need, self._need(s, 6 if pp == 4 else 10))
            if r in self.store_d:
                need = max(need, self._need(self.store_d[r], 2))
        self.nop(need)
        for r in vs(d, nd):
            self.mfma_w[r] = (self.slot, p, d, nd)
            self.valu_w.pop(r, None)
            self.trans_w.pop(r, None)
        if c is not None:
            for r in vs(c, nd):
                self.mfma_c[r] = (self.slot, p)
        ctext = vr(c, nd) if c is not None else "0"
        self._emit(f"v_mfma_f32_{shape}_bf16 {vr(d, nd)}, {vr(a, 4)}, {vr(b, 4)}, {ctext}")

    def _mem_need(self, wr, rd):
        need = 0
        for r in list(rd) + list(wr):
            if r in self.mfma_w:
                s, p, _, _ = self.mfma_w[r]
                need = max(need, self._need(s, 8 if p == 4 else 12))
        for r in wr:
            if r in self.store_d:
                need = max(need, self._need(self.store_d[r], 1))
        for r in rd:
            if r.startswith("s") and r in self.valu_w:
                need = max(need, self._need(self.valu_w[r], 5))
            if r.startswith("v") and r in self.trans_w:
                need = max(need, self._need(self.trans_w[r], 1))
        return need

    def ds(self, text, wr=(), rd=(), tag=None):
        self.nop(self._mem_need(wr, rd))
        for r in wr:
            self.valu_w.pop(r, None)
            self.mfma_w.pop(r, None)
            self.trans_w.pop(r, None)
        self.lgq.append(tag)
        self._emit(text)

    def vmem(self, text, wr=(), rd=(), tag=None, dma=False, store_data=()):
        need = self._mem_need(wr, rd)
        if dma:
            need = max(need, self._need(self.salu_m0, 1))
        self.nop(need)
        for r in wr:
            self.valu_w.pop(r, None)
            self.mfma_w.pop(r, None)
            self.trans_w.pop(r, None)
        for r in store_data:
            self.store_d[r] = self.slot
        is_store = ("store" in text.split()[0]) or ("atomic" in text.split()[0])
        if EXACT_VM:
            is_store = False
        self.vmq.append((tag, is_store))
        self._emit(text)

    def wait_vm(self, tag):
        idx = [i for i, (t, st) in enumerate(self.vmq) if t == tag]
        if not idx:
            return
        if self.vmq[idx[-1]][1]:
            self.wait_vm0()
            return
        n = sum(1 for (t, st) in self.vmq[idx[-1] + 1:] if not st)
        assert n <= 63, n
        self.vmq = [e for e in self.vmq[:idx[-1] + 1] if e[1]] + self.vmq[idx[-1] + 1:]
        self._emit(f"s_waitcnt vmcnt({n})")

    def wait_vm0(self):
        self.vmq = []
        self._emit("s_waitcnt vmcnt(0)")

    def wait_lg(self, tag):
        idx = [i for i, t in enumerate(self.lgq) if t == tag]
        if not idx:
            return
        n = len(self.lgq) - 1 - idx[-1]
        n = min(n, 15)
        self.lgq = self.lgq[len(self.lgq) - n:] if n else []
        self._emit(f"s_waitcnt lgkmcnt({n})")

    def wait_lg0(self, force=False):
        if self.lgq or force:
            self.lgq = []
            self._emit("s_waitcnt lgkmcnt(0)")

    def barrier(self):
        self._emit("s_barrier")

    def v2(self, op, d, a, b):
        rd = [x for x in (a, b) if isinstance(x, str) and x[0] in "vs" and x[1:].isdigit()]
        self.valu(f"{op} {d}, {a}, {b}", wr=[d], rd=rd)

    def v3(self, op, d, a, b, c):
        rd = []
        for x in (a, b, c):
            if isinstance(x, str):
                y = x.lstrip("-")
                if y[0] in "vs" and y[1:].isdigit():
                    rd.append(y)
        self.valu(f"{op} {d}, {a}, {b}, {c}", wr=[d], rd=rd)

    def v1(self, op, d, a, trans=False):
        rd = [a] if isinstance(a, str) and a[0] in "vs" and a[1:].isdigit() else []
        self.valu(f"{op} {d}, {a}", wr=[d], rd=rd, trans=trans)

    def s2(self, op, d, a, b):
        rd = [x for x in (a, b) if isinstance(x, str) and x[0] == "s" and x[1:].isdigit()]
        self.salu(f"{op} {d}, {a}, {b}", wr=[d], rd=rd)

    def s1(self, op, d, a):
        rd = [a] if isinstance(a, str) and a[0] == "s" and a[1:].isdigit() else []
        self.salu(f"{op} {d}, {a}", wr=[d], rd=rd)

    def text(self):
        return "\n".join(self.lines) + "\n"
```

```python
import sys
from dsl import Kern, vr, sr, vs, ss
from gen1 import (NAME, X_BYTES, KV_BYTES, W_BYTES, OUT_BYTES, WS_BYTES, OWS, WOT, CSCALE, TSBASE,
                  f32bits, build_srd, add_stamps, code_touch, HEADER, kd)

THRESH = 10.0
FLG = 24 << 20
WFL = 25 << 20
OOB = "0x7f000000"


def v(i):
    return f"v{i}"


def gen(opt, G):
    k = Kern()
    add_stamps(k, opt)
    sfx = f"_{G}"
    NT = " nt" if opt.get("nt", 1) else ""
    SX, SK, SV, SWQ, SWO, SWS, SOUT, SDBG = 4, 8, 12, 16, 20, 24, 32, 36
    sW, sGrp, sQh, sKh, sWl, sHp, sB = "s48", "s49", "s50", "s51", "s52", "s53", "s54"
    sKV, sT0, sT1, sT2, sC, sRing, sM0K, sM0W, sM0X, sOff = (
        "s55", "s56", "s57", "s58", "s59", "s60", "s61", "s62", "s63", "s64")
    sWqOff, sXOff, sHead, sRet, sThr = "s65", "s66", "s67", "s28", "s29"
    sKW, sKX = "s3", "s47"
    sRb, sCb, sA, sBo, sFl = "s40", "s41", "s42", "s43", "s44"
    XS0 = 131072
    STAT = 155648

    k.salu("s_cmp_ge_u32 s2, 256")
    k.salu("s_cbranch_scc1 K1_END")
    k.salu("s_load_dwordx16 s[32:47], s[0:1], 0")
    code_touch(k, "K1", "K1_CODE_END", "v0", "v2", "v31", 512)
    k.v2("v_lshrrev_b32", "v1", 6, "v0")
    k.v2("v_and_b32", "v0", 63, "v0")
    k.valu(f"v_readfirstlane_b32 {sW}, v1", wr=[sW], rd=["v1"], lane=True)
    k.s2("s_and_b32", sT0, "s2", 7)
    k.s2("s_lshr_b32", sT1, "s2", 3)
    k.s2("s_and_b32", sHp, sT0, 3)
    k.s2("s_lshl_b32", sHp, sHp, 2)
    k.s2("s_and_b32", sT2, sT1, 3)
    k.s2("s_add_u32", sHp, sHp, sT2)
    k.s2("s_mul_i32", sKW, sT2, 10)
    k.s2("s_lshr_b32", sT2, sT1, 2)
    k.s2("s_mul_i32", sOff, sT2, 5)
    k.s2("s_add_u32", sKW, sKW, sOff)
    k.s2("s_lshr_b32", sKW, sKW, 2)
    k.s2("s_sub_u32", sOff, sKW, 10)
    k.salu(f"s_cmp_ge_u32 {sKW}, 10")
    k.salu(f"s_cselect_b32 {sKW}, {sOff}, {sKW}", wr=[sKW])
    k.s2("s_lshr_b32", sB, sT0, 2)
    k.s2("s_lshl_b32", sB, sB, 3)
    k.s2("s_add_u32", sB, sB, sT2)
    k.s2("s_lshr_b32", sGrp, sW, 2)
    k.s2("s_and_b32", sQh, sW, 1)
    k.s2("s_bfe_u32", sKh, sW, "0x10001")
    k.s2("s_and_b32", sWl, sW, 3)
    k.s2("s_lshl_b32", sHead, sHp, 1)
    k.s2("s_add_u32", sHead, sHead, sGrp)
    k.s2("s_lshl_b32", sT0, sB, 5)
    k.s2("s_add_u32", sT0, sT0, sHead)
    k.s2("s_lshl_b32", sKV, sT0, 17)
    k.s2("s_lshl_b32", sT1, sWl, 12)
    k.s2("s_add_u32", sKV, sKV, sT1)
    k.s2("s_lshl_b32", sRing, sGrp, 16)
    k.s2("s_add_u32", sM0K, sRing, sT1)
    k.s2("s_lshl_b32", sM0W, sW, 11)
    k.s2("s_add_u32", sM0W, sM0W, 32768)
    k.s2("s_mul_i32", sM0X, sW, 1536)
    k.s2("s_add_u32", sM0X, sM0X, XS0)
    k.s1("s_mov_b32", sC, hex(f32bits(CSCALE)))
    k.s1("s_mov_b32", sThr, hex(f32bits(opt.get("thr", THRESH))))

    LANE = "v0"
    T0, T1, T2, T3 = "v1", "v2", "v3", "v4"
    vG, vQ, L16 = "v5", "v6", "v7"
    KD = [8, 9, 10, 11]
    KR = [12, 13, 14, 15]
    VD = [16, 17]
    ST = 18
    MC = [18, 19, 20]
    LS = [21, 22, 23]
    VR = [24, 25, 26, 27, 28, 29, 30, 31]
    FR, QF, S0, SP = 32, 64, 112, 136
    ACC = 64
    QA = [32, 112]
    WQD = [24, 25]
    XD = [26, 27]
    WQR = [28, 29, 30, 60]
    XR = [18, 19]
    QW, QR = 20, 21
    STG = 160

    def preg(c):
        return 148 if c == 0 else 160 + 12 * (c - 1)

    def oreg(j, qt):
        o = j * 3 + qt
        return QF + 4 * o if o < 21 else 244 + 4 * (o - 21)

    k.v2("v_lshrrev_b32", vG, 4, LANE)
    k.v2("v_and_b32", vQ, 15, LANE)
    k.v2("v_lshlrev_b32", L16, 4, LANE)
    k.v2("v_lshrrev_b32", T0, 5, LANE)
    k.s2("s_lshl_b32", sT0, sKh, 2)
    k.v2("v_add_u32", T1, sT0, T0)
    k.s2("s_lshl_b32", sT0, sW, 2)
    k.v2("v_add_u32", T0, sT0, T0)
    k.v2("v_lshlrev_b32", T0, 13, T0)
    k.s2("s_lshl_b32", sT0, sHp, 9)
    k.v2("v_add_u32", T0, sT0, T0)
    k.v3("v_bfe_u32", T2, LANE, 4, 1)
    k.v3("v_lshl_add_u32", T0, T2, 8, T0)
    for i in range(2):
        k.v2("v_add_u32", T2, 2 * i, T1)
        k.v2("v_lshlrev_b32", T2, 1, T2)
        k.v2("v_xor_b32", T2, T2, vQ)
        k.v3("v_lshl_add_u32", v(WQD[i]), T2, 4, T0)
        if i:
            k.v2("v_add_u32", v(WQD[i]), 2 * 8192 - 1024, v(WQD[i]))
    k.s2("s_mul_i32", sT0, sW, 12)
    k.v2("v_lshrrev_b32", T0, 3, LANE)
    k.v2("v_add_u32", T0, sT0, T0)
    k.v2("v_and_b32", T3, 7, LANE)
    k.s2("s_mul_i32", sT1, sB, 96)
    k.s1("s_mov_b32", sT2, 1280)
    for i in range(2):
        if i:
            k.v2("v_add_u32", T0, 8, T0)
        k.v3("v_bfe_u32", T1, T0, 1, 3)
        k.v2("v_xor_b32", T1, T1, T3)
        k.v2("v_add_u32", T2, sT1, T0)
        k.v2("v_mul_lo_u32", T2, T2, sT2)
        k.v3("v_lshl_add_u32", v(XD[i]), T1, 4, T2)
        if i:
            k.v2("v_subrev_u32", v(XD[i]), 1024, v(XD[i]))

    k.salu("s_waitcnt lgkmcnt(0)")
    build_srd(k, SX, 32, X_BYTES)
    build_srd(k, SWQ, 38, W_BYTES)
    build_srd(k, SWS, 46, WS_BYTES)
    k.s1("s_mov_b32", sKX, sKW)
    k.stamp()

    def run(ps):
        for p in ps:
            p()

    def weave(prim, *secs):
        secs = [(list(l), st, sd, per) for (l, st, sd, per) in secs]
        for i, p in enumerate(prim):
            p()
            for (l, st, sd, per) in secs:
                if i >= st and (i - st) % sd == 0:
                    for _ in range(per):
                        if l:
                            l.pop(0)()
        for (l, st, sd, per) in secs:
            run(l)

    def wqs_off(pos):
        return (pos & 1) * 16384 + (pos >> 1) * 65536

    def setm0(base, off):
        if off:
            k.s2("s_add_u32", "m0", base, off)
        else:
            k.s1("s_mov_b32", "m0", base)

    def bump(ctr):
        k.s2("s_add_u32", ctr, ctr, 1)
        k.salu(f"s_cmp_eq_u32 {ctr}, 10")
        k.salu(f"s_cselect_b32 {ctr}, 0, {ctr}", wr=[ctr])

    def dma_wq(c):
        def p0():
            setm0(sM0W, wqs_off(c % 4))
            if c % 2 == 0:
                k.s2("s_lshl_b32", sWqOff, sKW, 19)
            else:
                k.s2("s_add_u32", sWqOff, sWqOff, 262144)
            k.vmem(f"buffer_load_dwordx4 {v(WQD[0])}, {sr(SWQ, 4)}, {sWqOff} offen lds",
                   rd=[v(WQD[0]), sWqOff], tag=("wq", c), dma=True)
            k.vmem(f"buffer_load_dwordx4 {v(WQD[1])}, {sr(SWQ, 4)}, {sWqOff} offen offset:1024 lds",
                   rd=[v(WQD[1]), sWqOff], tag=("wq", c), dma=True)
            if c % 2 == 1:
                bump(sKW)
        return [p0]

    def dma_x(j):
        def p0():
            setm0(sM0X, (j & 1) * 12288)
            k.s2("s_lshl_b32", sXOff, sKX, 7)
            k.vmem(f"buffer_load_dwordx4 {v(XD[0])}, {sr(SX, 4)}, {sXOff} offen lds",
                   rd=[v(XD[0]), sXOff], tag=("x", j), dma=True)
            k.salu("s_mov_b32 exec_hi, 0")
            k.vmem(f"buffer_load_dwordx4 {v(XD[1])}, {sr(SX, 4)}, {sXOff} offen offset:1024 lds",
                   rd=[v(XD[1]), sXOff], tag=("x", j), dma=True)
            k.salu("s_mov_b32 exec_hi, -1")
            bump(sKX)
        return [p0]

    run(dma_x(0) + dma_wq(0) + dma_wq(1))
    build_srd(k, SK, 34, KV_BYTES)
    build_srd(k, SV, 36, KV_BYTES)
    build_srd(k, SWO, 40, W_BYTES)
    build_srd(k, SOUT, 42, OUT_BYTES)
    build_srd(k, SDBG, 44, 256)
    k.v2("v_xor_b32", T0, vQ, vG)
    k.v2("v_lshlrev_b32", T0, 4, T0)
    k.v3("v_lshl_add_u32", v(KD[0]), vG, 8, T0)
    for i in range(1, 4):
        k.v2("v_xor_b32", v(KD[i]), 64 * i, v(KD[0]))
    k.v2("v_lshlrev_b32", T0, 1, vG)
    k.v2("v_xor_b32", T0, T0, vQ)
    k.v2("v_lshlrev_b32", T0, 4, T0)
    k.v3("v_lshl_add_u32", v(VD[0]), vG, 8, T0)
    k.v2("v_xor_b32", v(VD[1]), 128, v(VD[0]))
    k.v3("v_bfe_u32", T0, LANE, 2, 2)
    k.v2("v_and_b32", T1, 1, vG)
    k.v3("v_lshl_add_u32", T1, T1, 2, T0)
    k.v3("v_lshl_add_u32", T2, vG, 3, T0)
    k.v2("v_lshlrev_b32", T2, 9, T2)
    k.v2("v_and_b32", T3, 3, LANE)
    k.v3("v_lshl_add_u32", T2, T3, 3, T2)
    k.s2("s_lshl_b32", sT0, sGrp, 8)
    k.s2("s_add_u32", sT0, sT0, 32768)
    k.v2("v_add_u32", T2, sT0, T2)
    k.s2("s_lshl_b32", sT0, sKh, 2)
    k.v2("v_xor_b32", T1, sT0, T1)
    for dt in range(4):
        k.v2("v_xor_b32", T3, dt, T1)
        k.v3("v_lshl_add_u32", v(WQR[dt]), T3, 5, T2)
    k.s2("s_mul_i32", sT0, sQh, 48 * 128)
    k.s2("s_add_u32", sT0, sT0, XS0)
    k.v2("v_lshlrev_b32", T0, 7, vQ)
    k.v2("v_add_u32", T0, sT0, T0)
    k.v2("v_lshrrev_b32", T1, 1, vQ)
    k.v2("v_xor_b32", T1, T1, vG)
    k.v3("v_lshl_add_u32", v(XR[0]), T1, 4, T0)
    k.v2("v_xor_b32", v(XR[1]), 64, v(XR[0]))
    k.s2("s_mul_i32", sT0, sQh, 12 * 1024)
    k.s2("s_add_u32", sT0, sT0, sRing)
    k.s2("s_add_u32", sT0, sT0, 32768)
    k.v2("v_add_u32", v(QR), sT0, L16)
    k.s2("s_lshl_b32", sT1, sKh, 11)
    k.s2("s_add_u32", sT0, sT0, sT1)
    k.v2("v_lshrrev_b32", T0, 1, vG)
    k.v2("v_lshlrev_b32", T0, 8, T0)
    k.v3("v_lshl_add_u32", T0, vQ, 4, T0)
    k.v2("v_and_b32", T1, 1, vG)
    k.v3("v_lshl_add_u32", T0, T1, 3, T0)
    k.v2("v_add_u32", v(QW), sT0, T0)
    k.s2("s_lshl_b32", sT0, sKh, 13)
    k.s2("s_add_u32", sT0, sT0, sRing)
    k.v2("v_xor_b32", T0, vG, vQ)
    k.v2("v_lshlrev_b32", T0, 4, T0)
    k.v3("v_lshl_add_u32", T0, vQ, 8, T0)
    k.v2("v_add_u32", v(KR[0]), sT0, T0)
    for ds_ in range(1, 4):
        k.v2("v_xor_b32", v(KR[ds_]), 64 * ds_, v(KR[0]))
    k.s2("s_and_b32", sT0, "s2", 7)
    k.s2("s_lshr_b32", sT1, "s2", 3)
    k.s2("s_lshr_b32", sRb, sT0, 1)
    k.s2("s_lshl_b32", sRb, sRb, 3)
    k.s2("s_lshr_b32", sT2, sT1, 2)
    k.s2("s_add_u32", sRb, sRb, sT2)
    k.s2("s_and_b32", sCb, sT0, 1)
    k.s2("s_lshl_b32", sCb, sCb, 2)
    k.s2("s_and_b32", sT2, sT1, 3)
    k.s2("s_add_u32", sCb, sCb, sT2)
    k.s2("s_lshl_b32", sA, sRb, 7)
    k.s2("s_lshl_b32", sT0, sW, 3)
    k.s2("s_add_u32", sA, sA, sT0)
    k.s2("s_mul_i32", sA, sA, 3072)
    if OWS:
        k.s2("s_add_u32", sA, sA, OWS)
    k.s2("s_mul_i32", sBo, sCb, 5)
    k.s2("s_mul_i32", sT0, sW, 320)
    k.s2("s_add_u32", sBo, sBo, sT0)
    k.s2("s_lshl_b32", sBo, sBo, 10)
    k.s2("s_add_u32", sBo, sBo, WOT)
    sRho = "s46"
    k.s2("s_lshr_b32", sT1, "s2", 3)
    k.s2("s_lshr_b32", sRho, sT1, 2)
    k.s2("s_and_b32", sT1, sT1, 3)
    k.s2("s_add_u32", sRho, sRho, sT1)
    k.s2("s_lshl_b32", sFl, sB, 5)
    k.s2("s_add_u32", sFl, sFl, sHead)
    k.s2("s_lshl_b32", sFl, sFl, 8)
    k.s2("s_add_u32", sFl, sFl, FLG)
    k.salu(f"s_cmp_eq_u32 {sWl}, 0")
    k.salu(f"s_cselect_b32 {sFl}, {sFl}, {OOB}", wr=[sFl])
    SB = STAT + 4096
    k.s2("s_lshl_b32", sT0, sW, 2)
    k.s2("s_mul_i32", sT1, sGrp, 48)
    k.s2("s_add_u32", sT0, sT0, sT1)
    k.s2("s_add_u32", sT0, sT0, SB)
    k.v1("v_mov_b32", T0, sT0)
    k.v1("v_mov_b32", T1, 0)
    k.ds(f"ds_write_b32 {T0}, {T1}", rd=[T0, T1], tag="sbz")

    sN0, sN1 = "s30", "s31"

    def flag_store(saddr, srd=SWS):
        k.v1("v_mov_b32", "v2", sN0)
        k.v1("v_mov_b32", "v3", sN1)
        k.v1("v_mov_b32", T0, 0)
        k.salu("s_mov_b64 exec, 1")
        k.vmem(f"buffer_store_dwordx2 v[2:3], {T0}, {sr(srd, 4)}, {saddr} offen sc1", rd=["v2", "v3", T0, saddr], tag="flag")
        k.salu("s_mov_b64 exec, -1")
        k.nop(2)

    k.salu("s_memrealtime s[30:31]")
    k.s2("s_or_b32", sT0, "s2", sW)
    k.salu(f"s_cmp_eq_u32 {sT0}, 0")
    k.salu(f"s_cselect_b32 {sT0}, 0, {OOB}", wr=[sT0])
    k.salu("s_waitcnt lgkmcnt(0)")
    k.s2("s_or_b32", sN1, sN1, "0x80000000")
    flag_store(sT0, SDBG)
    run(dma_x(1) + dma_wq(2) + dma_wq(3))
    split = len(k.lines)
    k.fence()

    JIT = (G == 0)

    def slot_of(c):
        if JIT:
            return (c + 1) % 2 if c < 8 else [2, 3, 1, 0][(c - 8) % 4]
        return c % 4

    def dma_kv(c, staged=None):
        slot = slot_of(c)
        cc = c % 8

        def piece(i):
            def p():
                if staged is None:
                    setm0(sM0K, slot * 16384)
                if cc:
                    k.s2("s_add_u32", sOff, sKV, cc * 16384)
                else:
                    k.s1("s_mov_b32", sOff, sKV)
                a, srd = (v(KD[i]), SK) if c < 8 else (v(VD[i & 1]), SV)
                if staged is None:
                    k.vmem(f"buffer_load_dwordx4 {a}, {sr(srd, 4)}, {sOff} offen offset:{i * 1024}{NT} lds",
                           rd=[a, sOff], tag=("kv", c), dma=True)
                else:
                    d = staged + 4 * i
                    k.vmem(f"buffer_load_dwordx4 {vr(d, 4)}, {a}, {sr(srd, 4)}, {sOff} offen offset:{i * 1024}{NT}",
                           wr=vs(d, 4), rd=[a, sOff], tag=("kv", c))
            return p
        return [piece(i) for i in range(4)]

    if G == 0:
        NSTG = 6
        sched = [opt.get(f"a{n}", d) for n, d in enumerate([8, 8, 11, 11, 14, 14, 17, 17])]
    else:
        NSTG = opt.get("nstg1", 2)
        sched = [opt.get(f"b{n}", d) for n, d in enumerate([19, 19, 20, 20, 21, 22, 23, 24])]
    issue = {}
    for n in range(2 + NSTG):
        issue.setdefault(sched[n], []).extend(dma_kv(n, None if n < 2 else STG + 16 * (n - 2)))

    WOL = 0
    WO_DMA, WO_DO, WO_SIG = opt.get("wodma", 0), opt.get("wodo", 4), opt.get("wosig", 7)
    assert WO_DO < sched[0]

    def wo_dma():
        k.s2("s_lshr_b32", sT0, "s2", 1)
        k.s2("s_lshl_b32", sT0, sT0, 5)
        k.s2("s_lshl_b32", sT1, sW, 2)
        k.s2("s_add_u32", sT0, sT0, sT1)
        k.s2("s_mul_i32", sT0, sT0, 1280)
        k.s2("s_and_b32", sT2, "s2", 1)
        k.s2("s_mul_i32", sT2, sT2, 640)
        k.s2("s_add_u32", sT0, sT0, sT2)
        k.s2("s_mul_i32", sT1, sW, 4 * 640)
        if WOL:
            k.s2("s_add_u32", sT1, sT1, WOL)
        k.salu("s_mov_b32 exec_hi, 0xff")
        for i in range(4):
            k.s1("s_mov_b32", "m0", sT1)
            k.vmem(f"buffer_load_dwordx4 {L16}, {sr(SWO, 4)}, {sT0} offen lds", rd=[L16, sT0], tag="wo", dma=True)
            k.s2("s_add_u32", sT0, sT0, 1280)
            k.s2("s_add_u32", sT1, sT1, 640)
        k.salu("s_mov_b32 exec_hi, -1")

    WD = 144
    NWO = 3 if G == 0 else 2

    def wo_read():
        k.v3("v_bfe_u32", T0, LANE, 2, 2)
        k.v3("v_lshl_add_u32", T0, vG, 2, T0)
        k.v2("v_mul_u32_u24", T0, 640, T0)
        k.v2("v_and_b32", T1, 3, LANE)
        k.v3("v_lshl_add_u32", T0, T1, 3, T0)
        k.s2("s_lshl_b32", sT0, sW, 5)
        if WOL:
            k.s2("s_add_u32", sT0, sT0, WOL)
        k.v2("v_add_u32", T0, sT0, T0)
        for i in range(NWO):
            for u in range(2):
                d = WD + i * 4 + 2 * u
                k.ds(f"ds_read_b64_tr_b16 {vr(d, 2)}, {T0} offset:{u * 10240 + i * 256}",
                     wr=vs(d, 2), rd=[T0], tag="wor")

    def wo_store():
        k.s2("s_mul_i32", sT0, "s2", 20)
        k.s2("s_add_u32", sT0, sT0, sW)
        k.s2("s_lshl_b32", sT0, sT0, 10)
        k.s2("s_add_u32", sT0, sT0, WOT)
        for i in range(NWO):
            k.vmem(f"buffer_store_dwordx4 {vr(WD + 4 * i, 4)}, {L16}, {sr(SWS, 4)}, {sT0} offen sc1",
                   rd=vs(WD + 4 * i, 4) + [L16, sT0], tag="wost", store_data=vs(WD + 4 * i, 4))
            if i < NWO - 1:
                k.s2("s_add_u32", sT0, sT0, 8192)

    def w_signal():
        k.s2("s_lshl_b32", sT2, "s2", 6)
        k.s2("s_add_u32", sT2, sT2, WFL)
        k.salu(f"s_cmp_eq_u32 {sW}, 0")
        k.salu(f"s_cselect_b32 {sT2}, {sT2}, {OOB}", wr=[sT2])
        flag_store(sT2)

    NV = 62

    def nonce_load():
        k.v1("v_mov_b32", v(61), 0)
        k.vmem(f"buffer_load_dwordx2 {vr(NV, 2)}, v61, {sr(SDBG, 4)}, 0 offen sc1", wr=vs(NV, 2), rd=["v61"], tag="nonce")

    def nonce_check():
        name = f"K1_N{sfx}"
        k.wait_vm("nonce")
        k.s1("s_mov_b32", sT1, 0)
        k.label(f"{name}_CMP")
        k._emit(f"v_readfirstlane_b32 {sN0}, v{NV}")
        k._emit(f"v_readfirstlane_b32 {sN1}, v{NV + 1}")
        k._emit(f"s_add_u32 {sT1}, {sT1}, 1")
        k._emit(f"s_cmp_lg_u32 {sN1}, 0")
        k._emit(f"s_cbranch_scc1 {name}_OK")
        k._emit(f"s_cmp_ge_u32 {sT1}, 0x40000")
        k._emit(f"s_cbranch_scc1 {name}_OK")
        k._emit("s_sleep 4")
        k._emit(f"buffer_load_dwordx2 {vr(NV, 2)}, v61, {sr(SDBG, 4)}, 0 offen sc1")
        k._emit("s_waitcnt vmcnt(0)")
        k._emit(f"s_branch {name}_CMP")
        k.label(f"{name}_OK")
        k.nop(4)

    def q_reads(c):
        ops = []
        A = QA[c & 1]
        B = A + 16
        for qt in range(3):
            ops.append(lambda qt=qt: k.ds(
                f"ds_read_b128 {vr(B + 4 * qt, 4)}, {v(XR[c & 1])} offset:{qt * 2048 + ((c // 2) & 1) * 12288}",
                wr=vs(B + 4 * qt, 4), rd=[v(XR[c & 1])], tag="qf"))
        for dt in range(4):
            def rd2(dt=dt):
                if c > 0 and c % 2 == 0:
                    k.v2("v_xor_b32", v(WQR[dt]), "0x10000", v(WQR[dt]))
                for u in range(2):
                    k.ds(f"ds_read_b64_tr_b16 {vr(A + 4 * dt + 2 * u, 2)}, {v(WQR[dt])} offset:{u * 2048 + (c & 1) * 16384}",
                         wr=vs(A + 4 * dt + 2 * u, 2), rd=[v(WQR[dt])], tag="qf")
            ops.append(rd2)
        return ops

    k.wait_vm(("x", 0))
    k.wait_vm(("wq", 0))
    k.barrier()
    k.stamp()
    run(q_reads(0))
    for c in range(20):
        k.comment(f"---- qproj kstep {c}")
        if c + 1 < 20:
            k.wait_vm(("x", (c + 1) // 2))
            k.wait_vm(("wq", c + 1))
        if c == WO_DO:
            k.wait_vm("wo")
        if c == WO_SIG - 1:
            nonce_check()
        if c == WO_SIG:
            k.wait_vm("wost")
        k.wait_lg0()
        k.barrier()
        if c in (3, 7, 11, 15):
            k.stamp()
        pieces = []
        if c % 2 == 1 and (c + 1) // 2 + 1 < 10:
            pieces += dma_x((c + 1) // 2 + 1)
        if c + 4 < 20:
            pieces += dma_wq(c + 4)
        if c == WO_DMA:
            pieces.append(wo_dma)
        if c == WO_DO + 1:
            pieces.append(wo_store)
        if c == WO_SIG - 4:
            pieces.insert(0, nonce_load)
        if c == WO_SIG and G == 0:
            pieces.append(w_signal)
        pieces += issue.get(c, [])
        A = QA[c & 1]
        B = A + 16
        mf = []
        for dt in range(4):
            for qt in range(3):
                d = ACC + (dt * 3 + qt) * 4
                mf.append(lambda d=d, dt=dt, qt=qt: k.mfma(d, A + 4 * dt, B + 4 * qt, d if c else None))
        rds = q_reads(c + 1) if c + 1 < 20 else []
        if c == WO_DO:
            rds.append(wo_read)
        weave(mf, (rds, 0, 1, 1), (pieces, opt.get("qdma0", 1) if G == 0 else opt.get("qdma1", 7), 3, 1))
    k.stamp()
    TQ = 32
    for dt in range(4):
        for qt in range(3):
            d = ACC + (dt * 3 + qt) * 4
            t = TQ + (dt * 3 + qt) * 2
            k.v2("v_cvt_pk_bf16_f32", v(t), v(d), v(d + 1))
            k.v2("v_cvt_pk_bf16_f32", v(t + 1), v(d + 2), v(d + 3))
            k.ds(f"ds_write_b64 {v(QW)}, {vr(t, 2)} offset:{qt * 4096 + dt * 512}", rd=[v(QW)] + vs(t, 2), tag="qw")
    k.v3("v_bfe_u32", T0, LANE, 2, 2)
    k.v2("v_and_b32", T1, 1, vG)
    k.v3("v_lshl_add_u32", T1, T1, 2, T0)
    k.s2("s_lshl_b32", sT0, sKh, 2)
    k.v2("v_xor_b32", T1, sT0, T1)
    k.v3("v_lshl_add_u32", T2, vG, 2, T0)
    k.v2("v_lshlrev_b32", T2, 8, T2)
    k.v2("v_and_b32", T3, 3, LANE)
    k.v3("v_lshl_add_u32", T2, T3, 3, T2)
    k.s2("s_lshl_b32", sT0, sKh, 13)
    k.s2("s_add_u32", sT0, sT0, sRing)
    k.v2("v_add_u32", T2, sT0, T2)
    for j in range(8):
        k.v2("v_xor_b32", T3, j, T1)
        k.v3("v_lshl_add_u32", v(VR[j]), T3, 5, T2)

    def k_reads(c):
        slot = slot_of(c)
        ops = []
        for t in range(2):
            for ds_ in range(4):
                d = FR + (t * 4 + ds_) * 4
                ops.append(lambda d=d, t=t, ds_=ds_: k.ds(
                    f"ds_read_b128 {vr(d, 4)}, {v(KR[ds_])} offset:{slot * 16384 + t * 4096}",
                    wr=vs(d, 4), rd=[v(KR[ds_])], tag=("kf", t, ds_)))
        return ops

    def v_reads(c, half):
        slot = slot_of(c)
        ops = []
        for j in range(4 * half, 4 * half + 4):
            for u in range(2):
                d = FR + j * 4 + 2 * u
                ops.append(lambda d=d, j=j, u=u: k.ds(
                    f"ds_read_b64_tr_b16 {vr(d, 2)}, {v(VR[j])} offset:{slot * 16384 + u * 4096}",
                    wr=vs(d, 2), rd=[v(VR[j])], tag=("vf", j)))
        return ops

    def sreg(qt, t):
        return S0 + (qt * 2 + t) * 4

    def xlane3(op, rs, tmps):
        for sw in ("v_permlane32_swap_b32", "v_permlane16_swap_b32"):
            for r, t in zip(rs, tmps):
                k.v1("v_mov_b32", v(t), v(r))
            for r, t in zip(rs, tmps):
                k.valu(f"{sw} {v(r)}, {v(t)}", wr=[v(r), v(t)], rd=[v(r), v(t)], perm=True)
            for r, t in zip(rs, tmps):
                k.v2(op, v(r), v(r), v(t))

    def max8x3(dsts):
        for qt in range(3):
            b = sreg(qt, 0)
            k.v3("v_max3_f32", v(dsts[qt]), v(b), v(b + 1), v(b + 2))
        for i in (3, 5):
            for qt in range(3):
                b = sreg(qt, 0)
                k.v3("v_max3_f32", v(dsts[qt]), v(dsts[qt]), v(b + i), v(b + i + 1))
        for qt in range(3):
            b = sreg(qt, 0)
            k.v2("v_max_f32", v(dsts[qt]), v(dsts[qt]), v(b + 7))

    sites = []

    def s_mfma(c):
        ops = []
        for t in range(2):
            for ds_ in range(4):
                for qt in range(3):
                    def op(t=t, ds_=ds_, qt=qt):
                        if qt == 0:
                            k.wait_lg(("kf", t, ds_))
                        d = sreg(qt, t)
                        k.mfma(d, FR + (t * 4 + ds_) * 4, QF + (qt * 4 + ds_) * 4, d if ds_ else None)
                    ops.append(op)
        return ops

    def softmax(c):
        ops = []

        def fm(r0):
            for r in range(r0, r0 + 4):
                for qt in range(3):
                    x = sreg(qt, 0) + r
                    k.v3("v_fma_f32", v(x), v(x), sC, f"-{v(MC[qt])}")

        def head():
            k.comment(f"softmax {c}")
            if c == 0:
                max8x3(MC)
                xlane3("v_max_f32", MC, [SP, SP + 1, SP + 2])
                for qt in range(3):
                    k.v2("v_mul_f32", v(MC[qt]), sC, v(MC[qt]))
            fm(0)

        def check():
            if c > 0:
                max8x3([SP, SP + 1, SP + 2])
                k.v3("v_max3_f32", v(SP + 3), v(SP), v(SP + 1), v(SP + 2))
                k.valu(f"v_cmp_lt_f32 vcc, {sThr}, {v(SP + 3)}", wr=["vcc"], rd=[sThr, v(SP + 3)])
                k.s1("s_mov_b32", sRet, c)
                k.nop(4)
                k.salu(f"s_cbranch_vccnz K1_SLOW{sfx}")
                k.label(f"K1_RET{c}{sfx}")
                sites.append(c)
                k.fence()
        ops += [head, lambda: fm(4), check]

        def body(r):
            if r < 8:
                for qt in range(3):
                    x = sreg(qt, 0) + r
                    k.v1("v_exp_f32", v(x), v(x), trans=True)
            if r >= 1:
                rr = r - 1
                for qt in range(3):
                    b = sreg(qt, 0)
                    if c == 0 and rr == 0:
                        continue
                    if c == 0 and rr == 1:
                        k.v2("v_add_f32", v(LS[qt]), v(b), v(b + 1))
                    else:
                        k.v2("v_add_f32", v(LS[qt]), v(LS[qt]), v(b + rr))
                if rr % 2 == 1:
                    for qt in range(3):
                        b = sreg(qt, 0)
                        k.v2("v_cvt_pk_bf16_f32", v(preg(c) + qt * 4 + rr // 2), v(b + rr - 1), v(b + rr))
        for r in range(9):
            ops.append(lambda r=r: body(r))
        return ops

    def pv_mfma(c, half):
        cv = c - 8
        ops = []
        for j in range(4 * half, 4 * half + 4):
            for qt in range(3):
                def op(j=j, qt=qt):
                    if qt == 0:
                        k.wait_lg(("vf", j))
                    d = oreg(j, qt)
                    k.mfma(d, FR + j * 4, preg(cv) + qt * 4, d if cv else None)
                ops.append(op)
        return ops

    def stage_out(n):
        k.wait_vm(("kv", n))
        k.s2("s_add_u32", sT2, sM0K, slot_of(n) * 16384)
        k.v2("v_add_u32", T3, sT2, L16)
        for i in range(4):
            d = STG + 16 * (n - 2) + 4 * i
            k.ds(f"ds_write_b128 {T3}, {vr(d, 4)} offset:{i * 1024}", rd=[T3] + vs(d, 4), tag="stg")

    LEAD = 3 if G == 0 else opt.get("lead1", 3)
    if G == 0:
        so_at = {n: n - 1 for n in range(2, 8)}
        dma_at = {8: 1, 9: 1}
        dma_at.update({n: n - 3 for n in range(10, 16)})
    else:
        so_at = {n: (1 if n < 4 else n - 2) for n in range(2, 2 + NSTG)}
        dma_at = {n: max(1, n - LEAD) for n in range(2 + NSTG, 16)}

    sEx = "s62"
    SBA = "v0"
    k.s2("s_lshl_b32", sEx, 1, sWl)
    k.v2("v_and_b32", T0, 3, LANE)
    k.v2("v_lshlrev_b32", T0, 2, T0)
    k.v2("v_add_u32", SBA, SB + G * 64, T0)
    tick = [0]

    def softbar():
        tick[0] += 1
        t = tick[0]
        lab = f"K1_SB{t}{sfx}"
        k.wait_lg0()
        k.v1("v_mov_b32", T0, t)
        k.salu(f"s_mov_b32 exec_lo, {sEx}")
        k.salu("s_mov_b32 exec_hi, 0")
        k._emit(f"ds_write_b32 {SBA}, {T0}")
        k.salu("s_mov_b64 exec, -1")
        k.label(lab)
        k._emit(f"ds_read_b32 {T0}, {SBA}")
        k._emit("s_waitcnt lgkmcnt(0)")
        k._emit(f"v_cmp_gt_u32 vcc, {t}, {T0}")
        k._emit("s_nop 3")
        k._emit(f"s_cbranch_vccnz {lab}")

    BSL = [148, 168, 188, 72, 92, 112]
    NB, NA = 6, 4
    AB = 208
    OACC = 12
    L16B = "v8"
    sOB, sFc, sLB = "s65", "s66", "s63"
    segs = [[(32 * p, i) for p in range(4) for i in range(4)]] if G == 0 else []
    segs.append([(64 * p + 4, i) for p in range(2) for i in range(4)])
    steps = [st for sg in segs for st in sg]
    NS = len(steps)
    ldsB = {6: 0, 7: 1, 8: 2, 22: 0, 23: 1} if G == 0 else {6: 0, 7: 1}

    def rot_off(j, base, stride):
        C, i = steps[j]
        k.s2("s_add_u32", sOff, sRho, i)
        k.s2("s_and_b32", sOff, sOff, 3)
        if C:
            k.s2("s_add_u32", sOff, sOff, C)
        k.s2("s_mul_i32", sOff, sOff, stride)
        k.s2("s_add_u32", sOff, sOff, base)

    def loadB(j):
        lds = j in ldsB
        ops = []
        for nt in range(5):
            def op(nt=nt):
                if nt == 0:
                    rot_off(j, sBo, 40960)
                    k.s1("s_mov_b32", sOB, sOff)
                a, o = (L16, nt * 1024) if nt < 4 else (L16B, 0)
                if lds:
                    k.s2("s_add_u32", "m0", sLB, ldsB[j] * 5120 + (4096 if nt == 4 else 0))
                    k.vmem(f"buffer_load_dwordx4 {a}, {sr(SWS, 4)}, {sOB} offen offset:{o} sc1 lds",
                           rd=[a, sOB], tag=("bl", j), dma=True)
                else:
                    d = BSL[j % NB] + 4 * nt
                    k.vmem(f"buffer_load_dwordx4 {vr(d, 4)}, {a}, {sr(SWS, 4)}, {sOB} offen offset:{o} sc1",
                           wr=vs(d, 4), rd=[a, sOB], tag=("b", j))
            ops.append(op)
        return ops

    def loadA(j):
        a = AB + (j % NA) * 12
        rot_off(j, sA, 3072)
        for mt in range(3):
            k.vmem(f"buffer_load_dwordx4 {vr(a + 4 * mt, 4)}, {L16}, {sr(SWS, 4)}, {sOff} offen offset:{mt * 1024} sc1",
                   wr=vs(a + 4 * mt, 4), rd=[L16, sOff], tag=("a", j))

    WCHK = opt.get("wchk", 10)

    def flag_load(soff, tag):
        k.vmem(f"buffer_load_dwordx2 v[2:3], {T3}, {sr(SWS, 4)}, {soff} offen sc1", wr=["v2", "v3"],
               rd=[T3, soff], tag=tag)

    def flag_check(soff, name, tag):
        k.wait_vm(tag)
        k.s1("s_mov_b32", sT1, 0)
        k.label(f"{name}_CMP")
        k._emit(f"v_cmp_ne_u64 vcc, s[30:31], v[2:3]")
        k._emit(f"s_add_u32 {sT1}, {sT1}, 1")
        k._emit("s_nop 3")
        k._emit(f"s_cbranch_vccz {name}_OK")
        k._emit(f"s_cmp_ge_u32 {sT1}, 0x40000")
        k._emit(f"s_cbranch_scc1 {name}_OK")
        k._emit(f"s_sleep {opt.get('slp', 4)}")
        k._emit(f"buffer_load_dwordx2 v[2:3], {T3}, {sr(SWS, 4)}, {soff} offen sc1")
        k._emit("s_waitcnt vmcnt(0)")
        k._emit(f"s_branch {name}_CMP")
        k.label(f"{name}_OK")

    sWf = "s45"

    def sync(c):
        if not (2 <= c < 2 + NSTG):
            k.wait_vm(("kv", c))
        if c == WCHK:
            flag_check(sWf, f"K1_W{sfx}", "wp")
        if c == 0:
            k.wait_lg0()
            k.barrier()
        else:
            softbar()
        k.stamp()
        if c == WCHK - 2:
            k.v3("v_bfe_u32", T3, L16, 7, 2)
            k.v3("v_lshl_add_u32", T3, T3, 2, sW)
            k.v2("v_and_b32", T3, 15, T3)
            k.v3("v_bfe_u32", T0, L16, 4, 3)
            k.v3("v_lshl_add_u32", T3, T3, 3, T0)
            k.v2("v_lshlrev_b32", T3, 7, T3)
            k.s2("s_lshr_b32", sWf, sCb, 2)
            k.s2("s_lshl_b32", sWf, sWf, 6)
            k.s2("s_add_u32", sWf, sWf, WFL)
            flag_load(sWf, "wp")

    for c in range(17):
        k.comment(f"---- interval {c}")
        if c < 16:
            sync(c)
        so = [(lambda n=n: stage_out(n)) for n in sorted(so_at) if so_at[n] == c]
        dm = list(issue.get(20 + c, []))
        for n in sorted(dma_at):
            if dma_at[n] == c:
                dm += dma_kv(n)
        if c == 0:
            for ds_ in range(4):
                for qt in range(3):
                    d = QF + (qt * 4 + ds_) * 4
                    k.ds(f"ds_read_b128 {vr(d, 4)}, {v(QR)} offset:{(qt * 4 + ds_) * 1024}",
                         wr=vs(d, 4), rd=[v(QR)], tag="qr")
            run(k_reads(0))
            run(dm)
            run(s_mfma(0))
        elif c <= 8:
            rds = k_reads(c) if c < 8 else v_reads(8, 0)
            weave(softmax(c - 1), (rds, 0, 1, 2), (so, 0, 2, 1), (dm, 3, 1, 1))
            if c < 8:
                run(s_mfma(c))
            else:
                weave(pv_mfma(8, 0), (v_reads(8, 1), 0, 1, 1))
        elif c < 16:
            if c == 13:
                k.v2("v_add_u32", L16B, 4096, L16)
            if c >= 14:
                dm = dm + (loadB(0) + loadB(1) if c == 14 else loadB(2))
            d0, d1 = dm[:(len(dm) + 1) // 2], dm[(len(dm) + 1) // 2:]
            weave(pv_mfma(c - 1, 1), (v_reads(c, 0), 0, 1, 1), (d0, 1, 2, 1))
            weave(pv_mfma(c, 0), (v_reads(c, 1), 0, 1, 1), (d1, 1, 2, 1))
        else:
            run(pv_mfma(15, 1))
    k.stamp()
    SCR = G * 65536 + (16384 if JIT else 0)
    xlane3("v_add_f32", LS, [FR, FR + 1, FR + 2])
    k.s2("s_lshl_b32", sT0, sW, 9)
    k.s2("s_add_u32", sT0, sT0, STAT)
    k.v3("v_lshl_add_u32", T3, vQ, 5, sT0)
    k.ds(f"ds_write_b128 {T3}, {vr(ST, 4)}", rd=[T3] + vs(ST, 4), tag="mw")
    k.ds(f"ds_write_b64 {T3}, {vr(ST + 4, 2)} offset:16", rd=[T3] + vs(ST + 4, 2), tag="mw")
    k.s2("s_mul_i32", sT0, sWl, 12288)
    k.s2("s_add_u32", sT0, sT0, SCR)
    k.v2("v_add_u32", T1, sT0, L16)
    for j in range(4):
        for qt in range(3):
            d = oreg(4 + j, qt)
            k.ds(f"ds_write_b128 {T1}, {vr(d, 4)} offset:{(j * 3 + qt) * 1024}", rd=[T1] + vs(d, 4), tag="mw")
    softbar()
    k.v2("v_xor_b32", T3, 1024, T3)
    k.s2("s_xor_b32", sT1, sWl, 2)
    k.s2("s_mul_i32", sT0, sT1, 12288)
    k.s2("s_add_u32", sT0, sT0, SCR)
    k.v2("v_add_u32", T1, sT0, L16)
    PS = FR
    k.ds(f"ds_read_b128 {vr(PS, 4)}, {T3}", wr=vs(PS, 4), rd=[T3], tag="ps")
    k.ds(f"ds_read_b64 {vr(PS + 4, 2)}, {T3} offset:16", wr=vs(PS + 4, 2), rd=[T3], tag="ps")
    for j in range(4):
        for qt in range(3):
            d = oreg(4 + j, qt)
            k.ds(f"ds_read_b128 {vr(d, 4)}, {T1} offset:{(j * 3 + qt) * 1024}", wr=vs(d, 4), rd=[T1], tag=("po", j))
    k.wait_lg("ps")
    FO = [FR + 8, FR + 9, FR + 10]
    FP = [FR + 12, FR + 13, FR + 14]
    MM = [FR + 16, FR + 17, FR + 18]
    R3 = range(3)
    for qt in R3:
        k.v2("v_max_f32", v(MM[qt]), v(MC[qt]), v(PS + qt))
    for qt in R3:
        k.v2("v_sub_f32", v(FO[qt]), v(MC[qt]), v(MM[qt]))
        k.v2("v_sub_f32", v(FP[qt]), v(PS + qt), v(MM[qt]))
    for qt in R3:
        k.v1("v_exp_f32", v(FO[qt]), v(FO[qt]), trans=True)
        k.v1("v_exp_f32", v(FP[qt]), v(FP[qt]), trans=True)
    for qt in R3:
        k.v2("v_mul_f32", v(MM[qt]), v(FO[qt]), v(LS[qt]))
    for qt in R3:
        k.v3("v_fma_f32", v(MM[qt]), v(FP[qt]), v(PS + 3 + qt), v(MM[qt]))
    for qt in R3:
        k.v1("v_rcp_f32", v(MM[qt]), v(MM[qt]), trans=True)
    for qt in R3:
        k.v2("v_mul_f32", v(FO[qt]), v(FO[qt]), v(MM[qt]))
        k.v2("v_mul_f32", v(FP[qt]), v(FP[qt]), v(MM[qt]))
    k.s2("s_lshl_b32", sT0, sB, 1)
    k.s2("s_add_u32", sT0, sT0, sQh)
    k.s2("s_lshl_b32", sT0, sT0, 7)
    k.s2("s_lshl_b32", sT1, sHead, 2)
    k.s2("s_add_u32", sT0, sT0, sT1)
    k.s2("s_lshl_b32", sT1, sKh, 1)
    k.s2("s_add_u32", sT0, sT0, sT1)
    k.s2("s_mul_i32", sT0, sT0, 3072)
    if OWS:
        k.s2("s_add_u32", sT0, sT0, OWS)
    k.s2("s_add_u32", sT1, sT0, 3072)
    OD = 208
    for jj in range(2):
        for e in range(2):
            j = 2 * jj + e
            k.wait_lg(("po", j))
            for qt in range(3):
                d = oreg(j, qt)
                p = oreg(4 + j, qt)
                for r in range(4):
                    k.v2("v_mul_f32", v(d + r), v(d + r), v(FO[qt]))
                for r in range(4):
                    k.valu(f"v_fmac_f32 {v(d + r)}, {v(p + r)}, {v(FP[qt])}", wr=[v(d + r)],
                           rd=[v(d + r), v(p + r), v(FP[qt])])
                od = OD + (jj * 3 + qt) * 4 + 2 * e
                k.v2("v_cvt_pk_bf16_f32", v(od), v(d), v(d + 1))
                k.v2("v_cvt_pk_bf16_f32", v(od + 1), v(d + 2), v(d + 3))
        for qt in range(3):
            od = OD + (jj * 3 + qt) * 4
            so = sT1 if jj else sT0
            k.vmem(f"buffer_store_dwordx4 {vr(od, 4)}, {L16}, {sr(SWS, 4)}, {so} offen offset:{qt * 1024} sc1",
                   rd=vs(od, 4) + [L16, so], tag="ost", store_data=vs(od, 4))
    k.wait_vm0()
    softbar()
    k.stamp()
    flag_store(sFl)
    k.s2("s_lshl_b32", sLB, sW, 14)
    for j in range(3, NB):
        run(loadB(j))
    for j in sorted(ldsB):
        if j < 16:
            run(loadB(j))
    k.s2("s_lshr_b32", sFl, sRb, 1)
    k.s2("s_lshl_b32", sFl, sFl, 5)
    k.s2("s_lshl_b32", sT0, sW, 1)
    k.s2("s_add_u32", sFl, sFl, sT0)
    k.s2("s_lshl_b32", sFl, sFl, 8)
    k.s2("s_add_u32", sFl, sFl, FLG)
    k.v1("v_mov_b32", T3, 0)
    k.v2("v_add_u32", T0, sLB, L16)

    def fl_load(j):
        k.s2("s_add_u32", sFc, sFl, (steps[j][0] // 4) * 256)
        flag_load(sFc, ("f", j))

    def fl_check(j):
        flag_check(sFc, f"K1_F{j}{sfx}", ("f", j))

    j0 = 0
    for sg in segs:
        j1 = j0 + len(sg)
        fl_load(j0)
        fl_check(j0)
        k.stamp()
        fl_load(j0 + 4)
        for j in range(j0, j0 + NA):
            loadA(j)
        for j in range(j0, j1):
            a = AB + (j % NA) * 12
            b = BSL[j % NB]
            jn = j + NA
            k.wait_vm(("a", j))
            k.wait_vm(("b", j))
            k.wait_lg(("bs", j))
            for nt in range(5):
                for mt in range(3):
                    d = OACC + (nt * 3 + mt) * 4
                    k.mfma(d, b + 4 * nt, a + 4 * mt, d if j else None)
            jb = j + NB
            if jb in ldsB:
                k.wait_vm(("bl", jb))
                for nt in range(5):
                    d = b + 4 * nt
                    k.ds(f"ds_read_b128 {vr(d, 4)}, {T0} offset:{ldsB[jb] * 5120 + nt * 1024}", wr=vs(d, 4), rd=[T0],
                         tag=("bs", jb))
            elif jb < NS:
                run(loadB(jb))
            if jn < j1:
                if jn % 4 == 0:
                    fl_check(jn)
                    if jn + 4 < j1:
                        fl_load(jn + 4)
                loadA(jn)
            if G == 0 and j == 12:
                run(loadB(22))
                run(loadB(23))
        k.stamp()
        j0 = j1
    if G == 1:
        k.stamp()
        k.stamp()
    for t in range(15):
        k.ds(f"ds_write_b128 {T0}, {vr(OACC + 4 * t, 4)} offset:{t * 1024}", rd=[T0] + vs(OACC + 4 * t, 4), tag="w")
    k.wait_lg0()
    k.barrier()
    k.s2("s_lshl_b32", sT0, sW, 10)
    k.v2("v_add_u32", T0, sT0, L16)
    k.v2("v_add_u32", T1, 3 * 16384, T0)
    k.v2("v_add_u32", T3, 6 * 16384, T0)
    RB = 72
    for i in range(2):
        for s_ in range(8):
            d = RB + (i * 8 + s_) * 4
            a_ = [T0, T1, T3][s_ // 3]
            o_ = (s_ % 3) * 16384 + i * 8192
            k.ds(f"ds_read_b128 {vr(d, 4)}, {a_} offset:{o_}", wr=vs(d, 4), rd=[a_], tag=("r", i))
    k.v2("v_mul_u32_u24", T2, 1280, vQ)
    k.v3("v_lshl_add_u32", T2, vG, 3, T2)
    for i in range(2):
        k.s2("s_add_u32", sT0, sW, 8 * i)
        k.s2("s_mul_i32", sT1, sT0, 11)
        k.s2("s_lshr_b32", sT1, sT1, 5)
        k.s2("s_mul_i32", sT2, sT1, 3)
        k.s2("s_sub_u32", sT2, sT0, sT2)
        k.s2("s_mul_i32", sA, sRb, 48)
        k.s2("s_lshl_b32", sT2, sT2, 4)
        k.s2("s_add_u32", sA, sA, sT2)
        k.s2("s_mul_i32", sA, sA, 1280)
        k.s2("s_mul_i32", sBo, sCb, 160)
        k.s2("s_add_u32", sA, sA, sBo)
        k.s2("s_lshl_b32", sT1, sT1, 5)
        k.s2("s_add_u32", sA, sA, sT1)
        if i == 1:
            k.salu(f"s_cmp_lt_u32 {sW}, 7")
            k.salu(f"s_cselect_b32 {sA}, {sA}, {OOB}", wr=[sA])
        k.wait_lg(("r", i))
        d = RB + i * 32
        for step in (16, 8, 4):
            for o in range(0, step):
                k.v2("v_add_f32", v(d + o), v(d + o), v(d + o + step))
        k.v2("v_cvt_pk_bf16_f32", v(d + 4), v(d), v(d + 1))
        k.v2("v_cvt_pk_bf16_f32", v(d + 5), v(d + 2), v(d + 3))
        k.vmem(f"buffer_store_dwordx2 {vr(d + 4, 2)}, {T2}, {sr(SOUT, 4)}, {sA} offen",
               rd=vs(d + 4, 2) + [T2, sA], tag="st")
    if opt.get("ts"):
        k.wait_vm0()
    k.flush_stamps(SWS, sW, TSBASE, 8)
    k.salu("s_endpgm")

    k.label(f"K1_SLOW{sfx}")
    k.nop(8)
    D = [SP, SP + 1, SP + 2]
    F = [SP + 4, SP + 5, SP + 6]
    xlane3("v_max_f32", D, [SP + 8, SP + 9, SP + 10])
    for qt in range(3):
        k.v1("v_ceil_f32", v(D[qt]), v(D[qt]))
        k.v2("v_max_f32", v(D[qt]), 0, v(D[qt]))
        k.v2("v_add_f32", v(MC[qt]), v(MC[qt]), v(D[qt]))
        for r in range(8):
            x = sreg(qt, 0) + r
            k.v2("v_sub_f32", v(x), v(x), v(D[qt]))
        k.v2("v_sub_f32", v(F[qt]), 0, v(D[qt]))
        k.v1("v_exp_f32", v(F[qt]), v(F[qt]), trans=True)
        k.v2("v_mul_f32", v(LS[qt]), v(LS[qt]), v(F[qt]))
    for cc in range(7):
        if cc > 0:
            k.salu(f"s_cmp_le_u32 {sRet}, {cc}")
            k.salu(f"s_cbranch_scc1 K1_SLOW_DONE{sfx}")
        for qt in range(3):
            for r in range(4):
                x = preg(cc) + qt * 4 + r
                a, b = SP + 8, SP + 9
                k.v2("v_lshlrev_b32", v(a), 16, v(x))
                k.v2("v_and_b32", v(b), "0xffff0000", v(x))
                k.v2("v_mul_f32", v(a), v(a), v(F[qt]))
                k.v2("v_mul_f32", v(b), v(b), v(F[qt]))
                k.v2("v_cvt_pk_bf16_f32", v(x), v(a), v(b))
    k.label(f"K1_SLOW_DONE{sfx}")
    k.nop(4)
    for c in sites[:-1]:
        k.salu(f"s_cmp_eq_u32 {sRet}, {c}")
        k.salu(f"s_cbranch_scc1 K1_RET{c}{sfx}")
    k.salu(f"s_branch K1_RET{sites[-1]}{sfx}")
    return k, split


def build(opt):
    k0, split = gen(opt, 0)
    k1, _ = gen(opt, 1)
    lines = k0.lines[:split]
    lines += ["    s_cmp_eq_u32 s49, 1", "    s_cbranch_scc1 K1_G1"]
    lines += k0.lines[split:]
    lines.append("K1_G1:")
    lines += k1.lines[split:]
    lines += ["K1_END:", "    s_endpgm", "K1_CODE_END:"]
    name = NAME + "_kernel"
    out = HEADER
    out += "; @launch grid=(256,1,1) block=(512,1,1) lds=163840\n"
    out += '.amdgcn_target "amdgcn-amd-amdhsa--gfx950"\n.text\n'
    out += f".globl {name}\n.p2align 8\n.type {name},@function\n{name}:\n" + "\n".join(lines) + "\n"
    out += '.section .rodata,"a"\n.p2align 6\n'
    out += kd(name, 256, 102)
    return out, k0


if __name__ == "__main__":
    opt = {}
    path = sys.argv[1] if len(sys.argv) > 1 else f"cdna_kernels/{NAME}.s"
    for a in sys.argv[2:]:
        kk, vv = a.split("=")
        opt[kk] = float(vv) if "." in vv else int(vv)
    txt, k1 = build(opt)
    open(path, "w").write(txt)
    print("wrote", path, len(txt), "bytes; slots", k1.slot, "stamps", k1.nstamp)
```

```python
import sys
import dsl
from dsl import Kern, vr, sr, vs, ss
from gen1 import (NAME, X_BYTES, KV_BYTES, W_BYTES, OUT_BYTES, WS_BYTES, OWS, WOT, CSCALE, TSBASE,
                  f32bits, build_srd, add_stamps, code_touch, HEADER, kd)

dsl.EXACT_VM = True
THRESH = 10.0
FLG = 24 << 20
WFL = 25 << 20
OOB = "0x7f000000"


def v(i):
    return f"v{i}"


def gen(opt, G):
    k = Kern()
    add_stamps(k, opt)
    sfx = f"_{G}"
    NT = " nt" if opt.get("nt", 1) else ""
    SX, SK, SV, SWQ, SWO, SWS, SOUT, SDBG = 4, 8, 12, 16, 20, 24, 32, 36
    sW, sGrp, sQh, sKh, sWl, sHp, sB = "s48", "s49", "s50", "s51", "s52", "s53", "s54"
    sKV, sT0, sT1, sT2, sC, sRing, sM0K, sM0W, sM0X, sOff = (
        "s55", "s56", "s57", "s58", "s59", "s60", "s61", "s62", "s63", "s64")
    sWqOff, sXOff, sHead, sRet, sThr = "s65", "s66", "s67", "s28", "s29"
    sKW, sKX = "s3", "s47"
    sRb, sCb, sA, sBo, sFl = "s40", "s41", "s42", "s43", "s44"
    XS0 = 131072
    STAT = 155648

    k.stamp()
    k.salu("s_cmp_ge_u32 s2, 256")
    k.salu("s_cbranch_scc1 K1_END")
    k.salu("s_load_dwordx16 s[32:47], s[0:1], 0")
    code_touch(k, "K1", "K1_CODE_END", "v0", "v2", "v31", 512)
    k.v2("v_lshrrev_b32", "v1", 6, "v0")
    k.v2("v_and_b32", "v0", 63, "v0")
    k.valu(f"v_readfirstlane_b32 {sW}, v1", wr=[sW], rd=["v1"], lane=True)
    k.s2("s_and_b32", sT0, "s2", 7)
    k.s2("s_lshr_b32", sT1, "s2", 3)
    k.s2("s_and_b32", sHp, sT0, 3)
    k.s2("s_lshl_b32", sHp, sHp, 2)
    k.s2("s_and_b32", sT2, sT1, 3)
    k.s2("s_add_u32", sHp, sHp, sT2)
    k.s2("s_mul_i32", sKW, sT2, 10)
    k.s2("s_lshr_b32", sT2, sT1, 2)
    k.s2("s_mul_i32", sOff, sT2, 5)
    k.s2("s_add_u32", sKW, sKW, sOff)
    k.s2("s_lshr_b32", sKW, sKW, 2)
    k.s2("s_sub_u32", sOff, sKW, 10)
    k.salu(f"s_cmp_ge_u32 {sKW}, 10")
    k.salu(f"s_cselect_b32 {sKW}, {sOff}, {sKW}", wr=[sKW])
    if opt.get("rot", 1) == 0:
        k.s1("s_mov_b32", sKW, 0)
    elif opt.get("rot", 1) == 2:
        k.s2("s_and_b32", sKW, sKW, 1)
        k.s2("s_mul_i32", sKW, sKW, 5)
    k.s2("s_lshr_b32", sB, sT0, 2)
    k.s2("s_lshl_b32", sB, sB, 3)
    k.s2("s_add_u32", sB, sB, sT2)
    k.s2("s_lshr_b32", sGrp, sW, 2)
    k.s2("s_and_b32", sQh, sW, 1)
    k.s2("s_bfe_u32", sKh, sW, "0x10001")
    k.s2("s_and_b32", sWl, sW, 3)
    k.s2("s_lshl_b32", sHead, sHp, 1)
    k.s2("s_add_u32", sHead, sHead, sGrp)
    k.s2("s_lshl_b32", sT0, sB, 5)
    k.s2("s_add_u32", sT0, sT0, sHead)
    k.s2("s_lshl_b32", sKV, sT0, 17)
    k.s2("s_lshl_b32", sT1, sWl, 12)
    k.s2("s_add_u32", sKV, sKV, sT1)
    k.s2("s_lshl_b32", sRing, sGrp, 16)
    k.s2("s_add_u32", sM0K, sRing, sT1)
    k.s2("s_lshl_b32", sM0W, sW, 11)
    k.s2("s_add_u32", sM0W, sM0W, 32768)
    k.s2("s_mul_i32", sM0X, sW, 1536)
    k.s2("s_add_u32", sM0X, sM0X, XS0)
    k.s1("s_mov_b32", sC, hex(f32bits(CSCALE)))
    k.s1("s_mov_b32", sThr, hex(f32bits(opt.get("thr", THRESH))))

    LANE = "v0"
    T0, T1, T2, T3 = "v1", "v2", "v3", "v4"
    vG, vQ, L16 = "v5", "v6", "v7"
    KD = [8, 9, 10, 11]
    KR = [12, 13, 14, 15]
    VD = [16, 17]
    ST = 18
    MC = [18, 19, 20]
    LS = [21, 22, 23]
    VR = [24, 25, 26, 27, 28, 29, 30, 31]
    FR, QF, S0, SP = 32, 64, 112, 136
    ACC = 64
    QA = [32, 112]
    WQD = [24, 25]
    XD = [26, 27]
    WQR = [28, 29, 30, 60]
    XR = [18, 19]
    QW, QR = 20, 21
    STG = 160

    def preg(c):
        return 148 if c == 0 else 160 + 12 * (c - 1)

    def oreg(j, qt):
        o = j * 3 + qt
        return QF + 4 * o if o < 21 else 244 + 4 * (o - 21)

    k.v2("v_lshrrev_b32", vG, 4, LANE)
    k.v2("v_and_b32", vQ, 15, LANE)
    k.v2("v_lshlrev_b32", L16, 4, LANE)
    k.v2("v_lshrrev_b32", T0, 5, LANE)
    k.s2("s_lshl_b32", sT0, sKh, 2)
    k.v2("v_add_u32", T1, sT0, T0)
    k.s2("s_lshl_b32", sT0, sW, 2)
    k.v2("v_add_u32", T0, sT0, T0)
    k.v2("v_lshlrev_b32", T0, 13, T0)
    k.s2("s_lshl_b32", sT0, sHp, 9)
    k.v2("v_add_u32", T0, sT0, T0)
    k.v3("v_bfe_u32", T2, LANE, 4, 1)
    k.v3("v_lshl_add_u32", T0, T2, 8, T0)
    for i in range(2):
        k.v2("v_add_u32", T2, 2 * i, T1)
        k.v2("v_lshlrev_b32", T2, 1, T2)
        k.v2("v_xor_b32", T2, T2, vQ)
        k.v3("v_lshl_add_u32", v(WQD[i]), T2, 4, T0)
        if i:
            k.v2("v_add_u32", v(WQD[i]), 2 * 8192 - 1024, v(WQD[i]))
    k.s2("s_mul_i32", sT0, sW, 12)
    k.v2("v_lshrrev_b32", T0, 3, LANE)
    k.v2("v_add_u32", T0, sT0, T0)
    k.v2("v_and_b32", T3, 7, LANE)
    k.s2("s_mul_i32", sT1, sB, 96)
    k.s1("s_mov_b32", sT2, 1280)
    for i in range(2):
        if i:
            k.v2("v_add_u32", T0, 8, T0)
        k.v3("v_bfe_u32", T1, T0, 1, 3)
        k.v2("v_xor_b32", T1, T1, T3)
        k.v2("v_add_u32", T2, sT1, T0)
        k.v2("v_mul_lo_u32", T2, T2, sT2)
        k.v3("v_lshl_add_u32", v(XD[i]), T1, 4, T2)
        if i:
            k.v2("v_subrev_u32", v(XD[i]), 1024, v(XD[i]))

    k.salu("s_waitcnt lgkmcnt(0)")
    build_srd(k, SX, 32, X_BYTES)
    build_srd(k, SWQ, 38, W_BYTES)
    build_srd(k, SWS, 46, WS_BYTES)
    k.s1("s_mov_b32", sKX, sKW)
    k.stamp()

    def run(ps):
        for p in ps:
            p()

    def weave(prim, *secs):
        secs = [(list(l), st, sd, per) for (l, st, sd, per) in secs]
        for i, p in enumerate(prim):
            p()
            for (l, st, sd, per) in secs:
                if i >= st and (i - st) % sd == 0:
                    for _ in range(per):
                        if l:
                            l.pop(0)()
        for (l, st, sd, per) in secs:
            run(l)

    def wqs_off(pos):
        return (pos & 1) * 16384 + (pos >> 1) * 65536

    def setm0(base, off):
        if off:
            k.s2("s_add_u32", "m0", base, off)
        else:
            k.s1("s_mov_b32", "m0", base)

    def bump(ctr):
        k.s2("s_add_u32", ctr, ctr, 1)
        k.salu(f"s_cmp_eq_u32 {ctr}, 10")
        k.salu(f"s_cselect_b32 {ctr}, 0, {ctr}", wr=[ctr])

    def dma_wq(c):
        def p0():
            setm0(sM0W, wqs_off(c % 4))
            if c % 2 == 0:
                k.s2("s_lshl_b32", sWqOff, sKW, 19)
            else:
                k.s2("s_add_u32", sWqOff, sWqOff, 262144)
            k.vmem(f"buffer_load_dwordx4 {v(WQD[0])}, {sr(SWQ, 4)}, {sWqOff} offen lds",
                   rd=[v(WQD[0]), sWqOff], tag=("wq", c), dma=True)
            k.vmem(f"buffer_load_dwordx4 {v(WQD[1])}, {sr(SWQ, 4)}, {sWqOff} offen offset:1024 lds",
                   rd=[v(WQD[1]), sWqOff], tag=("wq", c), dma=True)
            if c % 2 == 1:
                bump(sKW)
        return [p0]

    def dma_x(j):
        def p0():
            setm0(sM0X, (j & 1) * 12288)
            k.s2("s_lshl_b32", sXOff, sKX, 7)
            k.vmem(f"buffer_load_dwordx4 {v(XD[0])}, {sr(SX, 4)}, {sXOff} offen lds",
                   rd=[v(XD[0]), sXOff], tag=("x", j), dma=True)
            k.salu("s_mov_b32 exec_hi, 0")
            k.vmem(f"buffer_load_dwordx4 {v(XD[1])}, {sr(SX, 4)}, {sXOff} offen offset:1024 lds",
                   rd=[v(XD[1]), sXOff], tag=("x", j), dma=True)
            k.salu("s_mov_b32 exec_hi, -1")
            bump(sKX)
        return [p0]

    run(dma_x(0) + dma_wq(0) + dma_wq(1))
    build_srd(k, SK, 34, KV_BYTES)
    build_srd(k, SV, 36, KV_BYTES)
    build_srd(k, SWO, 40, W_BYTES)
    build_srd(k, SOUT, 42, OUT_BYTES)
    build_srd(k, SDBG, 44, 256)
    k.v2("v_xor_b32", T0, vQ, vG)
    k.v2("v_lshlrev_b32", T0, 4, T0)
    k.v3("v_lshl_add_u32", v(KD[0]), vG, 8, T0)
    for i in range(1, 4):
        k.v2("v_xor_b32", v(KD[i]), 64 * i, v(KD[0]))
    k.v2("v_lshlrev_b32", T0, 1, vG)
    k.v2("v_xor_b32", T0, T0, vQ)
    k.v2("v_lshlrev_b32", T0, 4, T0)
    k.v3("v_lshl_add_u32", v(VD[0]), vG, 8, T0)
    k.v2("v_xor_b32", v(VD[1]), 128, v(VD[0]))
    k.v3("v_bfe_u32", T0, LANE, 2, 2)
    k.v2("v_and_b32", T1, 1, vG)
    k.v3("v_lshl_add_u32", T1, T1, 2, T0)
    k.v3("v_lshl_add_u32", T2, vG, 3, T0)
    k.v2("v_lshlrev_b32", T2, 9, T2)
    k.v2("v_and_b32", T3, 3, LANE)
    k.v3("v_lshl_add_u32", T2, T3, 3, T2)
    k.s2("s_lshl_b32", sT0, sGrp, 8)
    k.s2("s_add_u32", sT0, sT0, 32768)
    k.v2("v_add_u32", T2, sT0, T2)
    k.s2("s_lshl_b32", sT0, sKh, 2)
    k.v2("v_xor_b32", T1, sT0, T1)
    for dt in range(4):
        k.v2("v_xor_b32", T3, dt, T1)
        k.v3("v_lshl_add_u32", v(WQR[dt]), T3, 5, T2)
    k.s2("s_mul_i32", sT0, sQh, 48 * 128)
    k.s2("s_add_u32", sT0, sT0, XS0)
    k.v2("v_lshlrev_b32", T0, 7, vQ)
    k.v2("v_add_u32", T0, sT0, T0)
    k.v2("v_lshrrev_b32", T1, 1, vQ)
    k.v2("v_xor_b32", T1, T1, vG)
    k.v3("v_lshl_add_u32", v(XR[0]), T1, 4, T0)
    k.v2("v_xor_b32", v(XR[1]), 64, v(XR[0]))
    k.s2("s_mul_i32", sT0, sQh, 12 * 1024)
    k.s2("s_add_u32", sT0, sT0, sRing)
    k.s2("s_add_u32", sT0, sT0, 32768)
    k.v2("v_add_u32", v(QR), sT0, L16)
    k.s2("s_lshl_b32", sT1, sKh, 11)
    k.s2("s_add_u32", sT0, sT0, sT1)
    k.v2("v_lshrrev_b32", T0, 1, vG)
    k.v2("v_lshlrev_b32", T0, 8, T0)
    k.v3("v_lshl_add_u32", T0, vQ, 4, T0)
    k.v2("v_and_b32", T1, 1, vG)
    k.v3("v_lshl_add_u32", T0, T1, 3, T0)
    k.v2("v_add_u32", v(QW), sT0, T0)
    k.s2("s_lshl_b32", sT0, sKh, 13)
    k.s2("s_add_u32", sT0, sT0, sRing)
    k.v2("v_xor_b32", T0, vG, vQ)
    k.v2("v_lshlrev_b32", T0, 4, T0)
    k.v3("v_lshl_add_u32", T0, vQ, 8, T0)
    k.v2("v_add_u32", v(KR[0]), sT0, T0)
    for ds_ in range(1, 4):
        k.v2("v_xor_b32", v(KR[ds_]), 64 * ds_, v(KR[0]))
    k.s2("s_and_b32", sT0, "s2", 7)
    k.s2("s_lshr_b32", sT1, "s2", 3)
    k.s2("s_lshr_b32", sRb, sT0, 1)
    k.s2("s_lshl_b32", sRb, sRb, 3)
    k.s2("s_lshr_b32", sT2, sT1, 2)
    k.s2("s_add_u32", sRb, sRb, sT2)
    k.s2("s_and_b32", sCb, sT0, 1)
    k.s2("s_lshl_b32", sCb, sCb, 2)
    k.s2("s_and_b32", sT2, sT1, 3)
    k.s2("s_add_u32", sCb, sCb, sT2)
    k.s2("s_lshl_b32", sA, sRb, 7)
    k.s2("s_lshl_b32", sT0, sW, 3)
    k.s2("s_add_u32", sA, sA, sT0)
    k.s2("s_mul_i32", sA, sA, 3072)
    if OWS:
        k.s2("s_add_u32", sA, sA, OWS)
    k.s2("s_mul_i32", sBo, sW, 320)
    k.s2("s_mul_i32", sT0, sCb, 5)
    k.s2("s_add_u32", sBo, sBo, sT0)
    k.s2("s_lshl_b32", sBo, sBo, 10)
    k.s2("s_add_u32", sBo, sBo, WOT)
    sRho = "s46"
    k.s2("s_lshr_b32", sT1, "s2", 3)
    k.s2("s_lshr_b32", sRho, sT1, 2)
    k.s2("s_and_b32", sT1, sT1, 3)
    k.s2("s_lshl_b32", sT1, sT1, 1)
    k.s2("s_add_u32", sRho, sRho, sT1)
    if not opt.get("orot", 1):
        k.s1("s_mov_b32", sRho, 0)
    k.s2("s_lshl_b32", sFl, sB, 4)
    k.s2("s_add_u32", sFl, sFl, sHp)
    k.s2("s_lshl_b32", sFl, sFl, 8)
    k.s2("s_add_u32", sFl, sFl, FLG)
    k.salu(f"s_cmp_eq_u32 {sW}, 0")
    k.salu(f"s_cselect_b32 {sFl}, {sFl}, {OOB}", wr=[sFl])

    sN0, sN1 = "s30", "s31"

    def flag_store(saddr, srd=SWS):
        k.v1("v_mov_b32", "v2", sN0)
        k.v1("v_mov_b32", "v3", sN1)
        k.v1("v_mov_b32", T0, 0)
        k.salu("s_mov_b64 exec, 1")
        k.vmem(f"buffer_store_dwordx2 v[2:3], {T0}, {sr(srd, 4)}, {saddr} offen sc1", rd=["v2", "v3", T0, saddr], tag="flag")
        k.salu("s_mov_b64 exec, -1")
        k.nop(2)

    k.salu("s_memrealtime s[30:31]")
    k.s2("s_or_b32", sT0, "s2", sW)
    k.salu(f"s_cmp_eq_u32 {sT0}, 0")
    k.salu(f"s_cselect_b32 {sT0}, 0, {OOB}", wr=[sT0])
    k.salu("s_waitcnt lgkmcnt(0)")
    k.s2("s_or_b32", sN1, sN1, "0x80000000")
    flag_store(sT0, SDBG)
    run(dma_x(1) + dma_wq(2) + dma_wq(3))
    split = len(k.lines)
    k.fence()

    JIT = opt.get("jit", 0)

    def slot_of(c):
        if not JIT:
            return c % 4
        return (c + 1) % 2 if c < 8 else [2, 3, 1, 0][(c - 8) % 4]

    def dma_kv(c, staged=None):
        slot = slot_of(c)
        cc = c % 8

        def piece(i):
            def p():
                if staged is None:
                    setm0(sM0K, slot * 16384)
                if cc:
                    k.s2("s_add_u32", sOff, sKV, cc * 16384)
                else:
                    k.s1("s_mov_b32", sOff, sKV)
                a, srd = (v(KD[i]), SK) if c < 8 else (v(VD[i & 1]), SV)
                if staged is None:
                    k.vmem(f"buffer_load_dwordx4 {a}, {sr(srd, 4)}, {sOff} offen offset:{i * 1024}{NT} lds",
                           rd=[a, sOff], tag=("kv", c), dma=True)
                else:
                    d = staged + 4 * i
                    k.vmem(f"buffer_load_dwordx4 {vr(d, 4)}, {a}, {sr(srd, 4)}, {sOff} offen offset:{i * 1024}{NT}",
                           wr=vs(d, 4), rd=[a, sOff], tag=("kv", c))
            return p
        return [piece(i) for i in range(4)]

    NSTG = 6 if JIT else opt.get("nstg", 4)
    sched = [opt.get(f"k{n}", d) for n, d in enumerate([7, 8, 10, 12, 14, 16, 18, 19] if JIT else [7, 10, 13, 16, 19, 20, 21, 22])]
    issue = {}
    for n in range(2 + NSTG):
        issue.setdefault(sched[n], []).extend(dma_kv(n, None if n < 2 else STG + 16 * (n - 2)))

    WOL = 0
    WO_DMA, WO_DO, WO_SIG = opt.get("wodma", 0), opt.get("wodo", 4), opt.get("wosig", 7)
    assert WO_DO < sched[0] - 0

    def wo_dma():
        k.s2("s_lshr_b32", sT0, "s2", 1)
        k.s2("s_lshl_b32", sT0, sT0, 5)
        k.s2("s_lshl_b32", sT1, sW, 2)
        k.s2("s_add_u32", sT0, sT0, sT1)
        k.s2("s_mul_i32", sT0, sT0, 1280)
        k.s2("s_and_b32", sT2, "s2", 1)
        k.s2("s_mul_i32", sT2, sT2, 640)
        k.s2("s_add_u32", sT0, sT0, sT2)
        k.s2("s_mul_i32", sT1, sW, 4 * 640)
        if WOL:
            k.s2("s_add_u32", sT1, sT1, WOL)
        k.salu("s_mov_b32 exec_hi, 0xff")
        for i in range(4):
            k.s1("s_mov_b32", "m0", sT1)
            k.vmem(f"buffer_load_dwordx4 {L16}, {sr(SWO, 4)}, {sT0} offen lds", rd=[L16, sT0], tag="wo", dma=True)
            k.s2("s_add_u32", sT0, sT0, 1280)
            k.s2("s_add_u32", sT1, sT1, 640)
        k.salu("s_mov_b32 exec_hi, -1")

    WD = 144
    NWO = 3 if G == 0 else 2

    def wo_read():
        k.v3("v_bfe_u32", T0, LANE, 2, 2)
        k.v3("v_lshl_add_u32", T0, vG, 2, T0)
        k.v2("v_mul_u32_u24", T0, 640, T0)
        k.v2("v_and_b32", T1, 3, LANE)
        k.v3("v_lshl_add_u32", T0, T1, 3, T0)
        k.s2("s_lshl_b32", sT0, sW, 5)
        if WOL:
            k.s2("s_add_u32", sT0, sT0, WOL)
        k.v2("v_add_u32", T0, sT0, T0)
        for i in range(NWO):
            for u in range(2):
                d = WD + i * 4 + 2 * u
                k.ds(f"ds_read_b64_tr_b16 {vr(d, 2)}, {T0} offset:{u * 10240 + i * 256}",
                     wr=vs(d, 2), rd=[T0], tag="wor")

    def wo_store():
        k.s2("s_mul_i32", sT0, "s2", 20)
        k.s2("s_add_u32", sT0, sT0, sW)
        k.s2("s_lshl_b32", sT0, sT0, 10)
        k.s2("s_add_u32", sT0, sT0, WOT)
        for i in range(NWO):
            k.vmem(f"buffer_store_dwordx4 {vr(WD + 4 * i, 4)}, {L16}, {sr(SWS, 4)}, {sT0} offen sc1",
                   rd=vs(WD + 4 * i, 4) + [L16, sT0], tag="wost", store_data=vs(WD + 4 * i, 4))
            if i < NWO - 1:
                k.s2("s_add_u32", sT0, sT0, 8192)

    def w_signal():
        k.s2("s_lshl_b32", sT2, "s2", 6)
        k.s2("s_add_u32", sT2, sT2, WFL)
        k.salu(f"s_cmp_eq_u32 {sW}, 0")
        k.salu(f"s_cselect_b32 {sT2}, {sT2}, {OOB}", wr=[sT2])
        flag_store(sT2)

    def tlb_touch():
        k.s2("s_lshl_b32", sT0, sB, 1)
        k.s2("s_add_u32", sT0, sT0, sQh)
        k.s2("s_lshl_b32", sT0, sT0, 7)
        k.s2("s_lshl_b32", sT1, sHead, 2)
        k.s2("s_add_u32", sT0, sT0, sT1)
        k.s2("s_lshl_b32", sT1, sKh, 1)
        k.s2("s_add_u32", sT0, sT0, sT1)
        k.s2("s_mul_i32", sT0, sT0, 3072)
        k.v1("v_mov_b32", T0, 0)
        k.vmem(f"buffer_load_dword v156, {T0}, {sr(SWS, 4)}, {sT0} offen sc1", wr=["v156"], rd=[T0, sT0], tag="tlb")
        k.s1("s_mov_b32", sT1, FLG + (1 << 19))
        k.vmem(f"buffer_load_dword v157, {T0}, {sr(SWS, 4)}, {sT1} offen sc1", wr=["v157"], rd=[T0, sT1], tag="tlb")
        k.s2("s_mul_i32", sT2, sRb, 48 * 1280)
        k.vmem(f"buffer_load_dword v158, {T0}, {sr(SOUT, 4)}, {sT2} offen sc1", wr=["v158"], rd=[T0, sT2], tag="tlb")

    NV = 62

    def nonce_load():
        k.v1("v_mov_b32", v(61), 0)
        k.vmem(f"buffer_load_dwordx2 {vr(NV, 2)}, v61, {sr(SDBG, 4)}, 0 offen sc1", wr=vs(NV, 2), rd=["v61"], tag="nonce")

    def nonce_check():
        name = f"K1_N{sfx}"
        k.wait_vm("nonce")
        k.s1("s_mov_b32", sT1, 0)
        k.label(f"{name}_CMP")
        k._emit(f"v_readfirstlane_b32 {sN0}, v{NV}")
        k._emit(f"v_readfirstlane_b32 {sN1}, v{NV + 1}")
        k._emit(f"s_add_u32 {sT1}, {sT1}, 1")
        k._emit(f"s_cmp_lg_u32 {sN1}, 0")
        k._emit(f"s_cbranch_scc1 {name}_OK")
        k._emit(f"s_cmp_ge_u32 {sT1}, 0x40000")
        k._emit(f"s_cbranch_scc1 {name}_OK")
        k._emit("s_sleep 4")
        k._emit(f"buffer_load_dwordx2 {vr(NV, 2)}, v61, {sr(SDBG, 4)}, 0 offen sc1")
        k._emit("s_waitcnt vmcnt(0)")
        k._emit(f"s_branch {name}_CMP")
        k.label(f"{name}_OK")
        k.nop(4)

    def q_reads(c):
        ops = []
        A = QA[c & 1]
        B = A + 16
        for qt in range(3):
            ops.append(lambda qt=qt: k.ds(
                f"ds_read_b128 {vr(B + 4 * qt, 4)}, {v(XR[c & 1])} offset:{qt * 2048 + ((c // 2) & 1) * 12288}",
                wr=vs(B + 4 * qt, 4), rd=[v(XR[c & 1])], tag="qf"))
        for dt in range(4):
            def rd2(dt=dt):
                if c > 0 and c % 2 == 0:
                    k.v2("v_xor_b32", v(WQR[dt]), "0x10000", v(WQR[dt]))
                for u in range(2):
                    k.ds(f"ds_read_b64_tr_b16 {vr(A + 4 * dt + 2 * u, 2)}, {v(WQR[dt])} offset:{u * 2048 + (c & 1) * 16384}",
                         wr=vs(A + 4 * dt + 2 * u, 2), rd=[v(WQR[dt])], tag="qf")
            ops.append(rd2)
        return ops

    k.wait_vm(("x", 0))
    k.wait_vm(("wq", 0))
    k.barrier()
    k.stamp()
    run(q_reads(0))
    for c in range(20):
        k.comment(f"---- qproj kstep {c}")
        if c + 1 < 20:
            k.wait_vm(("x", (c + 1) // 2))
            k.wait_vm(("wq", c + 1))
        if c == WO_DO:
            k.wait_vm("wo")
        if c == WO_SIG - 1:
            nonce_check()
        if c == WO_SIG:
            k.wait_vm("wost")
        k.wait_lg0()
        k.barrier()
        if c in (3, 7, 11, 15):
            k.stamp()
        pieces = []
        if c % 2 == 1 and (c + 1) // 2 + 1 < 10:
            pieces += dma_x((c + 1) // 2 + 1)
        if c + 4 < 20:
            pieces += dma_wq(c + 4)
        if c == WO_DMA:
            pieces.append(wo_dma)
        if c == WO_DO + 1:
            pieces.append(wo_store)
        if c == WO_SIG - 4:
            pieces.insert(0, nonce_load)
        if c == opt.get("tlb", -1):
            pieces.append(tlb_touch)
        if c == WO_SIG and G == 0:
            pieces.append(w_signal)
        pieces += issue.get(c, [])
        A = QA[c & 1]
        B = A + 16
        mf = []
        for dt in range(4):
            for qt in range(3):
                d = ACC + (dt * 3 + qt) * 4
                mf.append(lambda d=d, dt=dt, qt=qt: k.mfma(d, A + 4 * dt, B + 4 * qt, d if c else None))
        rds = q_reads(c + 1) if c + 1 < 20 else []
        if c == WO_DO:
            rds.append(wo_read)
        weave(mf, (rds, 0, 1, 1), (pieces, opt.get("qdma0", 1) if G == 0 else opt.get("qdma1", 7), 3, 1))
    k.stamp()
    TQ = 32
    for dt in range(4):
        for qt in range(3):
            d = ACC + (dt * 3 + qt) * 4
            t = TQ + (dt * 3 + qt) * 2
            k.v2("v_cvt_pk_bf16_f32", v(t), v(d), v(d + 1))
            k.v2("v_cvt_pk_bf16_f32", v(t + 1), v(d + 2), v(d + 3))
            k.ds(f"ds_write_b64 {v(QW)}, {vr(t, 2)} offset:{qt * 4096 + dt * 512}", rd=[v(QW)] + vs(t, 2), tag="qw")
    k.v3("v_bfe_u32", T0, LANE, 2, 2)
    k.v2("v_and_b32", T1, 1, vG)
    k.v3("v_lshl_add_u32", T1, T1, 2, T0)
    k.s2("s_lshl_b32", sT0, sKh, 2)
    k.s2("s_xor_b32", sT0, sT0, 4)
    k.v2("v_xor_b32", T1, sT0, T1)
    k.v3("v_lshl_add_u32", T2, vG, 2, T0)
    k.v2("v_lshlrev_b32", T2, 8, T2)
    k.v2("v_and_b32", T3, 3, LANE)
    k.v3("v_lshl_add_u32", T2, T3, 3, T2)
    k.s2("s_lshl_b32", sT0, sKh, 13)
    k.s2("s_add_u32", sT0, sT0, sRing)
    k.v2("v_add_u32", T2, sT0, T2)
    for j in range(8):
        k.v2("v_xor_b32", T3, j, T1)
        k.v3("v_lshl_add_u32", v(VR[j]), T3, 5, T2)

    def k_reads(c):
        slot = slot_of(c)
        ops = []
        for t in range(2):
            for ds_ in range(4):
                d = FR + (t * 4 + ds_) * 4
                ops.append(lambda d=d, t=t, ds_=ds_: k.ds(
                    f"ds_read_b128 {vr(d, 4)}, {v(KR[ds_])} offset:{slot * 16384 + t * 4096}",
                    wr=vs(d, 4), rd=[v(KR[ds_])], tag=("kf", t, ds_)))
        return ops

    def v_reads(c, half):
        slot = slot_of(c)
        ops = []
        for j in range(4 * half, 4 * half + 4):
            for u in range(2):
                d = FR + j * 4 + 2 * u
                ops.append(lambda d=d, j=j, u=u: k.ds(
                    f"ds_read_b64_tr_b16 {vr(d, 2)}, {v(VR[j])} offset:{slot * 16384 + u * 4096}",
                    wr=vs(d, 2), rd=[v(VR[j])], tag=("vf", j)))
        return ops

    def sreg(qt, t):
        return S0 + (qt * 2 + t) * 4

    def xlane3(op, rs, tmps):
        for sw in ("v_permlane32_swap_b32", "v_permlane16_swap_b32"):
            for r, t in zip(rs, tmps):
                k.v1("v_mov_b32", v(t), v(r))
            for r, t in zip(rs, tmps):
                k.valu(f"{sw} {v(r)}, {v(t)}", wr=[v(r), v(t)], rd=[v(r), v(t)], perm=True)
            for r, t in zip(rs, tmps):
                k.v2(op, v(r), v(r), v(t))

    def max8x3(dsts):
        for qt in range(3):
            b = sreg(qt, 0)
            k.v3("v_max3_f32", v(dsts[qt]), v(b), v(b + 1), v(b + 2))
        for i in (3, 5):
            for qt in range(3):
                b = sreg(qt, 0)
                k.v3("v_max3_f32", v(dsts[qt]), v(dsts[qt]), v(b + i), v(b + i + 1))
        for qt in range(3):
            b = sreg(qt, 0)
            k.v2("v_max_f32", v(dsts[qt]), v(dsts[qt]), v(b + 7))

    sites = []

    def s_mfma(c):
        ops = []
        for t in range(2):
            for ds_ in range(4):
                for qt in range(3):
                    def op(t=t, ds_=ds_, qt=qt):
                        if qt == 0:
                            k.wait_lg(("kf", t, ds_))
                        d = sreg(qt, t)
                        k.mfma(d, FR + (t * 4 + ds_) * 4, QF + (qt * 4 + ds_) * 4, d if ds_ else None)
                    ops.append(op)
        return ops

    def softmax(c):
        ops = []

        def fm(r0):
            for r in range(r0, r0 + 4):
                for qt in range(3):
                    x = sreg(qt, 0) + r
                    k.v3("v_fma_f32", v(x), v(x), sC, f"-{v(MC[qt])}")

        def head():
            k.comment(f"softmax {c}")
            if c == 0:
                max8x3(MC)
                xlane3("v_max_f32", MC, [SP, SP + 1, SP + 2])
                for qt in range(3):
                    k.v2("v_mul_f32", v(MC[qt]), sC, v(MC[qt]))
            fm(0)

        def check():
            if c > 0:
                max8x3([SP, SP + 1, SP + 2])
                k.v3("v_max3_f32", v(SP + 3), v(SP), v(SP + 1), v(SP + 2))
                k.valu(f"v_cmp_lt_f32 vcc, {sThr}, {v(SP + 3)}", wr=["vcc"], rd=[sThr, v(SP + 3)])
                k.s1("s_mov_b32", sRet, c)
                k.nop(4)
                k.salu(f"s_cbranch_vccnz K1_SLOW{sfx}")
                k.label(f"K1_RET{c}{sfx}")
                sites.append(c)
                k.fence()
        ops += [head, lambda: fm(4), check]

        def body(r):
            if r < 8:
                for qt in range(3):
                    x = sreg(qt, 0) + r
                    k.v1("v_exp_f32", v(x), v(x), trans=True)
            if r >= 1:
                rr = r - 1
                for qt in range(3):
                    b = sreg(qt, 0)
                    if c == 0 and rr == 0:
                        continue
                    if c == 0 and rr == 1:
                        k.v2("v_add_f32", v(LS[qt]), v(b), v(b + 1))
                    else:
                        k.v2("v_add_f32", v(LS[qt]), v(LS[qt]), v(b + rr))
                if rr % 2 == 1:
                    for qt in range(3):
                        b = sreg(qt, 0)
                        k.v2("v_cvt_pk_bf16_f32", v(preg(c) + qt * 4 + rr // 2), v(b + rr - 1), v(b + rr))
        for r in range(9):
            ops.append(lambda r=r: body(r))
        return ops

    def pv_mfma(c, half):
        cv = c - 8
        ops = []
        for j in range(4 * half, 4 * half + 4):
            for qt in range(3):
                def op(j=j, qt=qt):
                    if qt == 0:
                        k.wait_lg(("vf", j))
                    d = oreg(j, qt)
                    k.mfma(d, FR + j * 4, preg(cv) + qt * 4, d if cv else None)
                ops.append(op)
        return ops

    def stage_out(n):
        k.wait_vm(("kv", n))
        k.s2("s_add_u32", sT2, sM0K, slot_of(n) * 16384)
        k.v2("v_add_u32", T3, sT2, L16)
        for i in range(4):
            d = STG + 16 * (n - 2) + 4 * i
            k.ds(f"ds_write_b128 {T3}, {vr(d, 4)} offset:{i * 1024}", rd=[T3] + vs(d, 4), tag="stg")

    if JIT:
        so_at = {n: n - 1 for n in range(2, 8)}
        dma_at = {8: 1, 9: 1}
        dma_at.update({n: n - 3 for n in range(10, 16)})
    else:
        so_at = {n: (1 if n < 4 else n - 2) for n in range(2, 2 + NSTG)}
        dma_at = {n: max(1, n - 3) for n in range(2 + NSTG, 16)}

    OF = ["", " sc1", " nt", " sc0 sc1"][opt.get("of", 0)]
    BF = ["", " sc1", " sc0", " nt"][opt.get("bf", 1)]
    AF = ["", " sc1", " sc0", " nt"][opt.get("af", 1)]
    BSL = [148, 168, 188, 72, 92, 112]
    NB, NL, NA = 6, 4, 4
    AB = 208
    OACC = 12
    L16B = "v8"

    def rot_off(j, base, stride):
        k.s2("s_add_u32", sOff, sRho, j % 8)
        k.s2("s_and_b32", sOff, sOff, 7)
        if j // 8:
            k.s2("s_add_u32", sOff, sOff, 64)
        k.s2("s_mul_i32", sOff, sOff, stride)
        k.s2("s_add_u32", sOff, sOff, base)

    sOB, sOA = "s65", "s66"

    def loadB(j, lds=False):
        ops = []
        for nt in range(5):
            def op(nt=nt):
                if nt == 0:
                    rot_off(j, sBo, 40960)
                    k.s1("s_mov_b32", sOB, sOff)
                a, o = (L16, nt * 1024) if nt < 4 else (L16B, 0)
                if lds:
                    k.s2("s_add_u32", "m0", sM0X, (j - NB) * 5120 + (4096 if nt == 4 else 0))
                    k.vmem(f"buffer_load_dwordx4 {a}, {sr(SWS, 4)}, {sOB} offen offset:{o}{BF} lds",
                           rd=[a, sOB], tag=("bl", j), dma=True)
                else:
                    d = BSL[j % NB] + 4 * nt
                    k.vmem(f"buffer_load_dwordx4 {vr(d, 4)}, {a}, {sr(SWS, 4)}, {sOB} offen offset:{o}{BF}",
                           wr=vs(d, 4), rd=[a, sOB], tag=("b", j))
            ops.append(op)
        return ops

    def loadA(j):
        a = AB + (j % NA) * 12
        ops = []
        for mt in range(3):
            def op(mt=mt):
                if mt == 0:
                    rot_off(j, sA, 3072)
                k.vmem(f"buffer_load_dwordx4 {vr(a + 4 * mt, 4)}, {L16}, {sr(SWS, 4)}, {sOff} offen offset:{mt * 1024}{AF}",
                       wr=vs(a + 4 * mt, 4), rd=[L16, sOff], tag=("a", j))
            ops.append(op)
        return ops

    WCHK = opt.get("wchk", 10)
    EARLYB = opt.get("earlyb", 1)

    def flag_load(soff, imm, tag):
        k.vmem(f"buffer_load_dwordx2 v[2:3], {T3}, {sr(SWS, 4)}, {soff} offen offset:{imm} sc1", wr=["v2", "v3"],
               rd=[T3] + ([soff] if isinstance(soff, str) else []), tag=tag)

    def flag_check(soff, imm, name, tag):
        k.wait_vm(tag)
        k.s1("s_mov_b32", sT1, 0)
        k.label(f"{name}_CMP")
        k._emit(f"v_cmp_ne_u64 vcc, s[30:31], v[2:3]")
        k._emit(f"s_add_u32 {sT1}, {sT1}, 1")
        k._emit("s_nop 3")
        k._emit(f"s_cbranch_vccz {name}_OK")
        k._emit(f"s_cmp_ge_u32 {sT1}, 0x40000")
        k._emit(f"s_cbranch_scc1 {name}_OK")
        k._emit(f"s_sleep {opt.get('slp', 4)}")
        k._emit(f"buffer_load_dwordx2 v[2:3], {T3}, {sr(SWS, 4)}, {soff} offen offset:{imm} sc1")
        k._emit("s_waitcnt vmcnt(0)")
        k._emit(f"s_branch {name}_CMP")
        k.label(f"{name}_OK")

    sWf = "s45"

    def sync(c):
        if c < 16 and not (2 <= c < 2 + NSTG):
            k.wait_vm(("kv", c))
        if c == WCHK:
            flag_check(sWf, 0, f"K1_W{sfx}", "wp")
        k.wait_lg0()
        k.barrier()
        k.stamp()
        if c == WCHK - 2:
            k.v2("v_and_b32", T3, 7, LANE)
            k.v3("v_bfe_u32", T0, LANE, 3, 1)
            k.v3("v_lshl_add_u32", T3, T0, 6, T3)
            k.v2("v_lshlrev_b32", T3, 7, T3)
            k.s2("s_lshl_b32", sWf, sW, 10)
            k.s2("s_lshr_b32", sT0, sCb, 2)
            k.s2("s_lshl_b32", sT0, sT0, 6)
            k.s2("s_add_u32", sWf, sWf, sT0)
            k.s2("s_add_u32", sWf, sWf, WFL)
            flag_load(sWf, 0, "wp")

    SCR = G * 65536 + (16384 if JIT else 0)
    for c in range(17):
        k.comment(f"---- interval {c}")
        if c < 16:
            sync(c)
        so = [(lambda n=n: stage_out(n)) for n in sorted(so_at) if so_at[n] == c]
        dm = list(issue.get(20 + c, []))
        for n in sorted(dma_at):
            if dma_at[n] == c:
                dm += dma_kv(n)
        if c == 0:
            for ds_ in range(4):
                for qt in range(3):
                    d = QF + (qt * 4 + ds_) * 4
                    k.ds(f"ds_read_b128 {vr(d, 4)}, {v(QR)} offset:{(qt * 4 + ds_) * 1024}",
                         wr=vs(d, 4), rd=[v(QR)], tag="qr")
            run(k_reads(0))
            run(dm)
            if G == 0:
                run(s_mfma(0))
        elif c <= 8:
            rds = k_reads(c) if c < 8 else v_reads(8, 0)
            if G == 1:
                weave(s_mfma(c - 1), (so, 2, 6, 1))
            else:
                run(so)
            weave(softmax(c - 1), (rds, 0, 1, 2), (dm, 3, 1, 1))
            if c < 8:
                if G == 0:
                    run(s_mfma(c))
            else:
                weave(pv_mfma(8, 0), (v_reads(8, 1), 0, 1, 1))
        elif c < 16:
            if c == 11:
                xlane3("v_add_f32", LS, [1, 2, 3])
                k.s2("s_lshl_b32", sT0, sW, 9)
                k.s2("s_add_u32", sT0, sT0, STAT)
                k.v3("v_lshl_add_u32", T3, vQ, 5, sT0)
                k.ds(f"ds_write_b128 {T3}, {vr(ST, 4)}", rd=[T3] + vs(ST, 4), tag="mw")
                k.ds(f"ds_write_b64 {T3}, {vr(ST + 4, 2)} offset:16", rd=[T3] + vs(ST + 4, 2), tag="mw")
            if c == 9:
                k.v2("v_add_u32", L16B, 4096, L16)
            if EARLYB:
                for jb, cb_ in enumerate([opt.get("eb0", 14), opt.get("eb1", 14), opt.get("eb2", 15)]):
                    if cb_ == c:
                        dm = dm + loadB(jb)
            d0, d1 = (dm, []) if G == 0 else ([], dm)
            if len(dm) > 4:
                d0, d1 = dm[:len(dm) // 2], dm[len(dm) // 2:]
            weave(pv_mfma(c - 1, 1), (v_reads(c, 0), 0, 1, 1), (d0, 1, 2, 1))
            weave(pv_mfma(c, 0), (v_reads(c, 1), 0, 1, 1), (d1, 1, 2, 1))
        else:
            k.s2("s_mul_i32", sT0, sWl, 12288)
            k.s2("s_add_u32", sT0, sT0, SCR)
            k.v2("v_add_u32", T1, sT0, L16)
            wr_ops = []
            for j in range(4):
                for qt in range(3):
                    wr_ops.append(lambda j=j, qt=qt: k.ds(
                        f"ds_write_b128 {T1}, {vr(oreg(j, qt), 4)} offset:{(j * 3 + qt) * 1024}",
                        rd=[T1] + vs(oreg(j, qt), 4), tag="mw"))
            k.wait_lg0()
            weave(pv_mfma(15, 1), (wr_ops, 0, 1, 1))
    k.stamp()
    k.wait_lg0()
    k.barrier()
    k.s2("s_lshl_b32", sT0, sW, 9)
    k.s2("s_xor_b32", sT0, sT0, 1024)
    k.s2("s_add_u32", sT0, sT0, STAT)
    k.v3("v_lshl_add_u32", T3, vQ, 5, sT0)
    k.s2("s_xor_b32", sT1, sWl, 2)
    k.s2("s_mul_i32", sT0, sT1, 12288)
    k.s2("s_add_u32", sT0, sT0, SCR)
    k.v2("v_add_u32", T1, sT0, L16)
    PS = FR
    k.ds(f"ds_read_b128 {vr(PS, 4)}, {T3}", wr=vs(PS, 4), rd=[T3], tag="ps")
    k.ds(f"ds_read_b64 {vr(PS + 4, 2)}, {T3} offset:16", wr=vs(PS + 4, 2), rd=[T3], tag="ps")
    for j in range(4):
        for qt in range(3):
            d = oreg(j, qt)
            k.ds(f"ds_read_b128 {vr(d, 4)}, {T1} offset:{(j * 3 + qt) * 1024}", wr=vs(d, 4), rd=[T1], tag=("po", j))
    k.wait_lg("ps")
    FO = [FR + 8, FR + 9, FR + 10]
    FP = [FR + 12, FR + 13, FR + 14]
    MM = [FR + 16, FR + 17, FR + 18]
    R3 = range(3)
    for qt in R3:
        k.v2("v_max_f32", v(MM[qt]), v(MC[qt]), v(PS + qt))
    for qt in R3:
        k.v2("v_sub_f32", v(FO[qt]), v(MC[qt]), v(MM[qt]))
        k.v2("v_sub_f32", v(FP[qt]), v(PS + qt), v(MM[qt]))
    for qt in R3:
        k.v1("v_exp_f32", v(FO[qt]), v(FO[qt]), trans=True)
        k.v1("v_exp_f32", v(FP[qt]), v(FP[qt]), trans=True)
    for qt in R3:
        k.v2("v_mul_f32", v(MM[qt]), v(FO[qt]), v(LS[qt]))
    for qt in R3:
        k.v3("v_fma_f32", v(MM[qt]), v(FP[qt]), v(PS + 3 + qt), v(MM[qt]))
    for qt in R3:
        k.v1("v_rcp_f32", v(MM[qt]), v(MM[qt]), trans=True)
    for qt in R3:
        k.v2("v_mul_f32", v(FO[qt]), v(FO[qt]), v(MM[qt]))
        k.v2("v_mul_f32", v(FP[qt]), v(FP[qt]), v(MM[qt]))
    k.s2("s_lshl_b32", sT0, sB, 1)
    k.s2("s_add_u32", sT0, sT0, sQh)
    k.s2("s_lshl_b32", sT0, sT0, 7)
    k.s2("s_lshl_b32", sT1, sHead, 2)
    k.s2("s_add_u32", sT0, sT0, sT1)
    k.s2("s_lshl_b32", sT1, sKh, 1)
    k.s2("s_add_u32", sT0, sT0, sT1)
    k.s2("s_mul_i32", sT0, sT0, 3072)
    if OWS:
        k.s2("s_add_u32", sT0, sT0, OWS)
    k.s2("s_add_u32", sT1, sT0, 3072)
    OD = 208
    for jj in range(2):
        for e in range(2):
            j = 2 * jj + e
            k.wait_lg(("po", j))
            for qt in range(3):
                d = oreg(4 + j, qt)
                p = oreg(j, qt)
                for r in range(4):
                    k.v2("v_mul_f32", v(d + r), v(d + r), v(FO[qt]))
                for r in range(4):
                    k.valu(f"v_fmac_f32 {v(d + r)}, {v(p + r)}, {v(FP[qt])}", wr=[v(d + r)],
                           rd=[v(d + r), v(p + r), v(FP[qt])])
                od = OD + (jj * 3 + qt) * 4 + 2 * e
                k.v2("v_cvt_pk_bf16_f32", v(od), v(d), v(d + 1))
                k.v2("v_cvt_pk_bf16_f32", v(od + 1), v(d + 2), v(d + 3))
        for qt in range(3):
            od = OD + (jj * 3 + qt) * 4
            so = sT1 if jj else sT0
            k.vmem(f"buffer_store_dwordx4 {vr(od, 4)}, {L16}, {sr(SWS, 4)}, {so} offen offset:{qt * 1024} sc1",
                   rd=vs(od, 4) + [L16, so], tag="ost", store_data=vs(od, 4))
    k.salu("s_branch K1_TAIL")
    mark_tail = len(k.lines)

    k.label("K1_TAIL")
    k.fence()
    for j in range(0 if not EARLYB else 3, NB):
        run(loadB(j))
    k.wait_vm("ost")
    k.barrier()
    k.stamp()
    flag_store(sFl)
    k.s2("s_mul_i32", sM0X, sW, 20480)
    for j in range(NB, NB + NL):
        run(loadB(j, lds=True))
    k.s2("s_lshr_b32", sFl, sRb, 1)
    k.s2("s_lshl_b32", sFl, sFl, 4)
    k.s2("s_add_u32", sFl, sFl, sW)
    k.s2("s_lshl_b32", sFl, sFl, 8)
    k.s2("s_add_u32", sFl, sFl, FLG)
    k.v1("v_mov_b32", T3, 0)
    k.v2("v_add_u32", T0, sM0X, L16)
    flag_load(sFl, 0, "f0")
    flag_check(sFl, 0, "K1_F0", "f0")
    k.stamp()
    for j in range(NA):
        run(loadA(j))
    for j in range(16):
        a = AB + (j % NA) * 12
        b = BSL[j % NB]
        k.wait_vm(("a", j))
        k.wait_vm(("b", j))
        k.wait_lg(("bs", j))
        for nt in range(5):
            for mt in range(3):
                d = OACC + (nt * 3 + mt) * 4
                k.mfma(d, b + 4 * nt, a + 4 * mt, d if j else None)
        if j == 8 - NA - 2:
            flag_load(sFl, 2048, "f1")
        if j == 8 - NA:
            flag_check(sFl, 2048, "K1_F1", "f1")
        if j + NA < 16:
            run(loadA(j + NA))
        jb = j + NB
        if jb < NB + NL:
            k.wait_vm(("bl", jb))
            for nt in range(5):
                d = b + 4 * nt
                k.ds(f"ds_read_b128 {vr(d, 4)}, {T0} offset:{(jb - NB) * 5120 + nt * 1024}", wr=vs(d, 4), rd=[T0], tag=("bs", jb))
        elif jb < 16:
            run(loadB(jb))
        if j in (3, 7, 11):
            k.stamp()
    k.stamp()
    for t in range(15):
        k.ds(f"ds_write_b128 {T0}, {vr(OACC + 4 * t, 4)} offset:{t * 1024}", rd=[T0] + vs(OACC + 4 * t, 4), tag="w")
    k.wait_lg0()
    k.barrier()
    k.s2("s_lshl_b32", sT0, sW, 10)
    k.v2("v_add_u32", T0, sT0, L16)
    k.v2("v_add_u32", T1, 3 * 20480, T0)
    k.v2("v_add_u32", T3, 6 * 20480, T0)
    RB = 72
    for i in range(2):
        for s_ in range(8):
            d = RB + (i * 8 + s_) * 4
            a_ = [T0, T1, T3][s_ // 3]
            o_ = (s_ % 3) * 20480 + i * 8192
            k.ds(f"ds_read_b128 {vr(d, 4)}, {a_} offset:{o_}", wr=vs(d, 4), rd=[a_], tag=("r", i))
    k.v2("v_mul_u32_u24", T2, 1280, vQ)
    k.v3("v_lshl_add_u32", T2, vG, 3, T2)
    for i in range(2):
        k.s2("s_add_u32", sT0, sW, 8 * i)
        k.s2("s_mul_i32", sT1, sT0, 11)
        k.s2("s_lshr_b32", sT1, sT1, 5)
        k.s2("s_mul_i32", sT2, sT1, 3)
        k.s2("s_sub_u32", sT2, sT0, sT2)
        k.s2("s_mul_i32", sA, sRb, 48)
        k.s2("s_lshl_b32", sT2, sT2, 4)
        k.s2("s_add_u32", sA, sA, sT2)
        k.s2("s_mul_i32", sA, sA, 1280)
        k.s2("s_mul_i32", sBo, sCb, 160)
        k.s2("s_add_u32", sA, sA, sBo)
        k.s2("s_lshl_b32", sT1, sT1, 5)
        k.s2("s_add_u32", sA, sA, sT1)
        if i == 1:
            k.salu(f"s_cmp_lt_u32 {sW}, 7")
            k.salu(f"s_cselect_b32 {sA}, {sA}, {OOB}", wr=[sA])
        k.wait_lg(("r", i))
        d = RB + i * 32
        for step in (16, 8, 4):
            for o in range(0, step):
                k.v2("v_add_f32", v(d + o), v(d + o), v(d + o + step))
        k.v2("v_cvt_pk_bf16_f32", v(d + 4), v(d), v(d + 1))
        k.v2("v_cvt_pk_bf16_f32", v(d + 5), v(d + 2), v(d + 3))
        k.vmem(f"buffer_store_dwordx2 {vr(d + 4, 2)}, {T2}, {sr(SOUT, 4)}, {sA} offen{OF}",
               rd=vs(d + 4, 2) + [T2, sA], tag="st")
    if opt.get("ts"):
        k.wait_vm0()
    k.flush_stamps(SWS, sW, TSBASE, 8)
    k.salu("s_endpgm")
    k.tail = k.lines[mark_tail:]
    del k.lines[mark_tail:]

    k.label(f"K1_SLOW{sfx}")
    k.nop(8)
    D = [SP, SP + 1, SP + 2]
    F = [SP + 4, SP + 5, SP + 6]
    xlane3("v_max_f32", D, [SP + 8, SP + 9, SP + 10])
    for qt in range(3):
        k.v1("v_ceil_f32", v(D[qt]), v(D[qt]))
        k.v2("v_max_f32", v(D[qt]), 0, v(D[qt]))
        k.v2("v_add_f32", v(MC[qt]), v(MC[qt]), v(D[qt]))
        for r in range(8):
            x = sreg(qt, 0) + r
            k.v2("v_sub_f32", v(x), v(x), v(D[qt]))
        k.v2("v_sub_f32", v(F[qt]), 0, v(D[qt]))
        k.v1("v_exp_f32", v(F[qt]), v(F[qt]), trans=True)
        k.v2("v_mul_f32", v(LS[qt]), v(LS[qt]), v(F[qt]))
    for cc in range(7):
        if cc > 0:
            k.salu(f"s_cmp_le_u32 {sRet}, {cc}")
            k.salu(f"s_cbranch_scc1 K1_SLOW_DONE{sfx}")
        for qt in range(3):
            for r in range(4):
                x = preg(cc) + qt * 4 + r
                a, b = SP + 8, SP + 9
                k.v2("v_lshlrev_b32", v(a), 16, v(x))
                k.v2("v_and_b32", v(b), "0xffff0000", v(x))
                k.v2("v_mul_f32", v(a), v(a), v(F[qt]))
                k.v2("v_mul_f32", v(b), v(b), v(F[qt]))
                k.v2("v_cvt_pk_bf16_f32", v(x), v(a), v(b))
    k.label(f"K1_SLOW_DONE{sfx}")
    k.nop(4)
    for c in sites[:-1]:
        k.salu(f"s_cmp_eq_u32 {sRet}, {c}")
        k.salu(f"s_cbranch_scc1 K1_RET{c}{sfx}")
    k.salu(f"s_branch K1_RET{sites[-1]}{sfx}")
    return k, split


def build(opt):
    k0, split = gen(opt, 0)
    k1, _ = gen(opt, 1)
    assert k0.tail == k1.tail
    lines = k0.lines[:split]
    lines += ["    s_cmp_eq_u32 s49, 1", "    s_cbranch_scc1 K1_G1"]
    lines += k0.lines[split:]
    lines.append("K1_G1:")
    lines += k1.lines[split:]
    lines += k0.tail
    lines += ["K1_END:", "    s_endpgm", "K1_CODE_END:"]
    name = NAME + "_kernel"
    out = HEADER
    out += "; @launch grid=(256,1,1) block=(512,1,1) lds=163840\n"
    out += '.amdgcn_target "amdgcn-amd-amdhsa--gfx950"\n.text\n'
    out += f".globl {name}\n.p2align 8\n.type {name},@function\n{name}:\n" + "\n".join(lines) + "\n"
    out += '.section .rodata,"a"\n.p2align 6\n'
    out += kd(name, 256, 102)
    return out, k0


if __name__ == "__main__":
    opt = {}
    path = sys.argv[1] if len(sys.argv) > 1 else f"cdna_kernels/{NAME}.s"
    for a in sys.argv[2:]:
        kk, vv = a.split("=")
        opt[kk] = float(vv) if "." in vv else int(vv)
    txt, k1 = build(opt)
    open(path, "w").write(txt)
    print("wrote", path, len(txt), "bytes; slots", k1.slot, "stamps", k1.nstamp)
```

```python
import sys
import dsl
from dsl import Kern, vr, sr, vs, ss
from gen1 import (NAME, X_BYTES, KV_BYTES, W_BYTES, OUT_BYTES, WS_BYTES, OWS, WOT, CSCALE, TSBASE,
                  f32bits, build_srd, add_stamps, code_touch, HEADER, kd)

dsl.EXACT_VM = True
THRESH = 10.0
FLG = 24 << 20
WFL = 25 << 20
PART = 26 << 20
PFL = 31 << 20
OOB = "0x7f000000"


def v(i):
    return f"v{i}"


def gen(opt, G):
    k = Kern()
    add_stamps(k, opt)
    sfx = f"_{G}"
    NT = " nt" if opt.get("nt", 1) else ""
    SX, SK, SV, SWQ, SWO, SWS, SOUT, SDBG = 4, 8, 12, 16, 20, 24, 32, 36
    sW, sGrp, sQh, sKh, sWl, sHp, sB = "s48", "s49", "s50", "s51", "s52", "s53", "s54"
    sKV, sT0, sT1, sT2, sC, sRing, sM0K, sM0W, sM0X, sOff = (
        "s55", "s56", "s57", "s58", "s59", "s60", "s61", "s62", "s63", "s64")
    sWqOff, sXOff, sHead, sRet, sThr = "s65", "s66", "s67", "s28", "s29"
    sKW, sKX = "s3", "s47"
    sRb, sCb, sA, sBo, sFl = "s40", "s41", "s42", "s43", "s44"
    XS0 = 131072
    STAT = 155648

    k.stamp()
    k.salu("s_cmp_ge_u32 s2, 256")
    k.salu("s_cbranch_scc1 K1_END")
    k.salu("s_load_dwordx16 s[32:47], s[0:1], 0")
    code_touch(k, "K1", "K1_CODE_END", "v0", "v2", "v31", 512)
    k.v2("v_lshrrev_b32", "v1", 6, "v0")
    k.v2("v_and_b32", "v0", 63, "v0")
    k.valu(f"v_readfirstlane_b32 {sW}, v1", wr=[sW], rd=["v1"], lane=True)
    k.s2("s_and_b32", sT0, "s2", 7)
    k.s2("s_lshr_b32", sT1, "s2", 3)
    k.s2("s_and_b32", sHp, sT0, 3)
    k.s2("s_lshl_b32", sHp, sHp, 2)
    k.s2("s_and_b32", sT2, sT1, 3)
    k.s2("s_add_u32", sHp, sHp, sT2)
    k.s2("s_mul_i32", sKW, sT2, 10)
    k.s2("s_lshr_b32", sT2, sT1, 2)
    k.s2("s_mul_i32", sOff, sT2, 5)
    k.s2("s_add_u32", sKW, sKW, sOff)
    k.s2("s_lshr_b32", sKW, sKW, 2)
    k.s2("s_sub_u32", sOff, sKW, 10)
    k.salu(f"s_cmp_ge_u32 {sKW}, 10")
    k.salu(f"s_cselect_b32 {sKW}, {sOff}, {sKW}", wr=[sKW])
    if opt.get("rot", 1) == 0:
        k.s1("s_mov_b32", sKW, 0)
    elif opt.get("rot", 1) == 2:
        k.s2("s_and_b32", sKW, sKW, 1)
        k.s2("s_mul_i32", sKW, sKW, 5)
    k.s2("s_lshr_b32", sB, sT0, 2)
    k.s2("s_lshl_b32", sB, sB, 3)
    k.s2("s_add_u32", sB, sB, sT2)
    k.s2("s_lshr_b32", sGrp, sW, 2)
    k.s2("s_and_b32", sQh, sW, 1)
    k.s2("s_bfe_u32", sKh, sW, "0x10001")
    k.s2("s_and_b32", sWl, sW, 3)
    k.s2("s_lshl_b32", sHead, sHp, 1)
    k.s2("s_add_u32", sHead, sHead, sGrp)
    k.s2("s_lshl_b32", sT0, sB, 5)
    k.s2("s_add_u32", sT0, sT0, sHead)
    k.s2("s_lshl_b32", sKV, sT0, 17)
    k.s2("s_lshl_b32", sT1, sWl, 12)
    k.s2("s_add_u32", sKV, sKV, sT1)
    k.s2("s_lshl_b32", sRing, sGrp, 16)
    k.s2("s_add_u32", sM0K, sRing, sT1)
    k.s2("s_lshl_b32", sM0W, sW, 11)
    k.s2("s_add_u32", sM0W, sM0W, 32768)
    k.s2("s_mul_i32", sM0X, sW, 1536)
    k.s2("s_add_u32", sM0X, sM0X, XS0)
    k.s1("s_mov_b32", sC, hex(f32bits(CSCALE)))
    k.s1("s_mov_b32", sThr, hex(f32bits(opt.get("thr", THRESH))))

    LANE = "v0"
    T0, T1, T2, T3 = "v1", "v2", "v3", "v4"
    vG, vQ, L16 = "v5", "v6", "v7"
    KD = [8, 9, 10, 11]
    KR = [12, 13, 14, 15]
    VD = [16, 17]
    ST = 18
    MC = [18, 19, 20]
    LS = [21, 22, 23]
    VR = [24, 25, 26, 27, 28, 29, 30, 31]
    FR, QF, S0, SP = 32, 64, 112, 136
    ACC = 64
    QA = [32, 112]
    WQD = [24, 25]
    XD = [26, 27]
    WQR = [28, 29, 30, 60]
    XR = [18, 19]
    QW, QR = 20, 21
    STG = 160

    def preg(c):
        return 148 if c == 0 else 160 + 12 * (c - 1)

    def oreg(j, qt):
        o = j * 3 + qt
        return QF + 4 * o if o < 21 else 244 + 4 * (o - 21)

    k.v2("v_lshrrev_b32", vG, 4, LANE)
    k.v2("v_and_b32", vQ, 15, LANE)
    k.v2("v_lshlrev_b32", L16, 4, LANE)
    k.v2("v_lshrrev_b32", T0, 5, LANE)
    k.s2("s_lshl_b32", sT0, sKh, 2)
    k.v2("v_add_u32", T1, sT0, T0)
    k.s2("s_lshl_b32", sT0, sW, 2)
    k.v2("v_add_u32", T0, sT0, T0)
    k.v2("v_lshlrev_b32", T0, 13, T0)
    k.s2("s_lshl_b32", sT0, sHp, 9)
    k.v2("v_add_u32", T0, sT0, T0)
    k.v3("v_bfe_u32", T2, LANE, 4, 1)
    k.v3("v_lshl_add_u32", T0, T2, 8, T0)
    for i in range(2):
        k.v2("v_add_u32", T2, 2 * i, T1)
        k.v2("v_lshlrev_b32", T2, 1, T2)
        k.v2("v_xor_b32", T2, T2, vQ)
        k.v3("v_lshl_add_u32", v(WQD[i]), T2, 4, T0)
        if i:
            k.v2("v_add_u32", v(WQD[i]), 2 * 8192 - 1024, v(WQD[i]))
    k.s2("s_mul_i32", sT0, sW, 12)
    k.v2("v_lshrrev_b32", T0, 3, LANE)
    k.v2("v_add_u32", T0, sT0, T0)
    k.v2("v_and_b32", T3, 7, LANE)
    k.s2("s_mul_i32", sT1, sB, 96)
    k.s1("s_mov_b32", sT2, 1280)
    for i in range(2):
        if i:
            k.v2("v_add_u32", T0, 8, T0)
        k.v3("v_bfe_u32", T1, T0, 1, 3)
        k.v2("v_xor_b32", T1, T1, T3)
        k.v2("v_add_u32", T2, sT1, T0)
        k.v2("v_mul_lo_u32", T2, T2, sT2)
        k.v3("v_lshl_add_u32", v(XD[i]), T1, 4, T2)
        if i:
            k.v2("v_subrev_u32", v(XD[i]), 1024, v(XD[i]))

    k.salu("s_waitcnt lgkmcnt(0)")
    build_srd(k, SX, 32, X_BYTES)
    build_srd(k, SWQ, 38, W_BYTES)
    build_srd(k, SWS, 46, WS_BYTES)
    k.s1("s_mov_b32", sKX, sKW)
    k.stamp()

    def run(ps):
        for p in ps:
            p()

    def weave(prim, *secs):
        secs = [(list(l), st, sd, per) for (l, st, sd, per) in secs]
        for i, p in enumerate(prim):
            p()
            for (l, st, sd, per) in secs:
                if i >= st and (i - st) % sd == 0:
                    for _ in range(per):
                        if l:
                            l.pop(0)()
        for (l, st, sd, per) in secs:
            run(l)

    def wqs_off(pos):
        return (pos & 1) * 16384 + (pos >> 1) * 65536

    def setm0(base, off):
        if off:
            k.s2("s_add_u32", "m0", base, off)
        else:
            k.s1("s_mov_b32", "m0", base)

    def bump(ctr):
        k.s2("s_add_u32", ctr, ctr, 1)
        k.salu(f"s_cmp_eq_u32 {ctr}, 10")
        k.salu(f"s_cselect_b32 {ctr}, 0, {ctr}", wr=[ctr])

    def dma_wq(c):
        def p0():
            setm0(sM0W, wqs_off(c % 4))
            if c % 2 == 0:
                k.s2("s_lshl_b32", sWqOff, sKW, 19)
            else:
                k.s2("s_add_u32", sWqOff, sWqOff, 262144)
            k.vmem(f"buffer_load_dwordx4 {v(WQD[0])}, {sr(SWQ, 4)}, {sWqOff} offen lds",
                   rd=[v(WQD[0]), sWqOff], tag=("wq", c), dma=True)
            k.vmem(f"buffer_load_dwordx4 {v(WQD[1])}, {sr(SWQ, 4)}, {sWqOff} offen offset:1024 lds",
                   rd=[v(WQD[1]), sWqOff], tag=("wq", c), dma=True)
            if c % 2 == 1:
                bump(sKW)
        return [p0]

    def dma_x(j):
        def p0():
            setm0(sM0X, (j & 1) * 12288)
            k.s2("s_lshl_b32", sXOff, sKX, 7)
            k.vmem(f"buffer_load_dwordx4 {v(XD[0])}, {sr(SX, 4)}, {sXOff} offen lds",
                   rd=[v(XD[0]), sXOff], tag=("x", j), dma=True)
            k.salu("s_mov_b32 exec_hi, 0")
            k.vmem(f"buffer_load_dwordx4 {v(XD[1])}, {sr(SX, 4)}, {sXOff} offen offset:1024 lds",
                   rd=[v(XD[1]), sXOff], tag=("x", j), dma=True)
            k.salu("s_mov_b32 exec_hi, -1")
            bump(sKX)
        return [p0]

    run(dma_x(0) + dma_wq(0) + dma_wq(1))
    build_srd(k, SK, 34, KV_BYTES)
    build_srd(k, SV, 36, KV_BYTES)
    build_srd(k, SWO, 40, W_BYTES)
    build_srd(k, SOUT, 42, OUT_BYTES)
    build_srd(k, SDBG, 44, 256)
    k.v2("v_xor_b32", T0, vQ, vG)
    k.v2("v_lshlrev_b32", T0, 4, T0)
    k.v3("v_lshl_add_u32", v(KD[0]), vG, 8, T0)
    for i in range(1, 4):
        k.v2("v_xor_b32", v(KD[i]), 64 * i, v(KD[0]))
    k.v2("v_lshlrev_b32", T0, 1, vG)
    k.v2("v_xor_b32", T0, T0, vQ)
    k.v2("v_lshlrev_b32", T0, 4, T0)
    k.v3("v_lshl_add_u32", v(VD[0]), vG, 8, T0)
    k.v2("v_xor_b32", v(VD[1]), 128, v(VD[0]))
    k.v3("v_bfe_u32", T0, LANE, 2, 2)
    k.v2("v_and_b32", T1, 1, vG)
    k.v3("v_lshl_add_u32", T1, T1, 2, T0)
    k.v3("v_lshl_add_u32", T2, vG, 3, T0)
    k.v2("v_lshlrev_b32", T2, 9, T2)
    k.v2("v_and_b32", T3, 3, LANE)
    k.v3("v_lshl_add_u32", T2, T3, 3, T2)
    k.s2("s_lshl_b32", sT0, sGrp, 8)
    k.s2("s_add_u32", sT0, sT0, 32768)
    k.v2("v_add_u32", T2, sT0, T2)
    k.s2("s_lshl_b32", sT0, sKh, 2)
    k.v2("v_xor_b32", T1, sT0, T1)
    for dt in range(4):
        k.v2("v_xor_b32", T3, dt, T1)
        k.v3("v_lshl_add_u32", v(WQR[dt]), T3, 5, T2)
    k.s2("s_mul_i32", sT0, sQh, 48 * 128)
    k.s2("s_add_u32", sT0, sT0, XS0)
    k.v2("v_lshlrev_b32", T0, 7, vQ)
    k.v2("v_add_u32", T0, sT0, T0)
    k.v2("v_lshrrev_b32", T1, 1, vQ)
    k.v2("v_xor_b32", T1, T1, vG)
    k.v3("v_lshl_add_u32", v(XR[0]), T1, 4, T0)
    k.v2("v_xor_b32", v(XR[1]), 64, v(XR[0]))
    k.s2("s_mul_i32", sT0, sQh, 12 * 1024)
    k.s2("s_add_u32", sT0, sT0, sRing)
    k.s2("s_add_u32", sT0, sT0, 32768)
    k.v2("v_add_u32", v(QR), sT0, L16)
    k.s2("s_lshl_b32", sT1, sKh, 11)
    k.s2("s_add_u32", sT0, sT0, sT1)
    k.v2("v_lshrrev_b32", T0, 1, vG)
    k.v2("v_lshlrev_b32", T0, 8, T0)
    k.v3("v_lshl_add_u32", T0, vQ, 4, T0)
    k.v2("v_and_b32", T1, 1, vG)
    k.v3("v_lshl_add_u32", T0, T1, 3, T0)
    k.v2("v_add_u32", v(QW), sT0, T0)
    k.s2("s_lshl_b32", sT0, sKh, 13)
    k.s2("s_add_u32", sT0, sT0, sRing)
    k.v2("v_xor_b32", T0, vG, vQ)
    k.v2("v_lshlrev_b32", T0, 4, T0)
    k.v3("v_lshl_add_u32", T0, vQ, 8, T0)
    k.v2("v_add_u32", v(KR[0]), sT0, T0)
    for ds_ in range(1, 4):
        k.v2("v_xor_b32", v(KR[ds_]), 64 * ds_, v(KR[0]))
    sRho = "s46"
    if opt.get("omap", 1) == 0:
        k.s2("s_lshr_b32", sT1, "s2", 3)
        k.s2("s_and_b32", sCb, sT1, 7)
        k.s2("s_lshr_b32", sT1, sT1, 3)
        k.s2("s_lshl_b32", sRho, sT1, 1)
        k.s2("s_add_u32", sRho, sRho, sCb)
        k.s2("s_bfe_u32", sT0, "s2", "0x20001")
        k.s2("s_lshl_b32", sT0, sT0, 2)
        k.s2("s_add_u32", sRb, sT0, sT1)
    else:
        k.s2("s_bfe_u32", sCb, "s2", "0x20003")
        k.s2("s_lshr_b32", sT1, "s2", 5)
        k.s2("s_lshl_b32", sRho, sCb, 1)
        k.s2("s_add_u32", sRho, sRho, sT1)
        k.s2("s_bfe_u32", sT0, "s2", "0x10001")
        k.s2("s_lshl_b32", sT0, sT0, 2)
        k.s2("s_add_u32", sCb, sCb, sT0)
        k.s2("s_bfe_u32", sT0, "s2", "0x10002")
        k.s2("s_lshl_b32", sT0, sT0, 3)
        k.s2("s_add_u32", sRb, sT0, sT1)
    k.s2("s_lshl_b32", sRb, sRb, 1)
    k.s2("s_and_b32", sT2, "s2", 1)
    k.s2("s_add_u32", sRb, sRb, sT2)
    k.s2("s_lshl_b32", sA, sT2, 3)
    k.s2("s_add_u32", sA, sA, sW)
    k.s2("s_lshl_b32", sA, sA, 3)
    k.s2("s_mul_i32", sBo, sA, 40)
    k.s2("s_mul_i32", sT0, sCb, 5)
    k.s2("s_add_u32", sBo, sBo, sT0)
    k.s2("s_lshl_b32", sBo, sBo, 10)
    k.s2("s_add_u32", sBo, sBo, WOT)
    k.s2("s_lshl_b32", sFl, sB, 4)
    k.s2("s_add_u32", sFl, sFl, sHp)
    k.s2("s_lshl_b32", sFl, sFl, 8)
    k.s2("s_add_u32", sFl, sFl, FLG)
    k.salu(f"s_cmp_eq_u32 {sW}, 0")
    k.salu(f"s_cselect_b32 {sFl}, {sFl}, {OOB}", wr=[sFl])

    sN0, sN1 = "s30", "s31"

    def flag_store(saddr, srd=SWS):
        k.v1("v_mov_b32", "v2", sN0)
        k.v1("v_mov_b32", "v3", sN1)
        k.v1("v_mov_b32", T0, 0)
        k.salu("s_mov_b64 exec, 1")
        k.vmem(f"buffer_store_dwordx2 v[2:3], {T0}, {sr(srd, 4)}, {saddr} offen sc1", rd=["v2", "v3", T0, saddr], tag="flag")
        k.salu("s_mov_b64 exec, -1")
        k.nop(2)

    k.salu("s_memrealtime s[30:31]")
    k.s2("s_or_b32", sT0, "s2", sW)
    k.salu(f"s_cmp_eq_u32 {sT0}, 0")
    k.salu(f"s_cselect_b32 {sT0}, 0, {OOB}", wr=[sT0])
    k.salu("s_waitcnt lgkmcnt(0)")
    k.s2("s_or_b32", sN1, sN1, "0x80000000")
    flag_store(sT0, SDBG)
    run(dma_x(1) + dma_wq(2) + dma_wq(3))
    split = len(k.lines)
    k.fence()

    JIT = opt.get("jit", 0)

    def slot_of(c):
        if not JIT:
            return c % 4
        return (c + 1) % 2 if c < 8 else [2, 3, 1, 0][(c - 8) % 4]

    def dma_kv(c, staged=None):
        slot = slot_of(c)
        cc = c % 8

        def piece(i):
            def p():
                if staged is None:
                    setm0(sM0K, slot * 16384)
                if cc:
                    k.s2("s_add_u32", sOff, sKV, cc * 16384)
                else:
                    k.s1("s_mov_b32", sOff, sKV)
                a, srd = (v(KD[i]), SK) if c < 8 else (v(VD[i & 1]), SV)
                if staged is None:
                    k.vmem(f"buffer_load_dwordx4 {a}, {sr(srd, 4)}, {sOff} offen offset:{i * 1024}{NT} lds",
                           rd=[a, sOff], tag=("kv", c), dma=True)
                else:
                    d = staged + 4 * i
                    k.vmem(f"buffer_load_dwordx4 {vr(d, 4)}, {a}, {sr(srd, 4)}, {sOff} offen offset:{i * 1024}{NT}",
                           wr=vs(d, 4), rd=[a, sOff], tag=("kv", c))
            return p
        return [piece(i) for i in range(4)]

    NSTG = 6 if JIT else opt.get("nstg", 6)
    sched = [opt.get(f"k{n}", d) for n, d in enumerate([7, 8, 10, 12, 14, 16, 18, 19] if JIT else [7, 10, 13, 16, 19, 20, 21, 22])]
    issue = {}
    for n in range(2 + NSTG):
        issue.setdefault(sched[n], []).extend(dma_kv(n, None if n < 2 else STG + 16 * (n - 2)))

    WOL = 0
    WO_DMA, WO_DO, WO_SIG = opt.get("wodma", 0), opt.get("wodo", 4), opt.get("wosig", 7)
    assert WO_DO < sched[0] - 0

    def wo_dma():
        k.s2("s_lshr_b32", sT0, "s2", 1)
        k.s2("s_lshl_b32", sT0, sT0, 5)
        k.s2("s_lshl_b32", sT1, sW, 2)
        k.s2("s_add_u32", sT0, sT0, sT1)
        k.s2("s_mul_i32", sT0, sT0, 1280)
        k.s2("s_and_b32", sT2, "s2", 1)
        k.s2("s_mul_i32", sT2, sT2, 640)
        k.s2("s_add_u32", sT0, sT0, sT2)
        k.s2("s_mul_i32", sT1, sW, 4 * 640)
        if WOL:
            k.s2("s_add_u32", sT1, sT1, WOL)
        k.salu("s_mov_b32 exec_hi, 0xff")
        for i in range(4):
            k.s1("s_mov_b32", "m0", sT1)
            k.vmem(f"buffer_load_dwordx4 {L16}, {sr(SWO, 4)}, {sT0} offen lds", rd=[L16, sT0], tag="wo", dma=True)
            k.s2("s_add_u32", sT0, sT0, 1280)
            k.s2("s_add_u32", sT1, sT1, 640)
        k.salu("s_mov_b32 exec_hi, -1")

    WD = 144
    NWO = 3 if G == 0 else 2

    def wo_read():
        k.v3("v_bfe_u32", T0, LANE, 2, 2)
        k.v3("v_lshl_add_u32", T0, vG, 2, T0)
        k.v2("v_mul_u32_u24", T0, 640, T0)
        k.v2("v_and_b32", T1, 3, LANE)
        k.v3("v_lshl_add_u32", T0, T1, 3, T0)
        k.s2("s_lshl_b32", sT0, sW, 5)
        if WOL:
            k.s2("s_add_u32", sT0, sT0, WOL)
        k.v2("v_add_u32", T0, sT0, T0)
        for i in range(NWO):
            for u in range(2):
                d = WD + i * 4 + 2 * u
                k.ds(f"ds_read_b64_tr_b16 {vr(d, 2)}, {T0} offset:{u * 10240 + i * 256}",
                     wr=vs(d, 2), rd=[T0], tag="wor")

    def wo_store():
        k.s2("s_mul_i32", sT0, "s2", 20)
        k.s2("s_add_u32", sT0, sT0, sW)
        k.s2("s_lshl_b32", sT0, sT0, 10)
        k.s2("s_add_u32", sT0, sT0, WOT)
        for i in range(NWO):
            k.vmem(f"buffer_store_dwordx4 {vr(WD + 4 * i, 4)}, {L16}, {sr(SWS, 4)}, {sT0} offen sc1",
                   rd=vs(WD + 4 * i, 4) + [L16, sT0], tag="wost", store_data=vs(WD + 4 * i, 4))
            if i < NWO - 1:
                k.s2("s_add_u32", sT0, sT0, 8192)

    def w_signal():
        k.s2("s_lshl_b32", sT2, "s2", 6)
        k.s2("s_add_u32", sT2, sT2, WFL)
        k.salu(f"s_cmp_eq_u32 {sW}, 0")
        k.salu(f"s_cselect_b32 {sT2}, {sT2}, {OOB}", wr=[sT2])
        flag_store(sT2)

    def tlb_touch():
        k.s2("s_lshl_b32", sT0, sB, 1)
        k.s2("s_add_u32", sT0, sT0, sQh)
        k.s2("s_lshl_b32", sT0, sT0, 7)
        k.s2("s_lshl_b32", sT1, sHead, 2)
        k.s2("s_add_u32", sT0, sT0, sT1)
        k.s2("s_lshl_b32", sT1, sKh, 1)
        k.s2("s_add_u32", sT0, sT0, sT1)
        k.s2("s_mul_i32", sT0, sT0, 3072)
        k.v1("v_mov_b32", T0, 0)
        k.vmem(f"buffer_load_dword v156, {T0}, {sr(SWS, 4)}, {sT0} offen sc1", wr=["v156"], rd=[T0, sT0], tag="tlb")
        k.s1("s_mov_b32", sT1, FLG + (1 << 19))
        k.vmem(f"buffer_load_dword v157, {T0}, {sr(SWS, 4)}, {sT1} offen sc1", wr=["v157"], rd=[T0, sT1], tag="tlb")
        k.s2("s_mul_i32", sT2, sRb, 48 * 1280)
        k.vmem(f"buffer_load_dword v158, {T0}, {sr(SOUT, 4)}, {sT2} offen sc1", wr=["v158"], rd=[T0, sT2], tag="tlb")

    NV = 62

    def nonce_load():
        k.v1("v_mov_b32", v(61), 0)
        k.vmem(f"buffer_load_dwordx2 {vr(NV, 2)}, v61, {sr(SDBG, 4)}, 0 offen sc1", wr=vs(NV, 2), rd=["v61"], tag="nonce")

    def nonce_check():
        name = f"K1_N{sfx}"
        k.wait_vm("nonce")
        k.s1("s_mov_b32", sT1, 0)
        k.label(f"{name}_CMP")
        k._emit(f"v_readfirstlane_b32 {sN0}, v{NV}")
        k._emit(f"v_readfirstlane_b32 {sN1}, v{NV + 1}")
        k._emit(f"s_add_u32 {sT1}, {sT1}, 1")
        k._emit(f"s_cmp_lg_u32 {sN1}, 0")
        k._emit(f"s_cbranch_scc1 {name}_OK")
        k._emit(f"s_cmp_ge_u32 {sT1}, 0x40000")
        k._emit(f"s_cbranch_scc1 {name}_OK")
        k._emit("s_sleep 4")
        k._emit(f"buffer_load_dwordx2 {vr(NV, 2)}, v61, {sr(SDBG, 4)}, 0 offen sc1")
        k._emit("s_waitcnt vmcnt(0)")
        k._emit(f"s_branch {name}_CMP")
        k.label(f"{name}_OK")
        k.nop(4)

    def q_reads(c):
        ops = []
        A = QA[c & 1]
        B = A + 16
        for qt in range(3):
            ops.append(lambda qt=qt: k.ds(
                f"ds_read_b128 {vr(B + 4 * qt, 4)}, {v(XR[c & 1])} offset:{qt * 2048 + ((c // 2) & 1) * 12288}",
                wr=vs(B + 4 * qt, 4), rd=[v(XR[c & 1])], tag="qf"))
        for dt in range(4):
            def rd2(dt=dt):
                if c > 0 and c % 2 == 0:
                    k.v2("v_xor_b32", v(WQR[dt]), "0x10000", v(WQR[dt]))
                for u in range(2):
                    k.ds(f"ds_read_b64_tr_b16 {vr(A + 4 * dt + 2 * u, 2)}, {v(WQR[dt])} offset:{u * 2048 + (c & 1) * 16384}",
                         wr=vs(A + 4 * dt + 2 * u, 2), rd=[v(WQR[dt])], tag="qf")
            ops.append(rd2)
        return ops

    k.wait_vm(("x", 0))
    k.wait_vm(("wq", 0))
    k.barrier()
    k.stamp()
    run(q_reads(0))
    for c in range(20):
        k.comment(f"---- qproj kstep {c}")
        if c + 1 < 20:
            k.wait_vm(("x", (c + 1) // 2))
            k.wait_vm(("wq", c + 1))
        if c == WO_DO:
            k.wait_vm("wo")
        if c == WO_SIG - 1:
            nonce_check()
        if c == WO_SIG:
            k.wait_vm("wost")
        k.wait_lg0()
        k.barrier()
        if c in (3, 7, 11, 15):
            k.stamp()
        pieces = []
        if c % 2 == 1 and (c + 1) // 2 + 1 < 10:
            pieces += dma_x((c + 1) // 2 + 1)
        if c + 4 < 20:
            pieces += dma_wq(c + 4)
        if c == WO_DMA:
            pieces.append(wo_dma)
        if c == WO_DO + 1:
            pieces.append(wo_store)
        if c == WO_SIG - 4:
            pieces.insert(0, nonce_load)
        if c == opt.get("tlb", -1):
            pieces.append(tlb_touch)
        if c == WO_SIG and G == 0:
            pieces.append(w_signal)
        pieces += issue.get(c, [])
        A = QA[c & 1]
        B = A + 16
        mf = []
        for dt in range(4):
            for qt in range(3):
                d = ACC + (dt * 3 + qt) * 4
                mf.append(lambda d=d, dt=dt, qt=qt: k.mfma(d, A + 4 * dt, B + 4 * qt, d if c else None))
        rds = q_reads(c + 1) if c + 1 < 20 else []
        if c == WO_DO:
            rds.append(wo_read)
        weave(mf, (rds, 0, 1, 1), (pieces, opt.get("qdma0", 1) if G == 0 else opt.get("qdma1", 7), 3, 1))
    k.stamp()
    TQ = 32
    for dt in range(4):
        for qt in range(3):
            d = ACC + (dt * 3 + qt) * 4
            t = TQ + (dt * 3 + qt) * 2
            k.v2("v_cvt_pk_bf16_f32", v(t), v(d), v(d + 1))
            k.v2("v_cvt_pk_bf16_f32", v(t + 1), v(d + 2), v(d + 3))
            k.ds(f"ds_write_b64 {v(QW)}, {vr(t, 2)} offset:{qt * 4096 + dt * 512}", rd=[v(QW)] + vs(t, 2), tag="qw")
    k.v3("v_bfe_u32", T0, LANE, 2, 2)
    k.v2("v_and_b32", T1, 1, vG)
    k.v3("v_lshl_add_u32", T1, T1, 2, T0)
    k.s2("s_lshl_b32", sT0, sKh, 2)
    k.s2("s_xor_b32", sT0, sT0, 4)
    k.v2("v_xor_b32", T1, sT0, T1)
    k.v3("v_lshl_add_u32", T2, vG, 2, T0)
    k.v2("v_lshlrev_b32", T2, 8, T2)
    k.v2("v_and_b32", T3, 3, LANE)
    k.v3("v_lshl_add_u32", T2, T3, 3, T2)
    k.s2("s_lshl_b32", sT0, sKh, 13)
    k.s2("s_add_u32", sT0, sT0, sRing)
    k.v2("v_add_u32", T2, sT0, T2)
    for j in range(8):
        k.v2("v_xor_b32", T3, j, T1)
        k.v3("v_lshl_add_u32", v(VR[j]), T3, 5, T2)

    def k_reads(c):
        slot = slot_of(c)
        ops = []
        for t in range(2):
            for ds_ in range(4):
                d = FR + (t * 4 + ds_) * 4
                ops.append(lambda d=d, t=t, ds_=ds_: k.ds(
                    f"ds_read_b128 {vr(d, 4)}, {v(KR[ds_])} offset:{slot * 16384 + t * 4096}",
                    wr=vs(d, 4), rd=[v(KR[ds_])], tag=("kf", t, ds_)))
        return ops

    def v_reads(c, half):
        slot = slot_of(c)
        ops = []
        for j in range(4 * half, 4 * half + 4):
            for u in range(2):
                d = FR + j * 4 + 2 * u
                ops.append(lambda d=d, j=j, u=u: k.ds(
                    f"ds_read_b64_tr_b16 {vr(d, 2)}, {v(VR[j])} offset:{slot * 16384 + u * 4096}",
                    wr=vs(d, 2), rd=[v(VR[j])], tag=("vf", j)))
        return ops

    def sreg(qt, t):
        return S0 + (qt * 2 + t) * 4

    def xlane3(op, rs, tmps):
        for sw in ("v_permlane32_swap_b32", "v_permlane16_swap_b32"):
            for r, t in zip(rs, tmps):
                k.v1("v_mov_b32", v(t), v(r))
            for r, t in zip(rs, tmps):
                k.valu(f"{sw} {v(r)}, {v(t)}", wr=[v(r), v(t)], rd=[v(r), v(t)], perm=True)
            for r, t in zip(rs, tmps):
                k.v2(op, v(r), v(r), v(t))

    def max8x3(dsts):
        for qt in range(3):
            b = sreg(qt, 0)
            k.v3("v_max3_f32", v(dsts[qt]), v(b), v(b + 1), v(b + 2))
        for i in (3, 5):
            for qt in range(3):
                b = sreg(qt, 0)
                k.v3("v_max3_f32", v(dsts[qt]), v(dsts[qt]), v(b + i), v(b + i + 1))
        for qt in range(3):
            b = sreg(qt, 0)
            k.v2("v_max_f32", v(dsts[qt]), v(dsts[qt]), v(b + 7))

    sites = []

    def s_mfma(c):
        ops = []
        for t in range(2):
            for ds_ in range(4):
                for qt in range(3):
                    def op(t=t, ds_=ds_, qt=qt):
                        if qt == 0:
                            k.wait_lg(("kf", t, ds_))
                        d = sreg(qt, t)
                        k.mfma(d, FR + (t * 4 + ds_) * 4, QF + (qt * 4 + ds_) * 4, d if ds_ else None)
                    ops.append(op)
        return ops

    def softmax(c):
        ops = []

        def fm(r0):
            for r in range(r0, r0 + 4):
                for qt in range(3):
                    x = sreg(qt, 0) + r
                    k.v3("v_fma_f32", v(x), v(x), sC, f"-{v(MC[qt])}")

        def head():
            k.comment(f"softmax {c}")
            if c == 0:
                max8x3(MC)
                xlane3("v_max_f32", MC, [SP, SP + 1, SP + 2])
                for qt in range(3):
                    k.v2("v_mul_f32", v(MC[qt]), sC, v(MC[qt]))
            fm(0)

        def check():
            if c > 0:
                max8x3([SP, SP + 1, SP + 2])
                k.v3("v_max3_f32", v(SP + 3), v(SP), v(SP + 1), v(SP + 2))
                k.valu(f"v_cmp_lt_f32 vcc, {sThr}, {v(SP + 3)}", wr=["vcc"], rd=[sThr, v(SP + 3)])
                k.s1("s_mov_b32", sRet, c)
                k.nop(4)
                k.salu(f"s_cbranch_vccnz K1_SLOW{sfx}")
                k.label(f"K1_RET{c}{sfx}")
                sites.append(c)
                k.fence()
        ops += [head, lambda: fm(4), check]

        def body(r):
            if r < 8:
                for qt in range(3):
                    x = sreg(qt, 0) + r
                    k.v1("v_exp_f32", v(x), v(x), trans=True)
            if r >= 1:
                rr = r - 1
                for qt in range(3):
                    b = sreg(qt, 0)
                    if c == 0 and rr == 0:
                        continue
                    if c == 0 and rr == 1:
                        k.v2("v_add_f32", v(LS[qt]), v(b), v(b + 1))
                    else:
                        k.v2("v_add_f32", v(LS[qt]), v(LS[qt]), v(b + rr))
                if rr % 2 == 1:
                    for qt in range(3):
                        b = sreg(qt, 0)
                        k.v2("v_cvt_pk_bf16_f32", v(preg(c) + qt * 4 + rr // 2), v(b + rr - 1), v(b + rr))
        for r in range(9):
            ops.append(lambda r=r: body(r))
        return ops

    def pv_mfma(c, half):
        cv = c - 8
        ops = []
        for j in range(4 * half, 4 * half + 4):
            for qt in range(3):
                def op(j=j, qt=qt):
                    if qt == 0:
                        k.wait_lg(("vf", j))
                    d = oreg(j, qt)
                    k.mfma(d, FR + j * 4, preg(cv) + qt * 4, d if cv else None)
                ops.append(op)
        return ops

    def stage_out(n):
        k.wait_vm(("kv", n))
        k.s2("s_add_u32", sT2, sM0K, slot_of(n) * 16384)
        k.v2("v_add_u32", T3, sT2, L16)
        for i in range(4):
            d = STG + 16 * (n - 2) + 4 * i
            k.ds(f"ds_write_b128 {T3}, {vr(d, 4)} offset:{i * 1024}", rd=[T3] + vs(d, 4), tag="stg")

    if JIT:
        so_at = {n: n - 1 for n in range(2, 8)}
        dma_at = {8: 1, 9: 1}
        dma_at.update({n: n - 3 for n in range(10, 16)})
    else:
        so_at = {n: (1 if n < 4 else n - 2) for n in range(2, 2 + NSTG)}
        dma_at = {n: max(1, n - 3) for n in range(2 + NSTG, 16)}

    OF = ["", " sc1", " nt", " sc0 sc1"][opt.get("of", 1)]
    BF = ["", " sc1", " sc0", " nt"][opt.get("bf", 1)]
    AF = ["", " sc1", " sc0", " nt"][opt.get("af", 1)]
    BSL = [148, 168, 188, 68, 96, 116, 208, 228]
    AR = [88, 92, 136, 140, 144, 248, 252]
    OACC = 8
    L16B = "v8"
    sOB, sOA = "s65", "s66"

    def rot_off(dst, j, base, stride):
        k.s2("s_add_u32", dst, sRho, j)
        k.s2("s_and_b32", dst, dst, 7)
        k.s2("s_mul_i32", dst, dst, stride)
        k.s2("s_add_u32", dst, dst, base)

    def loadB(j):
        ops = []
        for nt in range(5):
            def op(nt=nt):
                if nt == 0:
                    rot_off(sOB, j, sBo, 40960)
                a, o = (L16, nt * 1024) if nt < 4 else (L16B, 0)
                d = BSL[j] + 4 * nt
                k.vmem(f"buffer_load_dwordx4 {vr(d, 4)}, {a}, {sr(SWS, 4)}, {sOB} offen offset:{o}{BF}",
                       wr=vs(d, 4), rd=[a, sOB], tag=("b", j))
            ops.append(op)
        return ops

    WCHK = opt.get("wchk", 10)
    EARLYB = 1
    EB = [opt.get("eb0", 15), opt.get("eb1", 15), opt.get("eb2", 15)]

    def flag_load(soff, imm, tag):
        k.vmem(f"buffer_load_dwordx2 v[2:3], {T3}, {sr(SWS, 4)}, {soff} offen offset:{imm} sc1", wr=["v2", "v3"],
               rd=[T3] + ([soff] if isinstance(soff, str) else []), tag=tag)

    def flag_check(soff, imm, name, tag):
        k.wait_vm(tag)
        k.s1("s_mov_b32", sT1, 0)
        k.label(f"{name}_CMP")
        k._emit(f"v_cmp_ne_u64 vcc, s[30:31], v[2:3]")
        k._emit(f"s_add_u32 {sT1}, {sT1}, 1")
        k._emit("s_nop 3")
        k._emit(f"s_cbranch_vccz {name}_OK")
        k._emit(f"s_cmp_ge_u32 {sT1}, 0x40000")
        k._emit(f"s_cbranch_scc1 {name}_OK")
        k._emit(f"s_sleep {opt.get('slp', 4)}")
        k._emit(f"buffer_load_dwordx2 v[2:3], {T3}, {sr(SWS, 4)}, {soff} offen offset:{imm} sc1")
        k._emit("s_waitcnt vmcnt(0)")
        k._emit(f"s_branch {name}_CMP")
        k.label(f"{name}_OK")

    sWf = "s45"

    def sync(c):
        if c < 16 and not (2 <= c < 2 + NSTG):
            k.wait_vm(("kv", c))
        if c == WCHK:
            flag_check(sWf, 0, f"K1_W{sfx}", "wp")
        k.wait_lg0()
        k.barrier()
        k.stamp()
        if c == WCHK - 2:
            k.v2("v_and_b32", T3, 7, LANE)
            k.v2("v_lshlrev_b32", T3, 7, T3)
            k.s2("s_lshl_b32", sWf, sA, 7)
            k.s2("s_lshr_b32", sT0, sCb, 2)
            k.s2("s_lshl_b32", sT0, sT0, 6)
            k.s2("s_add_u32", sWf, sWf, sT0)
            k.s2("s_add_u32", sWf, sWf, WFL)
            flag_load(sWf, 0, "wp")

    SCR = G * 65536 + (16384 if JIT else 0)
    for c in range(17):
        k.comment(f"---- interval {c}")
        if c < 16:
            sync(c)
        so = [(lambda n=n: stage_out(n)) for n in sorted(so_at) if so_at[n] == c]
        dm = list(issue.get(20 + c, []))
        for n in sorted(dma_at):
            if dma_at[n] == c:
                dm += dma_kv(n)
        if c == 0:
            for ds_ in range(4):
                for qt in range(3):
                    d = QF + (qt * 4 + ds_) * 4
                    k.ds(f"ds_read_b128 {vr(d, 4)}, {v(QR)} offset:{(qt * 4 + ds_) * 1024}",
                         wr=vs(d, 4), rd=[v(QR)], tag="qr")
            run(k_reads(0))
            run(dm)
            if G == 0:
                run(s_mfma(0))
        elif c <= 8:
            rds = k_reads(c) if c < 8 else v_reads(8, 0)
            if G == 1:
                weave(s_mfma(c - 1), (so, 2, 6, 1))
            else:
                run(so)
            weave(softmax(c - 1), (rds, 0, 1, 2), (dm, 3, 1, 1))
            if c < 8:
                if G == 0:
                    run(s_mfma(c))
            else:
                weave(pv_mfma(8, 0), (v_reads(8, 1), 0, 1, 1))
        elif c < 16:
            if c == 11:
                xlane3("v_add_f32", LS, [1, 2, 3])
                k.s2("s_lshl_b32", sT0, sW, 9)
                k.s2("s_add_u32", sT0, sT0, STAT)
                k.v3("v_lshl_add_u32", T3, vQ, 5, sT0)
                k.ds(f"ds_write_b128 {T3}, {vr(ST, 4)}", rd=[T3] + vs(ST, 4), tag="mw")
                k.ds(f"ds_write_b64 {T3}, {vr(ST + 4, 2)} offset:16", rd=[T3] + vs(ST + 4, 2), tag="mw")
            if c == 9:
                k.v2("v_add_u32", L16B, 4096, L16)
            if EARLYB:
                for jb, cb_ in enumerate(EB):
                    if cb_ == c:
                        dm = dm + loadB(jb)
            d0, d1 = (dm, []) if G == 0 else ([], dm)
            if len(dm) > 4:
                d0, d1 = dm[:len(dm) // 2], dm[len(dm) // 2:]
            weave(pv_mfma(c - 1, 1), (v_reads(c, 0), 0, 1, 1), (d0, 1, 2, 1))
            weave(pv_mfma(c, 0), (v_reads(c, 1), 0, 1, 1), (d1, 1, 2, 1))
        else:
            k.s2("s_mul_i32", sT0, sWl, 12288)
            k.s2("s_add_u32", sT0, sT0, SCR)
            k.v2("v_add_u32", T1, sT0, L16)
            wr_ops = []
            for j in range(4):
                for qt in range(3):
                    wr_ops.append(lambda j=j, qt=qt: k.ds(
                        f"ds_write_b128 {T1}, {vr(oreg(j, qt), 4)} offset:{(j * 3 + qt) * 1024}",
                        rd=[T1] + vs(oreg(j, qt), 4), tag="mw"))
            k.wait_lg0()
            weave(pv_mfma(15, 1), (wr_ops, 0, 1, 1))
    k.stamp()
    k.wait_lg0()
    k.barrier()
    k.s2("s_lshl_b32", sT0, sW, 9)
    k.s2("s_xor_b32", sT0, sT0, 1024)
    k.s2("s_add_u32", sT0, sT0, STAT)
    k.v3("v_lshl_add_u32", T3, vQ, 5, sT0)
    k.s2("s_xor_b32", sT1, sWl, 2)
    k.s2("s_mul_i32", sT0, sT1, 12288)
    k.s2("s_add_u32", sT0, sT0, SCR)
    k.v2("v_add_u32", T1, sT0, L16)
    PS = FR
    k.ds(f"ds_read_b128 {vr(PS, 4)}, {T3}", wr=vs(PS, 4), rd=[T3], tag="ps")
    k.ds(f"ds_read_b64 {vr(PS + 4, 2)}, {T3} offset:16", wr=vs(PS + 4, 2), rd=[T3], tag="ps")
    for j in range(4):
        for qt in range(3):
            d = oreg(j, qt)
            k.ds(f"ds_read_b128 {vr(d, 4)}, {T1} offset:{(j * 3 + qt) * 1024}", wr=vs(d, 4), rd=[T1], tag=("po", j))
    for jb, cb_ in enumerate(EB):
        if cb_ == 16:
            run(loadB(jb))
    k.wait_lg("ps")
    FO = [FR + 8, FR + 9, FR + 10]
    FP = [FR + 12, FR + 13, FR + 14]
    MM = [FR + 16, FR + 17, FR + 18]
    R3 = range(3)
    for qt in R3:
        k.v2("v_max_f32", v(MM[qt]), v(MC[qt]), v(PS + qt))
    for qt in R3:
        k.v2("v_sub_f32", v(FO[qt]), v(MC[qt]), v(MM[qt]))
        k.v2("v_sub_f32", v(FP[qt]), v(PS + qt), v(MM[qt]))
    for qt in R3:
        k.v1("v_exp_f32", v(FO[qt]), v(FO[qt]), trans=True)
        k.v1("v_exp_f32", v(FP[qt]), v(FP[qt]), trans=True)
    for qt in R3:
        k.v2("v_mul_f32", v(MM[qt]), v(FO[qt]), v(LS[qt]))
    for qt in R3:
        k.v3("v_fma_f32", v(MM[qt]), v(FP[qt]), v(PS + 3 + qt), v(MM[qt]))
    for qt in R3:
        k.v1("v_rcp_f32", v(MM[qt]), v(MM[qt]), trans=True)
    for qt in R3:
        k.v2("v_mul_f32", v(FO[qt]), v(FO[qt]), v(MM[qt]))
        k.v2("v_mul_f32", v(FP[qt]), v(FP[qt]), v(MM[qt]))
    k.s2("s_lshl_b32", sT0, sB, 1)
    k.s2("s_add_u32", sT0, sT0, sQh)
    k.s2("s_lshl_b32", sT0, sT0, 7)
    k.s2("s_lshl_b32", sT1, sHead, 2)
    k.s2("s_add_u32", sT0, sT0, sT1)
    k.s2("s_lshl_b32", sT1, sKh, 1)
    k.s2("s_add_u32", sT0, sT0, sT1)
    k.s2("s_mul_i32", sT0, sT0, 3072)
    if OWS:
        k.s2("s_add_u32", sT0, sT0, OWS)
    k.s2("s_add_u32", sT1, sT0, 3072)
    OD = 208
    for jj in range(2):
        for e in range(2):
            j = 2 * jj + e
            k.wait_lg(("po", j))
            for qt in range(3):
                d = oreg(4 + j, qt)
                p = oreg(j, qt)
                for r in range(4):
                    k.v2("v_mul_f32", v(d + r), v(d + r), v(FO[qt]))
                for r in range(4):
                    k.valu(f"v_fmac_f32 {v(d + r)}, {v(p + r)}, {v(FP[qt])}", wr=[v(d + r)],
                           rd=[v(d + r), v(p + r), v(FP[qt])])
                od = OD + (jj * 3 + qt) * 4 + 2 * e
                k.v2("v_cvt_pk_bf16_f32", v(od), v(d), v(d + 1))
                k.v2("v_cvt_pk_bf16_f32", v(od + 1), v(d + 2), v(d + 3))
        for qt in range(3):
            od = OD + (jj * 3 + qt) * 4
            so = sT1 if jj else sT0
            k.vmem(f"buffer_store_dwordx4 {vr(od, 4)}, {L16}, {sr(SWS, 4)}, {so} offen offset:{qt * 1024} sc1",
                   rd=vs(od, 4) + [L16, so], tag="ost", store_data=vs(od, 4))
    k.salu("s_branch K1_TAIL")
    mark_tail = len(k.lines)

    k.label("K1_TAIL")
    k.fence()
    rest = [j for j in range(8) if not (j < 3 and EB[j] < 17)]
    for j in rest[:opt.get("npre", 2)]:
        run(loadB(j))
    k.wait_vm("ost")
    k.barrier()
    k.stamp()
    flag_store(sFl)
    for j in rest[opt.get("npre", 2):]:
        run(loadB(j))
    sA1, sA2, sPo, sPf = "s60", "s61", "s62", "s63"
    k.s2("s_lshl_b32", sA2, sRb, 7)
    k.s2("s_add_u32", sA2, sA2, sA)
    k.s2("s_xor_b32", sA1, sA2, 128)
    k.s2("s_mul_i32", sA1, sA1, 3072)
    k.s2("s_mul_i32", sA2, sA2, 3072)
    if OWS:
        k.s2("s_add_u32", sA1, sA1, OWS)
        k.s2("s_add_u32", sA2, sA2, OWS)
    k.s2("s_lshr_b32", sFl, sRb, 1)
    k.s2("s_lshl_b32", sFl, sFl, 12)
    k.s2("s_lshl_b32", sT0, sA, 5)
    k.s2("s_add_u32", sFl, sFl, sT0)
    k.s2("s_add_u32", sFl, sFl, FLG)
    k.s2("s_lshl_b32", sPo, "s2", 4)
    k.s2("s_add_u32", sPo, sPo, sW)
    k.s2("s_lshl_b32", sPo, sPo, 10)
    k.s2("s_add_u32", sPo, sPo, PART)
    k.s2("s_lshl_b32", sPf, "s2", 3)
    k.s2("s_add_u32", sPf, sPf, sW)
    k.s2("s_lshl_b32", sPf, sPf, 6)
    k.s2("s_add_u32", sPf, sPf, PFL)
    k.v1("v_mov_b32", T3, 0)
    flag_load(sFl, 0, "f0")
    flag_check(sFl, 0, "K1_F0", "f0")
    k.stamp()

    def loadA(f):
        ps, j, mt = f // 24, (f % 24) // 3, f % 3
        if mt == 0:
            rot_off(sOA, j, sA2 if ps else sA1, 3072)
        d = AR[f % 7]
        k.vmem(f"buffer_load_dwordx4 {vr(d, 4)}, {L16}, {sr(SWS, 4)}, {sOA} offen offset:{mt * 1024}{AF}",
               wr=vs(d, 4), rd=[L16, sOA], tag=("a", f))

    LW = "v0"

    def acc_to_lds():
        for t in range(15):
            k.ds(f"ds_write_b128 {LW}, {vr(OACC + 4 * t, 4)} offset:{t * 1024}", rd=[LW] + vs(OACC + 4 * t, 4), tag="w")

    def gather(i, RB):
        k.s2("s_lshl_b32", sT0, sW, 10)
        k.s2("s_add_u32", sT0, sT0, i * 8192)
        k.v2("v_add_u32", T0, sT0, L16)
        k.v2("v_add_u32", T1, 65536, T0)
        for s_ in range(8):
            d = RB + s_ * 4
            k.ds(f"ds_read_b128 {vr(d, 4)}, {T0 if s_ < 4 else T1} offset:{(s_ % 4) * 16384}", wr=vs(d, 4),
                 rd=[T0 if s_ < 4 else T1], tag=("r", i))

    def tree(RB):
        for step in (16, 8, 4):
            for o in range(0, step):
                k.v2("v_add_f32", v(RB + o), v(RB + o), v(RB + o + step))

    k.s2("s_lshl_b32", sT0, sW, 14)
    k.v2("v_add_u32", LW, sT0, L16)
    for f in range(7):
        loadA(f)
    R1 = opt.get("r1", 2)
    for f in range(48):
        ps, j, mt = f // 24, (f % 24) // 3, f % 3
        if f == 24:
            k.stamp()
            acc_to_lds()
        if ps == 1 and mt == 0 and j == R1:
            k.comment("reduce pass-1 partials and hand them to the partner")
            k.wait_lg0()
            k.barrier()
            for i in range(2):
                RB = 148
                gather(i, RB)
                k.wait_lg(("r", i))
                tree(RB)
                d = RB + 32 + 4 * i
                for r in range(4):
                    k.v1("v_mov_b32", v(d + r), v(RB + r))
                so = sPo
                if i:
                    k.s2("s_add_u32", sT2, sPo, 8192)
                    so = sT2
                k.vmem(f"buffer_store_dwordx4 {vr(d, 4)}, {L16}, {sr(SWS, 4)}, {so} offen sc1",
                       rd=vs(d, 4) + [L16, so], tag="pst", store_data=vs(d, 4))
            k.stamp()
        if ps == 1 and mt == 0 and j == R1 + 3:
            k.wait_vm("pst")
            flag_store(sPf)
            k.barrier()
        k.wait_vm(("a", f))
        if ps == 0 and mt == 0:
            k.wait_vm(("b", j))
        for nt in range(5):
            d = OACC + (nt * 3 + mt) * 4
            k.mfma(d, BSL[j] + 4 * nt, AR[f % 7], d if j else None)
        if f + 7 < 48:
            loadA(f + 7)
    k.stamp()
    k.s2("s_xor_b32", sPf, sPf, 512)
    k.s2("s_xor_b32", sPo, sPo, 16384)
    k.v1("v_mov_b32", T3, 0)
    flag_load(sPf, 0, "pf")
    acc_to_lds()
    flag_check(sPf, 0, "K1_PF", "pf")
    PP = 208
    k.vmem(f"buffer_load_dwordx4 {vr(PP, 4)}, {L16}, {sr(SWS, 4)}, {sPo} offen sc1", wr=vs(PP, 4), rd=[L16, sPo], tag=("pp", 0))
    k.s2("s_add_u32", sT2, sPo, 8192)
    k.vmem(f"buffer_load_dwordx4 {vr(PP + 4, 4)}, {L16}, {sr(SWS, 4)}, {sT2} offen sc1", wr=vs(PP + 4, 4), rd=[L16, sT2], tag=("pp", 1))
    k.wait_lg0()
    k.barrier()
    k.stamp()
    gather(0, 72)
    gather(1, 104)
    k.v2("v_mul_u32_u24", T2, 1280, vQ)
    k.v3("v_lshl_add_u32", T2, vG, 3, T2)
    for i in range(2):
        k.s2("s_add_u32", sT0, sW, 8 * i)
        k.s2("s_mul_i32", sT1, sT0, 11)
        k.s2("s_lshr_b32", sT1, sT1, 5)
        k.s2("s_mul_i32", sT2, sT1, 3)
        k.s2("s_sub_u32", sT2, sT0, sT2)
        k.s2("s_mul_i32", sA, sRb, 48)
        k.s2("s_lshl_b32", sT2, sT2, 4)
        k.s2("s_add_u32", sA, sA, sT2)
        k.s2("s_mul_i32", sA, sA, 1280)
        k.s2("s_mul_i32", sBo, sCb, 160)
        k.s2("s_add_u32", sA, sA, sBo)
        k.s2("s_lshl_b32", sT1, sT1, 5)
        k.s2("s_add_u32", sA, sA, sT1)
        if i == 1:
            k.salu(f"s_cmp_lt_u32 {sW}, 7")
            k.salu(f"s_cselect_b32 {sA}, {sA}, {OOB}", wr=[sA])
        k.wait_lg(("r", i))
        d = 72 + i * 32
        tree(d)
        k.wait_vm(("pp", i))
        for r in range(4):
            k.v2("v_add_f32", v(d + r), v(d + r), v(PP + 4 * i + r))
        k.v2("v_cvt_pk_bf16_f32", v(d + 4), v(d), v(d + 1))
        k.v2("v_cvt_pk_bf16_f32", v(d + 5), v(d + 2), v(d + 3))
        k.vmem(f"buffer_store_dwordx2 {vr(d + 4, 2)}, {T2}, {sr(SOUT, 4)}, {sA} offen{OF}",
               rd=vs(d + 4, 2) + [T2, sA], tag="st")
    if opt.get("ts"):
        k.wait_vm0()
    k.flush_stamps(SWS, sW, TSBASE, 8)
    k.salu("s_endpgm")
    k.tail = k.lines[mark_tail:]
    del k.lines[mark_tail:]

    k.label(f"K1_SLOW{sfx}")
    k.nop(8)
    D = [SP, SP + 1, SP + 2]
    F = [SP + 4, SP + 5, SP + 6]
    xlane3("v_max_f32", D, [SP + 8, SP + 9, SP + 10])
    for qt in range(3):
        k.v1("v_ceil_f32", v(D[qt]), v(D[qt]))
        k.v2("v_max_f32", v(D[qt]), 0, v(D[qt]))
        k.v2("v_add_f32", v(MC[qt]), v(MC[qt]), v(D[qt]))
        for r in range(8):
            x = sreg(qt, 0) + r
            k.v2("v_sub_f32", v(x), v(x), v(D[qt]))
        k.v2("v_sub_f32", v(F[qt]), 0, v(D[qt]))
        k.v1("v_exp_f32", v(F[qt]), v(F[qt]), trans=True)
        k.v2("v_mul_f32", v(LS[qt]), v(LS[qt]), v(F[qt]))
    for cc in range(7):
        if cc > 0:
            k.salu(f"s_cmp_le_u32 {sRet}, {cc}")
            k.salu(f"s_cbranch_scc1 K1_SLOW_DONE{sfx}")
        for qt in range(3):
            for r in range(4):
                x = preg(cc) + qt * 4 + r
                a, b = SP + 8, SP + 9
                k.v2("v_lshlrev_b32", v(a), 16, v(x))
                k.v2("v_and_b32", v(b), "0xffff0000", v(x))
                k.v2("v_mul_f32", v(a), v(a), v(F[qt]))
                k.v2("v_mul_f32", v(b), v(b), v(F[qt]))
                k.v2("v_cvt_pk_bf16_f32", v(x), v(a), v(b))
    k.label(f"K1_SLOW_DONE{sfx}")
    k.nop(4)
    for c in sites[:-1]:
        k.salu(f"s_cmp_eq_u32 {sRet}, {c}")
        k.salu(f"s_cbranch_scc1 K1_RET{c}{sfx}")
    k.salu(f"s_branch K1_RET{sites[-1]}{sfx}")
    return k, split


def build(opt):
    k0, split = gen(opt, 0)
    k1, _ = gen(opt, 1)
    assert k0.tail == k1.tail
    lines = k0.lines[:split]
    lines += ["    s_cmp_eq_u32 s49, 1", "    s_cbranch_scc1 K1_G1"]
    lines += k0.lines[split:]
    lines.append("K1_G1:")
    lines += k1.lines[split:]
    lines += k0.tail
    lines += ["K1_END:", "    s_endpgm", "K1_CODE_END:"]
    name = NAME + "_kernel"
    out = HEADER
    out += "; @launch grid=(256,1,1) block=(512,1,1) lds=163840\n"
    out += '.amdgcn_target "amdgcn-amd-amdhsa--gfx950"\n.text\n'
    out += f".globl {name}\n.p2align 8\n.type {name},@function\n{name}:\n" + "\n".join(lines) + "\n"
    out += '.section .rodata,"a"\n.p2align 6\n'
    out += kd(name, 256, 102)
    return out, k0


if __name__ == "__main__":
    opt = {}
    path = sys.argv[1] if len(sys.argv) > 1 else f"cdna_kernels/{NAME}.s"
    for a in sys.argv[2:]:
        kk, vv = a.split("=")
        opt[kk] = float(vv) if "." in vv else int(vv)
    txt, k1 = build(opt)
    open(path, "w").write(txt)
    print("wrote", path, len(txt), "bytes; slots", k1.slot, "stamps", k1.nstamp)
```

```python
import sys
import dsl
from dsl import Kern, vr, sr, vs, ss
from gen1 import (NAME, X_BYTES, KV_BYTES, W_BYTES, OUT_BYTES, WS_BYTES, OWS, WOT, CSCALE, TSBASE,
                  f32bits, build_srd, add_stamps, code_touch, HEADER, kd)

dsl.EXACT_VM = True
THRESH = 10.0
FLG = 24 << 20
WFL = 25 << 20
PART = 26 << 20
PFL = 31 << 20
OOB = "0x7f000000"


def v(i):
    return f"v{i}"


def gen(opt, G):
    k = Kern()
    add_stamps(k, opt)
    sfx = f"_{G}"
    NT = " nt" if opt.get("nt", 1) else ""
    SX, SK, SV, SWQ, SWO, SWS, SOUT, SDBG = 4, 8, 12, 16, 20, 24, 32, 36
    sW, sGrp, sQh, sKh, sWl, sHp, sB = "s48", "s49", "s50", "s51", "s52", "s53", "s54"
    sKV, sT0, sT1, sT2, sC, sRing, sM0K, sM0W, sM0X, sOff = (
        "s55", "s56", "s57", "s58", "s59", "s60", "s61", "s62", "s63", "s64")
    sWqOff, sXOff, sHead, sRet, sThr = "s65", "s66", "s67", "s28", "s29"
    sKW, sKX = "s3", "s47"
    sRb, sCb, sA, sBo, sFl = "s40", "s41", "s42", "s43", "s44"
    XS0 = 131072
    STAT = 155648

    k.stamp()
    k.salu("s_cmp_ge_u32 s2, 256")
    k.salu("s_cbranch_scc1 K1_END")
    k.salu("s_load_dwordx16 s[32:47], s[0:1], 0")
    CT = opt.get("ct", 0)
    if CT == 0:
        code_touch(k, "K1", "K1_CODE_END", "v0", "v2", "v31", 512)
    else:
        k.v1("v_mov_b32", "v63", "v0")
    k.v2("v_lshrrev_b32", "v1", 6, "v0")
    k.v2("v_and_b32", "v0", 63, "v0")
    k.valu(f"v_readfirstlane_b32 {sW}, v1", wr=[sW], rd=["v1"], lane=True)
    k.s2("s_and_b32", sT0, "s2", 7)
    k.s2("s_lshr_b32", sT1, "s2", 3)
    k.s2("s_and_b32", sHp, sT0, 3)
    k.s2("s_lshl_b32", sHp, sHp, 2)
    k.s2("s_and_b32", sT2, sT1, 3)
    k.s2("s_add_u32", sHp, sHp, sT2)
    if opt.get("hpx", 0):
        k.s2("s_xor_b32", sHp, sHp, opt.get("hpx"))
    k.s2("s_mul_i32", sKW, sT2, 10)
    k.s2("s_lshr_b32", sT2, sT1, 2)
    k.s2("s_mul_i32", sOff, sT2, 5)
    k.s2("s_add_u32", sKW, sKW, sOff)
    k.s2("s_lshr_b32", sKW, sKW, 2)
    k.s2("s_sub_u32", sOff, sKW, 10)
    k.salu(f"s_cmp_ge_u32 {sKW}, 10")
    k.salu(f"s_cselect_b32 {sKW}, {sOff}, {sKW}", wr=[sKW])
    if opt.get("rot", 1) == 0:
        k.s1("s_mov_b32", sKW, 0)
    elif opt.get("rot", 1) == 2:
        k.s2("s_and_b32", sKW, sKW, 1)
        k.s2("s_mul_i32", sKW, sKW, 5)
    k.s2("s_lshr_b32", sB, sT0, 2)
    k.s2("s_lshl_b32", sB, sB, 3)
    k.s2("s_add_u32", sB, sB, sT2)
    k.s2("s_lshr_b32", sGrp, sW, 2)
    k.s2("s_and_b32", sQh, sW, 1)
    k.s2("s_bfe_u32", sKh, sW, "0x10001")
    k.s2("s_and_b32", sWl, sW, 3)
    k.s2("s_lshl_b32", sHead, sHp, 1)
    k.s2("s_add_u32", sHead, sHead, sGrp)
    k.s2("s_lshl_b32", sT0, sB, 5)
    k.s2("s_add_u32", sT0, sT0, sHead)
    k.s2("s_lshl_b32", sKV, sT0, 17)
    k.s2("s_lshl_b32", sT1, sWl, 12)
    k.s2("s_add_u32", sKV, sKV, sT1)
    KROT = opt.get("krot", 4)
    if KROT:
        if KROT == 1:
            k.s2("s_add_u32", sT2, sHp, sB)
        elif KROT == 2:
            k.s2("s_and_b32", sT2, sHp, 1)
            k.s2("s_lshl_b32", sT2, sT2, 2)
        elif KROT == 3:
            k.s2("s_mul_i32", sT2, sT0, 5)
            k.s2("s_lshr_b32", sOff, sT0, 3)
            k.s2("s_add_u32", sT2, sT2, sOff)
        elif KROT == 4:
            k.s1("s_mov_b32", sT2, sHead)
        elif KROT == 5:
            k.s1("s_mov_b32", sT2, sB)
        elif KROT == 6:
            k.s2("s_lshl_b32", sT2, sGrp, 2)
        k.s2("s_and_b32", sT2, sT2, 7)
        k.s2("s_lshl_b32", sT2, sT2, 14)
        k.s2("s_or_b32", sKV, sKV, sT2)
    k.s2("s_lshl_b32", sRing, sGrp, 16)
    k.s2("s_add_u32", sM0K, sRing, sT1)
    k.s2("s_lshl_b32", sM0W, sW, 11)
    k.s2("s_add_u32", sM0W, sM0W, 32768)
    k.s2("s_mul_i32", sM0X, sW, 1536)
    k.s2("s_add_u32", sM0X, sM0X, XS0)
    k.s1("s_mov_b32", sC, hex(f32bits(CSCALE)))
    k.s1("s_mov_b32", sThr, hex(f32bits(opt.get("thr", THRESH))))

    LANE = "v0"
    T0, T1, T2, T3 = "v1", "v2", "v3", "v4"
    vG, vQ, L16 = "v5", "v6", "v7"
    KD = [8, 9, 10, 11]
    KR = [12, 13, 14, 15]
    VD = [16, 17]
    ST = 18
    MC = [18, 19, 20]
    LS = [21, 22, 23]
    VR = [24, 25, 26, 27, 28, 29, 30, 31]
    FR, QF, S0, SP = 32, 64, 112, 136
    ACC = 64
    QA = [32, 112]
    WQD = [24, 25]
    XD = [26, 27]
    WQR = [28, 29, 30, 60]
    XR = [18, 19]
    QW, QR = 20, 21
    STG = 160

    def preg(c):
        return 148 if c == 0 else 160 + 12 * (c - 1)

    def oreg(j, qt):
        o = j * 3 + qt
        return QF + 4 * o if o < 21 else 244 + 4 * (o - 21)

    k.v2("v_lshrrev_b32", vG, 4, LANE)
    k.v2("v_and_b32", vQ, 15, LANE)
    k.v2("v_lshlrev_b32", L16, 4, LANE)
    k.v2("v_lshrrev_b32", T0, 5, LANE)
    k.s2("s_lshl_b32", sT0, sKh, 2)
    k.v2("v_add_u32", T1, sT0, T0)
    k.s2("s_lshl_b32", sT0, sW, 2)
    k.v2("v_add_u32", T0, sT0, T0)
    k.v2("v_lshlrev_b32", T0, 13, T0)
    k.s2("s_lshl_b32", sT0, sHp, 9)
    k.v2("v_add_u32", T0, sT0, T0)
    k.v3("v_bfe_u32", T2, LANE, 4, 1)
    k.v3("v_lshl_add_u32", T0, T2, 8, T0)
    for i in range(2):
        k.v2("v_add_u32", T2, 2 * i, T1)
        k.v2("v_lshlrev_b32", T2, 1, T2)
        k.v2("v_xor_b32", T2, T2, vQ)
        k.v3("v_lshl_add_u32", v(WQD[i]), T2, 4, T0)
        if i:
            k.v2("v_add_u32", v(WQD[i]), 2 * 8192 - 1024, v(WQD[i]))
    k.s2("s_mul_i32", sT0, sW, 12)
    k.v2("v_lshrrev_b32", T0, 3, LANE)
    k.v2("v_add_u32", T0, sT0, T0)
    k.v2("v_and_b32", T3, 7, LANE)
    k.s2("s_mul_i32", sT1, sB, 96)
    k.s1("s_mov_b32", sT2, 1280)
    for i in range(2):
        if i:
            k.v2("v_add_u32", T0, 8, T0)
        k.v3("v_bfe_u32", T1, T0, 1, 3)
        k.v2("v_xor_b32", T1, T1, T3)
        k.v2("v_add_u32", T2, sT1, T0)
        k.v2("v_mul_lo_u32", T2, T2, sT2)
        k.v3("v_lshl_add_u32", v(XD[i]), T1, 4, T2)
        if i:
            k.v2("v_subrev_u32", v(XD[i]), 1024, v(XD[i]))

    k.salu("s_waitcnt lgkmcnt(0)")
    build_srd(k, SX, 32, X_BYTES)
    build_srd(k, SWQ, 38, W_BYTES)
    build_srd(k, SWS, 46, WS_BYTES)
    k.s1("s_mov_b32", sKX, sKW)
    k.stamp()

    def run(ps):
        for p in ps:
            p()

    def weave(prim, *secs):
        secs = [(list(l), st, sd, per) for (l, st, sd, per) in secs]
        for i, p in enumerate(prim):
            p()
            for (l, st, sd, per) in secs:
                if i >= st and (i - st) % sd == 0:
                    for _ in range(per):
                        if l:
                            l.pop(0)()
        for (l, st, sd, per) in secs:
            run(l)

    def wqs_off(pos):
        return (pos & 1) * 16384 + (pos >> 1) * 65536

    def setm0(base, off):
        if off:
            k.s2("s_add_u32", "m0", base, off)
        else:
            k.s1("s_mov_b32", "m0", base)

    def bump(ctr):
        k.s2("s_add_u32", ctr, ctr, 1)
        k.salu(f"s_cmp_eq_u32 {ctr}, 10")
        k.salu(f"s_cselect_b32 {ctr}, 0, {ctr}", wr=[ctr])

    def dma_wq(c):
        def p0():
            setm0(sM0W, wqs_off(c % 4))
            if c % 2 == 0:
                k.s2("s_lshl_b32", sWqOff, sKW, 19)
            else:
                k.s2("s_add_u32", sWqOff, sWqOff, 262144)
            k.vmem(f"buffer_load_dwordx4 {v(WQD[0])}, {sr(SWQ, 4)}, {sWqOff} offen lds",
                   rd=[v(WQD[0]), sWqOff], tag=("wq", c), dma=True)
            k.vmem(f"buffer_load_dwordx4 {v(WQD[1])}, {sr(SWQ, 4)}, {sWqOff} offen offset:1024 lds",
                   rd=[v(WQD[1]), sWqOff], tag=("wq", c), dma=True)
            if c % 2 == 1:
                bump(sKW)
        return [p0]

    def dma_x(j):
        def p0():
            setm0(sM0X, (j & 1) * 12288)
            k.s2("s_lshl_b32", sXOff, sKX, 7)
            k.vmem(f"buffer_load_dwordx4 {v(XD[0])}, {sr(SX, 4)}, {sXOff} offen lds",
                   rd=[v(XD[0]), sXOff], tag=("x", j), dma=True)
            k.salu("s_mov_b32 exec_hi, 0")
            k.vmem(f"buffer_load_dwordx4 {v(XD[1])}, {sr(SX, 4)}, {sXOff} offen offset:1024 lds",
                   rd=[v(XD[1]), sXOff], tag=("x", j), dma=True)
            k.salu("s_mov_b32 exec_hi, -1")
            bump(sKX)
        return [p0]

    run(dma_x(0) + dma_wq(0) + dma_wq(1))
    if CT == 1:
        code_touch(k, "K1", "K1_CODE_END", "v63", "v2", "v31", 512)
    build_srd(k, SK, 34, KV_BYTES)
    build_srd(k, SV, 36, KV_BYTES)
    build_srd(k, SWO, 40, W_BYTES)
    build_srd(k, SOUT, 42, OUT_BYTES)
    build_srd(k, SDBG, 44, 256)
    k.v2("v_xor_b32", T0, vQ, vG)
    k.v2("v_lshlrev_b32", T0, 4, T0)
    k.v3("v_lshl_add_u32", v(KD[0]), vG, 8, T0)
    for i in range(1, 4):
        k.v2("v_xor_b32", v(KD[i]), 64 * i, v(KD[0]))
    k.v2("v_lshlrev_b32", T0, 1, vG)
    k.v2("v_xor_b32", T0, T0, vQ)
    k.v2("v_lshlrev_b32", T0, 4, T0)
    k.v3("v_lshl_add_u32", v(VD[0]), vG, 8, T0)
    k.v2("v_xor_b32", v(VD[1]), 128, v(VD[0]))
    k.v3("v_bfe_u32", T0, LANE, 2, 2)
    k.v2("v_and_b32", T1, 1, vG)
    k.v3("v_lshl_add_u32", T1, T1, 2, T0)
    k.v3("v_lshl_add_u32", T2, vG, 3, T0)
    k.v2("v_lshlrev_b32", T2, 9, T2)
    k.v2("v_and_b32", T3, 3, LANE)
    k.v3("v_lshl_add_u32", T2, T3, 3, T2)
    k.s2("s_lshl_b32", sT0, sGrp, 8)
    k.s2("s_add_u32", sT0, sT0, 32768)
    k.v2("v_add_u32", T2, sT0, T2)
    k.s2("s_lshl_b32", sT0, sKh, 2)
    k.v2("v_xor_b32", T1, sT0, T1)
    for dt in range(4):
        k.v2("v_xor_b32", T3, dt, T1)
        k.v3("v_lshl_add_u32", v(WQR[dt]), T3, 5, T2)
    k.s2("s_mul_i32", sT0, sQh, 48 * 128)
    k.s2("s_add_u32", sT0, sT0, XS0)
    k.v2("v_lshlrev_b32", T0, 7, vQ)
    k.v2("v_add_u32", T0, sT0, T0)
    k.v2("v_lshrrev_b32", T1, 1, vQ)
    k.v2("v_xor_b32", T1, T1, vG)
    k.v3("v_lshl_add_u32", v(XR[0]), T1, 4, T0)
    k.v2("v_xor_b32", v(XR[1]), 64, v(XR[0]))
    k.s2("s_mul_i32", sT0, sQh, 12 * 1024)
    k.s2("s_add_u32", sT0, sT0, sRing)
    k.s2("s_add_u32", sT0, sT0, 32768)
    k.v2("v_add_u32", v(QR), sT0, L16)
    k.s2("s_lshl_b32", sT1, sKh, 11)
    k.s2("s_add_u32", sT0, sT0, sT1)
    k.v2("v_lshrrev_b32", T0, 1, vG)
    k.v2("v_lshlrev_b32", T0, 8, T0)
    k.v3("v_lshl_add_u32", T0, vQ, 4, T0)
    k.v2("v_and_b32", T1, 1, vG)
    k.v3("v_lshl_add_u32", T0, T1, 3, T0)
    k.v2("v_add_u32", v(QW), sT0, T0)
    k.s2("s_lshl_b32", sT0, sKh, 13)
    k.s2("s_add_u32", sT0, sT0, sRing)
    k.v2("v_xor_b32", T0, vG, vQ)
    k.v2("v_lshlrev_b32", T0, 4, T0)
    k.v3("v_lshl_add_u32", T0, vQ, 8, T0)
    k.v2("v_add_u32", v(KR[0]), sT0, T0)
    for ds_ in range(1, 4):
        k.v2("v_xor_b32", v(KR[ds_]), 64 * ds_, v(KR[0]))
    sRho = "s46"
    if opt.get("omap", 1) == 0:
        k.s2("s_lshr_b32", sT1, "s2", 3)
        k.s2("s_and_b32", sCb, sT1, 7)
        k.s2("s_lshr_b32", sT1, sT1, 3)
        k.s2("s_lshl_b32", sRho, sT1, 1)
        k.s2("s_add_u32", sRho, sRho, sCb)
        k.s2("s_bfe_u32", sT0, "s2", "0x20001")
        k.s2("s_lshl_b32", sT0, sT0, 2)
        k.s2("s_add_u32", sRb, sT0, sT1)
    else:
        k.s2("s_bfe_u32", sCb, "s2", "0x20003")
        k.s2("s_lshr_b32", sT1, "s2", 5)
        k.s2("s_lshl_b32", sRho, sCb, 1)
        k.s2("s_add_u32", sRho, sRho, sT1)
        k.s2("s_bfe_u32", sT0, "s2", "0x10001")
        k.s2("s_lshl_b32", sT0, sT0, 2)
        k.s2("s_add_u32", sCb, sCb, sT0)
        k.s2("s_bfe_u32", sT0, "s2", "0x10002")
        k.s2("s_lshl_b32", sT0, sT0, 3)
        k.s2("s_add_u32", sRb, sT0, sT1)
    k.s2("s_lshl_b32", sRb, sRb, 1)
    k.s2("s_and_b32", sT2, "s2", 1)
    k.s2("s_add_u32", sRb, sRb, sT2)
    k.s2("s_lshl_b32", sA, sT2, 3)
    k.s2("s_add_u32", sA, sA, sW)
    k.s2("s_lshl_b32", sA, sA, 3)
    k.s2("s_mul_i32", sBo, sA, 40)
    k.s2("s_mul_i32", sT0, sCb, 5)
    k.s2("s_add_u32", sBo, sBo, sT0)
    k.s2("s_lshl_b32", sBo, sBo, 10)
    k.s2("s_add_u32", sBo, sBo, WOT)
    k.s2("s_lshl_b32", sFl, sB, 4)
    k.s2("s_add_u32", sFl, sFl, sHp)
    k.s2("s_lshl_b32", sFl, sFl, 8)
    k.s2("s_add_u32", sFl, sFl, FLG)
    k.salu(f"s_cmp_eq_u32 {sW}, 0")
    k.salu(f"s_cselect_b32 {sFl}, {sFl}, {OOB}", wr=[sFl])

    sN0, sN1 = "s30", "s31"

    def flag_store(saddr, srd=SWS):
        k.v1("v_mov_b32", "v2", sN0)
        k.v1("v_mov_b32", "v3", sN1)
        k.v1("v_mov_b32", T0, 0)
        k.salu("s_mov_b64 exec, 1")
        k.vmem(f"buffer_store_dwordx2 v[2:3], {T0}, {sr(srd, 4)}, {saddr} offen sc1", rd=["v2", "v3", T0, saddr], tag="flag")
        k.salu("s_mov_b64 exec, -1")
        k.nop(2)

    k.salu("s_memrealtime s[30:31]")
    k.s2("s_or_b32", sT0, "s2", sW)
    k.salu(f"s_cmp_eq_u32 {sT0}, 0")
    k.salu(f"s_cselect_b32 {sT0}, 0, {OOB}", wr=[sT0])
    k.salu("s_waitcnt lgkmcnt(0)")
    k.s2("s_or_b32", sN1, sN1, "0x80000000")
    flag_store(sT0, SDBG)
    if opt.get("dly", 0) == 1:
        k.wait_vm("touch")
    if opt.get("dly", 0) == 2:
        k.wait_vm(("x", 0))
    if opt.get("dly", 0) == 3:
        k.wait_vm(("wq", 0))
    run(dma_x(1) + dma_wq(2) + dma_wq(3))
    split = len(k.lines)
    k.fence()

    JIT = opt.get("jit", 0)

    def slot_of(c):
        if not JIT:
            return c % 4
        return (c + 1) % 2 if c < 8 else [2, 3, 1, 0][(c - 8) % 4]

    def dma_kv(c, staged=None):
        slot = slot_of(c)
        cc = c % 8

        def piece(i):
            def p():
                if staged is None:
                    setm0(sM0K, slot * 16384)
                if cc:
                    k.s2("s_xor_b32", sOff, sKV, cc * 16384)
                else:
                    k.s1("s_mov_b32", sOff, sKV)
                a, srd = (v(KD[i]), SK) if c < 8 else (v(VD[i & 1]), SV)
                if staged is None:
                    k.vmem(f"buffer_load_dwordx4 {a}, {sr(srd, 4)}, {sOff} offen offset:{i * 1024}{NT} lds",
                           rd=[a, sOff], tag=("kv", c), dma=True)
                else:
                    d = staged + 4 * i
                    k.vmem(f"buffer_load_dwordx4 {vr(d, 4)}, {a}, {sr(srd, 4)}, {sOff} offen offset:{i * 1024}{NT}",
                           wr=vs(d, 4), rd=[a, sOff], tag=("kv", c))
            return p
        return [piece(i) for i in range(4)]

    NSTG = 6 if JIT else opt.get("nstg", 6)
    sched = [opt.get(f"k{n}", d) for n, d in enumerate([7, 8, 10, 12, 14, 16, 18, 19] if JIT else [7, 10, 13, 16, 19, 20, 21, 22])]
    issue = {}
    for n in range(2 + NSTG):
        issue.setdefault(sched[n], []).extend(dma_kv(n, None if n < 2 else STG + 16 * (n - 2)))

    WOL = 0
    WO_DMA, WO_DO, WO_SIG = opt.get("wodma", 0), opt.get("wodo", 4), opt.get("wosig", 7)
    assert WO_DO < sched[0] - 0

    def wo_dma():
        k.s2("s_lshr_b32", sT0, "s2", 1)
        k.s2("s_lshl_b32", sT0, sT0, 5)
        k.s2("s_lshl_b32", sT1, sW, 2)
        k.s2("s_add_u32", sT0, sT0, sT1)
        k.s2("s_mul_i32", sT0, sT0, 1280)
        k.s2("s_and_b32", sT2, "s2", 1)
        k.s2("s_mul_i32", sT2, sT2, 640)
        k.s2("s_add_u32", sT0, sT0, sT2)
        k.s2("s_mul_i32", sT1, sW, 4 * 640)
        if WOL:
            k.s2("s_add_u32", sT1, sT1, WOL)
        k.salu("s_mov_b32 exec_hi, 0xff")
        for i in range(4):
            k.s1("s_mov_b32", "m0", sT1)
            k.vmem(f"buffer_load_dwordx4 {L16}, {sr(SWO, 4)}, {sT0} offen lds", rd=[L16, sT0], tag="wo", dma=True)
            k.s2("s_add_u32", sT0, sT0, 1280)
            k.s2("s_add_u32", sT1, sT1, 640)
        k.salu("s_mov_b32 exec_hi, -1")

    WD = 144
    NWO = 3 if G == 0 else 2

    def wo_read():
        k.v3("v_bfe_u32", T0, LANE, 2, 2)
        k.v3("v_lshl_add_u32", T0, vG, 2, T0)
        k.v2("v_mul_u32_u24", T0, 640, T0)
        k.v2("v_and_b32", T1, 3, LANE)
        k.v3("v_lshl_add_u32", T0, T1, 3, T0)
        k.s2("s_lshl_b32", sT0, sW, 5)
        if WOL:
            k.s2("s_add_u32", sT0, sT0, WOL)
        k.v2("v_add_u32", T0, sT0, T0)
        for i in range(NWO):
            for u in range(2):
                d = WD + i * 4 + 2 * u
                k.ds(f"ds_read_b64_tr_b16 {vr(d, 2)}, {T0} offset:{u * 10240 + i * 256}",
                     wr=vs(d, 2), rd=[T0], tag="wor")

    def wo_store():
        k.s2("s_mul_i32", sT0, "s2", 20)
        k.s2("s_add_u32", sT0, sT0, sW)
        k.s2("s_lshl_b32", sT0, sT0, 10)
        k.s2("s_add_u32", sT0, sT0, WOT)
        for i in range(NWO):
            k.vmem(f"buffer_store_dwordx4 {vr(WD + 4 * i, 4)}, {L16}, {sr(SWS, 4)}, {sT0} offen sc1",
                   rd=vs(WD + 4 * i, 4) + [L16, sT0], tag="wost", store_data=vs(WD + 4 * i, 4))
            if i < NWO - 1:
                k.s2("s_add_u32", sT0, sT0, 8192)

    def w_signal():
        k.s2("s_lshl_b32", sT2, "s2", 6)
        k.s2("s_add_u32", sT2, sT2, WFL)
        k.salu(f"s_cmp_eq_u32 {sW}, 0")
        k.salu(f"s_cselect_b32 {sT2}, {sT2}, {OOB}", wr=[sT2])
        flag_store(sT2)

    def tlb_touch():
        k.s2("s_lshl_b32", sT0, sB, 1)
        k.s2("s_add_u32", sT0, sT0, sQh)
        k.s2("s_lshl_b32", sT0, sT0, 7)
        k.s2("s_lshl_b32", sT1, sHead, 2)
        k.s2("s_add_u32", sT0, sT0, sT1)
        k.s2("s_lshl_b32", sT1, sKh, 1)
        k.s2("s_add_u32", sT0, sT0, sT1)
        k.s2("s_mul_i32", sT0, sT0, 3072)
        k.v1("v_mov_b32", T0, 0)
        k.vmem(f"buffer_load_dword v156, {T0}, {sr(SWS, 4)}, {sT0} offen sc1", wr=["v156"], rd=[T0, sT0], tag="tlb")
        k.s1("s_mov_b32", sT1, FLG + (1 << 19))
        k.vmem(f"buffer_load_dword v157, {T0}, {sr(SWS, 4)}, {sT1} offen sc1", wr=["v157"], rd=[T0, sT1], tag="tlb")
        k.s2("s_mul_i32", sT2, sRb, 48 * 1280)
        k.vmem(f"buffer_load_dword v158, {T0}, {sr(SOUT, 4)}, {sT2} offen sc1", wr=["v158"], rd=[T0, sT2], tag="tlb")

    NV = 62

    def nonce_load():
        k.v1("v_mov_b32", v(61), 0)
        k.vmem(f"buffer_load_dwordx2 {vr(NV, 2)}, v61, {sr(SDBG, 4)}, 0 offen sc1", wr=vs(NV, 2), rd=["v61"], tag="nonce")

    def nonce_check():
        name = f"K1_N{sfx}"
        k.wait_vm("nonce")
        k.s1("s_mov_b32", sT1, 0)
        k.label(f"{name}_CMP")
        k._emit(f"v_readfirstlane_b32 {sN0}, v{NV}")
        k._emit(f"v_readfirstlane_b32 {sN1}, v{NV + 1}")
        k._emit(f"s_add_u32 {sT1}, {sT1}, 1")
        k._emit(f"s_cmp_lg_u32 {sN1}, 0")
        k._emit(f"s_cbranch_scc1 {name}_OK")
        k._emit(f"s_cmp_ge_u32 {sT1}, 0x40000")
        k._emit(f"s_cbranch_scc1 {name}_OK")
        k._emit("s_sleep 4")
        k._emit(f"buffer_load_dwordx2 {vr(NV, 2)}, v61, {sr(SDBG, 4)}, 0 offen sc1")
        k._emit("s_waitcnt vmcnt(0)")
        k._emit(f"s_branch {name}_CMP")
        k.label(f"{name}_OK")
        k.nop(4)

    def q_reads(c):
        ops = []
        A = QA[c & 1]
        B = A + 16
        for qt in range(3):
            ops.append(lambda qt=qt: k.ds(
                f"ds_read_b128 {vr(B + 4 * qt, 4)}, {v(XR[c & 1])} offset:{qt * 2048 + ((c // 2) & 1) * 12288}",
                wr=vs(B + 4 * qt, 4), rd=[v(XR[c & 1])], tag="qf"))
        for dt in range(4):
            def rd2(dt=dt):
                if c > 0 and c % 2 == 0:
                    k.v2("v_xor_b32", v(WQR[dt]), "0x10000", v(WQR[dt]))
                for u in range(2):
                    k.ds(f"ds_read_b64_tr_b16 {vr(A + 4 * dt + 2 * u, 2)}, {v(WQR[dt])} offset:{u * 2048 + (c & 1) * 16384}",
                         wr=vs(A + 4 * dt + 2 * u, 2), rd=[v(WQR[dt])], tag="qf")
            ops.append(rd2)
        return ops

    k.wait_vm(("x", 0))
    k.wait_vm(("wq", 0))
    k.barrier()
    k.stamp()
    run(q_reads(0))
    for c in range(20):
        k.comment(f"---- qproj kstep {c}")
        if c + 1 < 20:
            k.wait_vm(("x", (c + 1) // 2))
            k.wait_vm(("wq", c + 1))
        if c == WO_DO:
            k.wait_vm("wo")
        if c == WO_SIG - 1:
            nonce_check()
        if c == WO_SIG:
            k.wait_vm("wost")
        k.wait_lg0()
        k.barrier()
        if c in (3, 7, 11, 15):
            k.stamp()
        pieces = []
        if c % 2 == 1 and (c + 1) // 2 + 1 < 10:
            pieces += dma_x((c + 1) // 2 + 1)
        if c + 4 < 20:
            pieces += dma_wq(c + 4)
        if c == WO_DMA:
            pieces.append(wo_dma)
        if c == WO_DO + 1:
            pieces.append(wo_store)
        if c == WO_SIG - 4:
            pieces.insert(0, nonce_load)
        if c == opt.get("tlb", -1):
            pieces.append(tlb_touch)
        if c == WO_SIG and G == 0:
            pieces.append(w_signal)
        pieces += issue.get(c, [])
        A = QA[c & 1]
        B = A + 16
        mf = []
        for dt in range(4):
            for qt in range(3):
                d = ACC + (dt * 3 + qt) * 4
                mf.append(lambda d=d, dt=dt, qt=qt: k.mfma(d, A + 4 * dt, B + 4 * qt, d if c else None))
        rds = q_reads(c + 1) if c + 1 < 20 else []
        if c == WO_DO:
            rds.append(wo_read)
        weave(mf, (rds, 0, 1, 1), (pieces, opt.get("qdma0", 1) if G == 0 else opt.get("qdma1", 7), 3, 1))
    k.stamp()
    TQ = 32
    for dt in range(4):
        for qt in range(3):
            d = ACC + (dt * 3 + qt) * 4
            t = TQ + (dt * 3 + qt) * 2
            k.v2("v_cvt_pk_bf16_f32", v(t), v(d), v(d + 1))
            k.v2("v_cvt_pk_bf16_f32", v(t + 1), v(d + 2), v(d + 3))
            k.ds(f"ds_write_b64 {v(QW)}, {vr(t, 2)} offset:{qt * 4096 + dt * 512}", rd=[v(QW)] + vs(t, 2), tag="qw")
    k.v3("v_bfe_u32", T0, LANE, 2, 2)
    k.v2("v_and_b32", T1, 1, vG)
    k.v3("v_lshl_add_u32", T1, T1, 2, T0)
    k.s2("s_lshl_b32", sT0, sKh, 2)
    k.s2("s_xor_b32", sT0, sT0, 4)
    k.v2("v_xor_b32", T1, sT0, T1)
    k.v3("v_lshl_add_u32", T2, vG, 2, T0)
    k.v2("v_lshlrev_b32", T2, 8, T2)
    k.v2("v_and_b32", T3, 3, LANE)
    k.v3("v_lshl_add_u32", T2, T3, 3, T2)
    k.s2("s_lshl_b32", sT0, sKh, 13)
    k.s2("s_add_u32", sT0, sT0, sRing)
    k.v2("v_add_u32", T2, sT0, T2)
    for j in range(8):
        k.v2("v_xor_b32", T3, j, T1)
        k.v3("v_lshl_add_u32", v(VR[j]), T3, 5, T2)

    def k_reads(c):
        slot = slot_of(c)
        ops = []
        for t in range(2):
            for ds_ in range(4):
                d = FR + (t * 4 + ds_) * 4
                ops.append(lambda d=d, t=t, ds_=ds_: k.ds(
                    f"ds_read_b128 {vr(d, 4)}, {v(KR[ds_])} offset:{slot * 16384 + t * 4096}",
                    wr=vs(d, 4), rd=[v(KR[ds_])], tag=("kf", t, ds_)))
        return ops

    def v_reads(c, half):
        slot = slot_of(c)
        ops = []
        for j in range(4 * half, 4 * half + 4):
            for u in range(2):
                d = FR + j * 4 + 2 * u
                ops.append(lambda d=d, j=j, u=u: k.ds(
                    f"ds_read_b64_tr_b16 {vr(d, 2)}, {v(VR[j])} offset:{slot * 16384 + u * 4096}",
                    wr=vs(d, 2), rd=[v(VR[j])], tag=("vf", j)))
        return ops

    def sreg(qt, t):
        return S0 + (qt * 2 + t) * 4

    def xlane3(op, rs, tmps):
        for sw in ("v_permlane32_swap_b32", "v_permlane16_swap_b32"):
            for r, t in zip(rs, tmps):
                k.v1("v_mov_b32", v(t), v(r))
            for r, t in zip(rs, tmps):
                k.valu(f"{sw} {v(r)}, {v(t)}", wr=[v(r), v(t)], rd=[v(r), v(t)], perm=True)
            for r, t in zip(rs, tmps):
                k.v2(op, v(r), v(r), v(t))

    def max8x3(dsts):
        for qt in range(3):
            b = sreg(qt, 0)
            k.v3("v_max3_f32", v(dsts[qt]), v(b), v(b + 1), v(b + 2))
        for i in (3, 5):
            for qt in range(3):
                b = sreg(qt, 0)
                k.v3("v_max3_f32", v(dsts[qt]), v(dsts[qt]), v(b + i), v(b + i + 1))
        for qt in range(3):
            b = sreg(qt, 0)
            k.v2("v_max_f32", v(dsts[qt]), v(dsts[qt]), v(b + 7))

    sites = []

    def s_mfma(c):
        ops = []
        for t in range(2):
            for ds_ in range(4):
                for qt in range(3):
                    def op(t=t, ds_=ds_, qt=qt):
                        if qt == 0:
                            k.wait_lg(("kf", t, ds_))
                        d = sreg(qt, t)
                        k.mfma(d, FR + (t * 4 + ds_) * 4, QF + (qt * 4 + ds_) * 4, d if ds_ else None)
                    ops.append(op)
        return ops

    def softmax(c):
        ops = []

        def fm(r0):
            for r in range(r0, r0 + 4):
                for qt in range(3):
                    x = sreg(qt, 0) + r
                    k.v3("v_fma_f32", v(x), v(x), sC, f"-{v(MC[qt])}")

        def head():
            k.comment(f"softmax {c}")
            if c == 0:
                max8x3(MC)
                xlane3("v_max_f32", MC, [SP, SP + 1, SP + 2])
                for qt in range(3):
                    k.v2("v_mul_f32", v(MC[qt]), sC, v(MC[qt]))
            fm(0)

        def check():
            if c > 0:
                max8x3([SP, SP + 1, SP + 2])
                k.v3("v_max3_f32", v(SP + 3), v(SP), v(SP + 1), v(SP + 2))
                k.valu(f"v_cmp_lt_f32 vcc, {sThr}, {v(SP + 3)}", wr=["vcc"], rd=[sThr, v(SP + 3)])
                k.s1("s_mov_b32", sRet, c)
                k.nop(4)
                k.salu(f"s_cbranch_vccnz K1_SLOW{sfx}")
                k.label(f"K1_RET{c}{sfx}")
                sites.append(c)
                k.fence()
        ops += [head, lambda: fm(4), check]

        def body(r):
            if r < 8:
                for qt in range(3):
                    x = sreg(qt, 0) + r
                    k.v1("v_exp_f32", v(x), v(x), trans=True)
            if r >= 1:
                rr = r - 1
                for qt in range(3):
                    b = sreg(qt, 0)
                    if c == 0 and rr == 0:
                        continue
                    if c == 0 and rr == 1:
                        k.v2("v_add_f32", v(LS[qt]), v(b), v(b + 1))
                    else:
                        k.v2("v_add_f32", v(LS[qt]), v(LS[qt]), v(b + rr))
                if rr % 2 == 1:
                    for qt in range(3):
                        b = sreg(qt, 0)
                        k.v2("v_cvt_pk_bf16_f32", v(preg(c) + qt * 4 + rr // 2), v(b + rr - 1), v(b + rr))
        for r in range(9):
            ops.append(lambda r=r: body(r))
        return ops

    def pv_mfma(c, half):
        cv = c - 8
        ops = []
        for j in range(4 * half, 4 * half + 4):
            for qt in range(3):
                def op(j=j, qt=qt):
                    if qt == 0:
                        k.wait_lg(("vf", j))
                    d = oreg(j, qt)
                    k.mfma(d, FR + j * 4, preg(cv) + qt * 4, d if cv else None)
                ops.append(op)
        return ops

    def stage_out(n):
        k.wait_vm(("kv", n))
        k.s2("s_add_u32", sT2, sM0K, slot_of(n) * 16384)
        k.v2("v_add_u32", T3, sT2, L16)
        for i in range(4):
            d = STG + 16 * (n - 2) + 4 * i
            k.ds(f"ds_write_b128 {T3}, {vr(d, 4)} offset:{i * 1024}", rd=[T3] + vs(d, 4), tag="stg")

    if JIT:
        so_at = {n: n - 1 for n in range(2, 8)}
        dma_at = {8: 1, 9: 1}
        dma_at.update({n: n - 3 for n in range(10, 16)})
    else:
        so_at = {n: (1 if n < 4 else n - 2) for n in range(2, 2 + NSTG)}
        dma_at = {n: max(1, n - 3) for n in range(2 + NSTG, 16)}

    OF = ["", " sc1", " nt", " sc0 sc1"][opt.get("of", 1)]
    BF = ["", " sc1", " sc0", " nt"][opt.get("bf", 1)]
    AF = ["", " sc1", " sc0", " nt"][opt.get("af", 1)]
    BSL = [148, 168, 188, 68, 96, 116, 208, 228]
    AR = [88, 92, 136, 140, 144, 248, 252]
    OACC = 8
    L16B = "v8"
    sOB, sOA = "s65", "s66"

    def rot_off(dst, j, base, stride):
        k.s2("s_add_u32", dst, sRho, j)
        k.s2("s_and_b32", dst, dst, 7)
        k.s2("s_mul_i32", dst, dst, stride)
        k.s2("s_add_u32", dst, dst, base)

    def loadB(j):
        ops = []
        for nt in range(5):
            def op(nt=nt):
                if nt == 0:
                    rot_off(sOB, j, sBo, 40960)
                a, o = (L16, nt * 1024) if nt < 4 else (L16B, 0)
                d = BSL[j] + 4 * nt
                k.vmem(f"buffer_load_dwordx4 {vr(d, 4)}, {a}, {sr(SWS, 4)}, {sOB} offen offset:{o}{BF}",
                       wr=vs(d, 4), rd=[a, sOB], tag=("b", j))
            ops.append(op)
        return ops

    WCHK = opt.get("wchk", 10)
    EARLYB = 1
    EB = [opt.get("eb0", 15), opt.get("eb1", 15), opt.get("eb2", 15)]

    def flag_load(soff, imm, tag):
        k.vmem(f"buffer_load_dwordx2 v[2:3], {T3}, {sr(SWS, 4)}, {soff} offen offset:{imm} sc1", wr=["v2", "v3"],
               rd=[T3] + ([soff] if isinstance(soff, str) else []), tag=tag)

    def flag_check(soff, imm, name, tag):
        k.wait_vm(tag)
        k.s1("s_mov_b32", sT1, 0)
        k.label(f"{name}_CMP")
        k._emit(f"v_cmp_ne_u64 vcc, s[30:31], v[2:3]")
        k._emit(f"s_add_u32 {sT1}, {sT1}, 1")
        k._emit("s_nop 3")
        k._emit(f"s_cbranch_vccz {name}_OK")
        k._emit(f"s_cmp_ge_u32 {sT1}, 0x40000")
        k._emit(f"s_cbranch_scc1 {name}_OK")
        k._emit(f"s_sleep {opt.get('slp', 4)}")
        k._emit(f"buffer_load_dwordx2 v[2:3], {T3}, {sr(SWS, 4)}, {soff} offen offset:{imm} sc1")
        k._emit("s_waitcnt vmcnt(0)")
        k._emit(f"s_branch {name}_CMP")
        k.label(f"{name}_OK")

    sWf = "s45"

    def sync(c):
        if c < 16 and not (2 <= c < 2 + NSTG):
            k.wait_vm(("kv", c))
        if c == WCHK:
            flag_check(sWf, 0, f"K1_W{sfx}", "wp")
        k.wait_lg0()
        k.barrier()
        k.stamp()
        if c == WCHK - 2:
            k.v2("v_and_b32", T3, 7, LANE)
            k.v2("v_lshlrev_b32", T3, 7, T3)
            k.s2("s_lshl_b32", sWf, sA, 7)
            k.s2("s_lshr_b32", sT0, sCb, 2)
            k.s2("s_lshl_b32", sT0, sT0, 6)
            k.s2("s_add_u32", sWf, sWf, sT0)
            k.s2("s_add_u32", sWf, sWf, WFL)
            flag_load(sWf, 0, "wp")

    SCR = G * 65536 + (16384 if JIT else 0)
    for c in range(17):
        k.comment(f"---- interval {c}")
        if c < 16:
            sync(c)
        so = [(lambda n=n: stage_out(n)) for n in sorted(so_at) if so_at[n] == c]
        dm = list(issue.get(20 + c, []))
        for n in sorted(dma_at):
            if dma_at[n] == c:
                dm += dma_kv(n)
        if c == 0:
            for ds_ in range(4):
                for qt in range(3):
                    d = QF + (qt * 4 + ds_) * 4
                    k.ds(f"ds_read_b128 {vr(d, 4)}, {v(QR)} offset:{(qt * 4 + ds_) * 1024}",
                         wr=vs(d, 4), rd=[v(QR)], tag="qr")
            run(k_reads(0))
            run(dm)
            if G == 0:
                run(s_mfma(0))
        elif c <= 8:
            rds = k_reads(c) if c < 8 else v_reads(8, 0)
            if G == 1:
                weave(s_mfma(c - 1), (so, 2, 6, 1))
            else:
                run(so)
            weave(softmax(c - 1), (rds, 0, 1, 2), (dm, 3, 1, 1))
            if c < 8:
                if G == 0:
                    run(s_mfma(c))
            else:
                weave(pv_mfma(8, 0), (v_reads(8, 1), 0, 1, 1))
        elif c < 16:
            if c == 11:
                xlane3("v_add_f32", LS, [1, 2, 3])
                k.s2("s_lshl_b32", sT0, sW, 9)
                k.s2("s_add_u32", sT0, sT0, STAT)
                k.v3("v_lshl_add_u32", T3, vQ, 5, sT0)
                k.ds(f"ds_write_b128 {T3}, {vr(ST, 4)}", rd=[T3] + vs(ST, 4), tag="mw")
                k.ds(f"ds_write_b64 {T3}, {vr(ST + 4, 2)} offset:16", rd=[T3] + vs(ST + 4, 2), tag="mw")
            if c == 12:
                k.s2("s_lshl_b32", sT0, sW, 9)
                k.s2("s_xor_b32", sT0, sT0, 1024)
                k.s2("s_add_u32", sT0, sT0, STAT)
                k.v3("v_lshl_add_u32", T3, vQ, 5, sT0)
                k.ds(f"ds_read_b128 {vr(148, 4)}, {T3}", wr=vs(148, 4), rd=[T3], tag="ps")
                k.ds(f"ds_read_b64 {vr(152, 2)}, {T3} offset:16", wr=vs(152, 2), rd=[T3], tag="ps")
            if c == 13:
                PS, MM, R3 = 148, [156, 157, 158], range(3)
                for qt in R3:
                    k.v2("v_max_f32", v(MM[qt]), v(MC[qt]), v(PS + qt))
                for qt in R3:
                    k.v2("v_sub_f32", v(MC[qt]), v(MC[qt]), v(MM[qt]))
                    k.v2("v_sub_f32", v(PS + qt), v(PS + qt), v(MM[qt]))
                for qt in R3:
                    k.v1("v_exp_f32", v(MC[qt]), v(MC[qt]), trans=True)
                    k.v1("v_exp_f32", v(PS + qt), v(PS + qt), trans=True)
                for qt in R3:
                    k.v2("v_mul_f32", v(MM[qt]), v(MC[qt]), v(LS[qt]))
                for qt in R3:
                    k.v3("v_fma_f32", v(MM[qt]), v(PS + qt), v(PS + 3 + qt), v(MM[qt]))
                for qt in R3:
                    k.v1("v_rcp_f32", v(MM[qt]), v(MM[qt]), trans=True)
                for qt in R3:
                    k.v2("v_mul_f32", v(MC[qt]), v(MC[qt]), v(MM[qt]))
                    k.v2("v_mul_f32", v(LS[qt]), v(PS + qt), v(MM[qt]))
            if c == 9:
                k.v2("v_add_u32", L16B, 4096, L16)
            if EARLYB:
                for jb, cb_ in enumerate(EB):
                    if cb_ == c:
                        dm = dm + loadB(jb)
            d0, d1 = (dm, []) if G == 0 else ([], dm)
            if len(dm) > 4:
                d0, d1 = dm[:len(dm) // 2], dm[len(dm) // 2:]
            weave(pv_mfma(c - 1, 1), (v_reads(c, 0), 0, 1, 1), (d0, 1, 2, 1))
            weave(pv_mfma(c, 0), (v_reads(c, 1), 0, 1, 1), (d1, 1, 2, 1))
        else:
            k.s2("s_mul_i32", sT0, sWl, 12288)
            k.s2("s_add_u32", sT0, sT0, SCR)
            k.v2("v_add_u32", T1, sT0, L16)
            wr_ops = []
            for j in range(4):
                for qt in range(3):
                    wr_ops.append(lambda j=j, qt=qt: k.ds(
                        f"ds_write_b128 {T1}, {vr(oreg(j, qt), 4)} offset:{(j * 3 + qt) * 1024}",
                        rd=[T1] + vs(oreg(j, qt), 4), tag="mw"))
            k.wait_lg0()
            weave(pv_mfma(15, 1), (wr_ops, 0, 1, 1))
    k.stamp()
    k.wait_lg0()
    k.barrier()
    k.s2("s_xor_b32", sT1, sWl, 2)
    k.s2("s_mul_i32", sT0, sT1, 12288)
    k.s2("s_add_u32", sT0, sT0, SCR)
    k.v2("v_add_u32", T1, sT0, L16)
    for j in range(4):
        for qt in range(3):
            d = oreg(j, qt)
            k.ds(f"ds_read_b128 {vr(d, 4)}, {T1} offset:{(j * 3 + qt) * 1024}", wr=vs(d, 4), rd=[T1], tag=("po", j))
    for jb, cb_ in enumerate(EB):
        if cb_ == 16:
            run(loadB(jb))
    FO, FP = MC, LS
    k.s2("s_lshl_b32", sT0, sB, 1)
    k.s2("s_add_u32", sT0, sT0, sQh)
    k.s2("s_lshl_b32", sT0, sT0, 7)
    k.s2("s_lshl_b32", sT1, sHead, 2)
    k.s2("s_add_u32", sT0, sT0, sT1)
    k.s2("s_lshl_b32", sT1, sKh, 1)
    k.s2("s_add_u32", sT0, sT0, sT1)
    k.s2("s_mul_i32", sT0, sT0, 3072)
    if OWS:
        k.s2("s_add_u32", sT0, sT0, OWS)
    k.s2("s_add_u32", sT1, sT0, 3072)
    OD = 208
    for jj in range(2):
        for e in range(2):
            j = 2 * jj + e
            for qt in range(3):
                d = oreg(4 + j, qt)
                for r in range(4):
                    k.v2("v_mul_f32", v(d + r), v(d + r), v(FO[qt]))
            k.wait_lg(("po", j))
            for qt in range(3):
                d = oreg(4 + j, qt)
                p = oreg(j, qt)
                for r in range(4):
                    k.valu(f"v_fmac_f32 {v(d + r)}, {v(p + r)}, {v(FP[qt])}", wr=[v(d + r)],
                           rd=[v(d + r), v(p + r), v(FP[qt])])
                od = OD + (jj * 3 + qt) * 4 + 2 * e
                k.v2("v_cvt_pk_bf16_f32", v(od), v(d), v(d + 1))
                k.v2("v_cvt_pk_bf16_f32", v(od + 1), v(d + 2), v(d + 3))
        for qt in range(3):
            od = OD + (jj * 3 + qt) * 4
            so = sT1 if jj else sT0
            k.vmem(f"buffer_store_dwordx4 {vr(od, 4)}, {L16}, {sr(SWS, 4)}, {so} offen offset:{qt * 1024} sc1",
                   rd=vs(od, 4) + [L16, so], tag="ost", store_data=vs(od, 4))
    k.salu("s_branch K1_TAIL")
    mark_tail = len(k.lines)

    k.label("K1_TAIL")
    k.fence()
    rest = [j for j in range(8) if not (j < 3 and EB[j] < 17)]
    for j in rest[:opt.get("npre", 3)]:
        run(loadB(j))
    k.wait_vm("ost")
    k.barrier()
    k.stamp()
    flag_store(sFl)
    for j in rest[opt.get("npre", 3):]:
        run(loadB(j))
    sA1, sA2, sPo, sPf = "s60", "s61", "s62", "s63"
    k.s2("s_lshl_b32", sA2, sRb, 7)
    k.s2("s_add_u32", sA2, sA2, sA)
    k.s2("s_xor_b32", sA1, sA2, 128)
    k.s2("s_mul_i32", sA1, sA1, 3072)
    k.s2("s_mul_i32", sA2, sA2, 3072)
    if OWS:
        k.s2("s_add_u32", sA1, sA1, OWS)
        k.s2("s_add_u32", sA2, sA2, OWS)
    k.s2("s_lshr_b32", sFl, sRb, 1)
    k.s2("s_lshl_b32", sFl, sFl, 12)
    k.s2("s_lshl_b32", sT0, sA, 5)
    k.s2("s_add_u32", sFl, sFl, sT0)
    k.s2("s_add_u32", sFl, sFl, FLG)
    k.s2("s_lshl_b32", sPo, "s2", 4)
    k.s2("s_add_u32", sPo, sPo, sW)
    k.s2("s_lshl_b32", sPo, sPo, 10)
    k.s2("s_add_u32", sPo, sPo, PART)
    k.s2("s_lshl_b32", sPf, "s2", 3)
    k.s2("s_add_u32", sPf, sPf, sW)
    k.s2("s_lshl_b32", sPf, sPf, 6)
    k.s2("s_add_u32", sPf, sPf, PFL)
    k.v1("v_mov_b32", T3, 0)
    flag_load(sFl, 0, "f0")
    flag_check(sFl, 0, "K1_F0", "f0")
    k.stamp()

    def loadA(f):
        ps, j, mt = f // 24, (f % 24) // 3, f % 3
        if mt == 0:
            rot_off(sOA, j, sA2 if ps else sA1, 3072)
        d = AR[f % 7]
        k.vmem(f"buffer_load_dwordx4 {vr(d, 4)}, {L16}, {sr(SWS, 4)}, {sOA} offen offset:{mt * 1024}{AF}",
               wr=vs(d, 4), rd=[L16, sOA], tag=("a", f))

    LW = "v0"

    def acc_to_lds():
        for t in range(15):
            k.ds(f"ds_write_b128 {LW}, {vr(OACC + 4 * t, 4)} offset:{t * 1024}", rd=[LW] + vs(OACC + 4 * t, 4), tag="w")

    def gather(i, RB):
        k.s2("s_lshl_b32", sT0, sW, 10)
        k.s2("s_add_u32", sT0, sT0, i * 8192)
        k.v2("v_add_u32", T0, sT0, L16)
        k.v2("v_add_u32", T1, 65536, T0)
        for s_ in range(8):
            d = RB + s_ * 4
            k.ds(f"ds_read_b128 {vr(d, 4)}, {T0 if s_ < 4 else T1} offset:{(s_ % 4) * 16384}", wr=vs(d, 4),
                 rd=[T0 if s_ < 4 else T1], tag=("r", i))

    def tree(RB):
        for step in (16, 8, 4):
            for o in range(0, step):
                k.v2("v_add_f32", v(RB + o), v(RB + o), v(RB + o + step))

    k.s2("s_lshl_b32", sT0, sW, 14)
    k.v2("v_add_u32", LW, sT0, L16)
    for f in range(7):
        loadA(f)
    R1 = opt.get("r1", 2)
    for f in range(48):
        ps, j, mt = f // 24, (f % 24) // 3, f % 3
        if f == 24:
            k.stamp()
            acc_to_lds()
        if ps == 1 and mt == 0 and j == R1:
            k.comment("reduce pass-1 partials and hand them to the partner")
            k.wait_lg0()
            k.barrier()
            for i in range(2):
                RB = 148
                gather(i, RB)
                k.wait_lg(("r", i))
                tree(RB)
                d = RB + 32 + 4 * i
                for r in range(4):
                    k.v1("v_mov_b32", v(d + r), v(RB + r))
                so = sPo
                if i:
                    k.s2("s_add_u32", sT2, sPo, 8192)
                    so = sT2
                k.vmem(f"buffer_store_dwordx4 {vr(d, 4)}, {L16}, {sr(SWS, 4)}, {so} offen sc1",
                       rd=vs(d, 4) + [L16, so], tag="pst", store_data=vs(d, 4))
            k.stamp()
        if ps == 1 and mt == 0 and j == R1 + 3:
            k.wait_vm("pst")
            flag_store(sPf)
            k.barrier()
        k.wait_vm(("a", f))
        if ps == 0 and mt == 0:
            k.wait_vm(("b", j))
        for nt in range(5):
            d = OACC + (nt * 3 + mt) * 4
            k.mfma(d, BSL[j] + 4 * nt, AR[f % 7], d if j else None)
        if f + 7 < 48:
            loadA(f + 7)
    k.stamp()
    k.s2("s_xor_b32", sPf, sPf, 512)
    k.s2("s_xor_b32", sPo, sPo, 16384)
    k.v1("v_mov_b32", T3, 0)
    flag_load(sPf, 0, "pf")
    acc_to_lds()
    flag_check(sPf, 0, "K1_PF", "pf")
    PP = 208
    k.vmem(f"buffer_load_dwordx4 {vr(PP, 4)}, {L16}, {sr(SWS, 4)}, {sPo} offen sc1", wr=vs(PP, 4), rd=[L16, sPo], tag=("pp", 0))
    k.s2("s_add_u32", sT2, sPo, 8192)
    k.vmem(f"buffer_load_dwordx4 {vr(PP + 4, 4)}, {L16}, {sr(SWS, 4)}, {sT2} offen sc1", wr=vs(PP + 4, 4), rd=[L16, sT2], tag=("pp", 1))
    k.wait_lg0()
    k.barrier()
    k.stamp()
    gather(0, 72)
    gather(1, 104)
    k.v2("v_mul_u32_u24", T2, 1280, vQ)
    k.v3("v_lshl_add_u32", T2, vG, 3, T2)
    for i in range(2):
        k.s2("s_add_u32", sT0, sW, 8 * i)
        k.s2("s_mul_i32", sT1, sT0, 11)
        k.s2("s_lshr_b32", sT1, sT1, 5)
        k.s2("s_mul_i32", sT2, sT1, 3)
        k.s2("s_sub_u32", sT2, sT0, sT2)
        k.s2("s_mul_i32", sA, sRb, 48)
        k.s2("s_lshl_b32", sT2, sT2, 4)
        k.s2("s_add_u32", sA, sA, sT2)
        k.s2("s_mul_i32", sA, sA, 1280)
        k.s2("s_mul_i32", sBo, sCb, 160)
        k.s2("s_add_u32", sA, sA, sBo)
        k.s2("s_lshl_b32", sT1, sT1, 5)
        k.s2("s_add_u32", sA, sA, sT1)
        if i == 1:
            k.salu(f"s_cmp_lt_u32 {sW}, 7")
            k.salu(f"s_cselect_b32 {sA}, {sA}, {OOB}", wr=[sA])
        k.wait_lg(("r", i))
        d = 72 + i * 32
        tree(d)
        k.wait_vm(("pp", i))
        for r in range(4):
            k.v2("v_add_f32", v(d + r), v(d + r), v(PP + 4 * i + r))
        k.v2("v_cvt_pk_bf16_f32", v(d + 4), v(d), v(d + 1))
        k.v2("v_cvt_pk_bf16_f32", v(d + 5), v(d + 2), v(d + 3))
        k.vmem(f"buffer_store_dwordx2 {vr(d + 4, 2)}, {T2}, {sr(SOUT, 4)}, {sA} offen{OF}",
               rd=vs(d + 4, 2) + [T2, sA], tag="st")
    if opt.get("ts"):
        k.wait_vm0()
    k.flush_stamps(SWS, sW, TSBASE, 8)
    k.salu("s_endpgm")
    k.tail = k.lines[mark_tail:]
    del k.lines[mark_tail:]

    k.label(f"K1_SLOW{sfx}")
    k.nop(8)
    D = [SP, SP + 1, SP + 2]
    F = [SP + 4, SP + 5, SP + 6]
    xlane3("v_max_f32", D, [SP + 8, SP + 9, SP + 10])
    for qt in range(3):
        k.v1("v_ceil_f32", v(D[qt]), v(D[qt]))
        k.v2("v_max_f32", v(D[qt]), 0, v(D[qt]))
        k.v2("v_add_f32", v(MC[qt]), v(MC[qt]), v(D[qt]))
        for r in range(8):
            x = sreg(qt, 0) + r
            k.v2("v_sub_f32", v(x), v(x), v(D[qt]))
        k.v2("v_sub_f32", v(F[qt]), 0, v(D[qt]))
        k.v1("v_exp_f32", v(F[qt]), v(F[qt]), trans=True)
        k.v2("v_mul_f32", v(LS[qt]), v(LS[qt]), v(F[qt]))
    for cc in range(7):
        if cc > 0:
            k.salu(f"s_cmp_le_u32 {sRet}, {cc}")
            k.salu(f"s_cbranch_scc1 K1_SLOW_DONE{sfx}")
        for qt in range(3):
            for r in range(4):
                x = preg(cc) + qt * 4 + r
                a, b = SP + 8, SP + 9
                k.v2("v_lshlrev_b32", v(a), 16, v(x))
                k.v2("v_and_b32", v(b), "0xffff0000", v(x))
                k.v2("v_mul_f32", v(a), v(a), v(F[qt]))
                k.v2("v_mul_f32", v(b), v(b), v(F[qt]))
                k.v2("v_cvt_pk_bf16_f32", v(x), v(a), v(b))
    k.label(f"K1_SLOW_DONE{sfx}")
    k.nop(4)
    for c in sites[:-1]:
        k.salu(f"s_cmp_eq_u32 {sRet}, {c}")
        k.salu(f"s_cbranch_scc1 K1_RET{c}{sfx}")
    k.salu(f"s_branch K1_RET{sites[-1]}{sfx}")
    return k, split


def build(opt):
    k0, split = gen(opt, 0)
    k1, _ = gen(opt, 1)
    assert k0.tail == k1.tail
    lines = k0.lines[:split]
    lines += ["    s_cmp_eq_u32 s49, 1", "    s_cbranch_scc1 K1_G1"]
    lines += k0.lines[split:]
    lines.append("K1_G1:")
    lines += k1.lines[split:]
    lines += k0.tail
    lines += ["K1_END:", "    s_endpgm", "K1_CODE_END:"]
    name = NAME + "_kernel"
    out = HEADER
    out += "; @launch grid=(256,1,1) block=(512,1,1) lds=163840\n"
    out += '.amdgcn_target "amdgcn-amd-amdhsa--gfx950"\n.text\n'
    out += f".globl {name}\n.p2align 8\n.type {name},@function\n{name}:\n" + "\n".join(lines) + "\n"
    out += '.section .rodata,"a"\n.p2align 6\n'
    out += kd(name, 256, 102)
    return out, k0


if __name__ == "__main__":
    opt = {}
    path = sys.argv[1] if len(sys.argv) > 1 else f"cdna_kernels/{NAME}.s"
    for a in sys.argv[2:]:
        kk, vv = a.split("=")
        opt[kk] = float(vv) if "." in vv else int(vv)
    txt, k1 = build(opt)
    open(path, "w").write(txt)
    print("wrote", path, len(txt), "bytes; slots", k1.slot, "stamps", k1.nstamp)
```

```python
import sys
import dsl
from dsl import Kern, vr, sr, vs, ss
from gen1 import (NAME, X_BYTES, KV_BYTES, W_BYTES, OUT_BYTES, WS_BYTES, OWS, WOT, CSCALE, TSBASE,
                  f32bits, build_srd, add_stamps, code_touch, HEADER, kd)

dsl.EXACT_VM = True
THRESH = 10.0
FLG = 24 << 20
WFL = 25 << 20
PART = 26 << 20
PFL = 31 << 20
OOB = "0x7f000000"


def v(i):
    return f"v{i}"


def gen(opt, G):
    k = Kern()
    add_stamps(k, opt)
    sfx = f"_{G}"
    NT = " nt" if opt.get("nt", 1) else ""
    SX, SK, SV, SWQ, SWO, SWS, SOUT, SDBG = 4, 8, 12, 16, 20, 24, 32, 36
    sW, sGrp, sQh, sKh, sWl, sHp, sB = "s48", "s49", "s50", "s51", "s52", "s53", "s54"
    sKV, sT0, sT1, sT2, sC, sRing, sM0K, sM0W, sM0X, sOff = (
        "s55", "s56", "s57", "s58", "s59", "s60", "s61", "s62", "s63", "s64")
    sWqOff, sXOff, sHead, sRet, sThr = "s65", "s66", "s67", "s28", "s29"
    sKW, sKX = "s3", "s47"
    sRb, sCb, sA, sBo, sFl = "s40", "s41", "s42", "s43", "s44"
    XS0 = 131072
    STAT = 155648

    k.stamp()
    k.salu("s_cmp_ge_u32 s2, 256")
    k.salu("s_cbranch_scc1 K1_END")
    k.salu("s_load_dwordx16 s[32:47], s[0:1], 0")
    CT = opt.get("ct", 0)
    if CT == 0:
        code_touch(k, "K1", "K1_CODE_END", "v0", "v2", "v31", 512)
    else:
        k.v1("v_mov_b32", "v63", "v0")
    k.v2("v_lshrrev_b32", "v1", 6, "v0")
    k.v2("v_and_b32", "v0", 63, "v0")
    k.valu(f"v_readfirstlane_b32 {sW}, v1", wr=[sW], rd=["v1"], lane=True)
    k.s2("s_and_b32", sT0, "s2", 7)
    k.s2("s_lshr_b32", sT1, "s2", 3)
    k.s2("s_and_b32", sHp, sT0, 3)
    k.s2("s_lshl_b32", sHp, sHp, 2)
    k.s2("s_and_b32", sT2, sT1, 3)
    k.s2("s_add_u32", sHp, sHp, sT2)
    if opt.get("hpx", 0):
        k.s2("s_xor_b32", sHp, sHp, opt.get("hpx"))
    k.s2("s_mul_i32", sKW, sT2, 10)
    k.s2("s_lshr_b32", sT2, sT1, 2)
    k.s2("s_mul_i32", sOff, sT2, 5)
    k.s2("s_add_u32", sKW, sKW, sOff)
    k.s2("s_lshr_b32", sKW, sKW, 2)
    k.s2("s_sub_u32", sOff, sKW, 10)
    k.salu(f"s_cmp_ge_u32 {sKW}, 10")
    k.salu(f"s_cselect_b32 {sKW}, {sOff}, {sKW}", wr=[sKW])
    if opt.get("rot", 1) == 0:
        k.s1("s_mov_b32", sKW, 0)
    elif opt.get("rot", 1) == 2:
        k.s2("s_and_b32", sKW, sKW, 1)
        k.s2("s_mul_i32", sKW, sKW, 5)
    k.s2("s_lshr_b32", sB, sT0, 2)
    k.s2("s_lshl_b32", sB, sB, 3)
    k.s2("s_add_u32", sB, sB, sT2)
    k.s2("s_lshr_b32", sGrp, sW, 2)
    k.s2("s_and_b32", sQh, sW, 1)
    k.s2("s_bfe_u32", sKh, sW, "0x10001")
    k.s2("s_and_b32", sWl, sW, 3)
    k.s2("s_lshl_b32", sHead, sHp, 1)
    k.s2("s_add_u32", sHead, sHead, sGrp)
    k.s2("s_lshl_b32", sT0, sB, 5)
    k.s2("s_add_u32", sT0, sT0, sHead)
    k.s2("s_lshl_b32", sKV, sT0, 17)
    k.s2("s_lshl_b32", sT1, sWl, 12)
    k.s2("s_add_u32", sKV, sKV, sT1)
    KROT = opt.get("krot", 4)
    if KROT:
        if KROT == 1:
            k.s2("s_add_u32", sT2, sHp, sB)
        elif KROT == 2:
            k.s2("s_and_b32", sT2, sHp, 1)
            k.s2("s_lshl_b32", sT2, sT2, 2)
        elif KROT == 3:
            k.s2("s_mul_i32", sT2, sT0, 5)
            k.s2("s_lshr_b32", sOff, sT0, 3)
            k.s2("s_add_u32", sT2, sT2, sOff)
        elif KROT == 4:
            k.s1("s_mov_b32", sT2, sHead)
        elif KROT == 5:
            k.s1("s_mov_b32", sT2, sB)
        elif KROT == 6:
            k.s2("s_lshl_b32", sT2, sGrp, 2)
        k.s2("s_and_b32", sT2, sT2, 7)
        k.s2("s_lshl_b32", sT2, sT2, 14)
        k.s2("s_or_b32", sKV, sKV, sT2)
    k.s2("s_lshl_b32", sRing, sGrp, 16)
    k.s2("s_add_u32", sM0K, sRing, sT1)
    k.s2("s_lshl_b32", sM0W, sW, 11)
    k.s2("s_add_u32", sM0W, sM0W, 32768)
    k.s2("s_mul_i32", sM0X, sW, 1536)
    k.s2("s_add_u32", sM0X, sM0X, XS0)
    k.s1("s_mov_b32", sC, hex(f32bits(CSCALE)))
    k.s1("s_mov_b32", sThr, hex(f32bits(opt.get("thr", THRESH))))

    LANE = "v0"
    T0, T1, T2, T3 = "v1", "v2", "v3", "v4"
    vG, vQ, L16 = "v5", "v6", "v7"
    KD = [8, 9, 10, 11]
    KR = [12, 13, 14, 15]
    VD = [16, 17]
    ST = 18
    MC = [18, 19, 20]
    LS = [21, 22, 23]
    VR = [24, 25, 26, 27, 28, 29, 30, 31]
    FR, QF, S0, SP = 32, 64, 112, 136
    ACC = 64
    QA = [32, 112]
    WQD = [24, 25]
    XD = [26, 27]
    WQR = [28, 29, 30, 60]
    XR = [18, 19]
    QW, QR = 20, 21
    STG = 160

    def preg(c):
        return 148 if c == 0 else 160 + 12 * (c - 1)

    def oreg(j, qt):
        o = j * 3 + qt
        return QF + 4 * o if o < 21 else 244 + 4 * (o - 21)

    k.v2("v_lshrrev_b32", vG, 4, LANE)
    k.v2("v_and_b32", vQ, 15, LANE)
    k.v2("v_lshlrev_b32", L16, 4, LANE)
    k.v2("v_lshrrev_b32", T0, 5, LANE)
    k.s2("s_lshl_b32", sT0, sKh, 2)
    k.v2("v_add_u32", T1, sT0, T0)
    k.s2("s_lshl_b32", sT0, sW, 2)
    k.v2("v_add_u32", T0, sT0, T0)
    k.v2("v_lshlrev_b32", T0, 13, T0)
    k.s2("s_lshl_b32", sT0, sHp, 9)
    k.v2("v_add_u32", T0, sT0, T0)
    k.v3("v_bfe_u32", T2, LANE, 4, 1)
    k.v3("v_lshl_add_u32", T0, T2, 8, T0)
    for i in range(2):
        k.v2("v_add_u32", T2, 2 * i, T1)
        k.v2("v_lshlrev_b32", T2, 1, T2)
        k.v2("v_xor_b32", T2, T2, vQ)
        k.v3("v_lshl_add_u32", v(WQD[i]), T2, 4, T0)
        if i:
            k.v2("v_add_u32", v(WQD[i]), 2 * 8192 - 1024, v(WQD[i]))
    k.s2("s_mul_i32", sT0, sW, 12)
    k.v2("v_lshrrev_b32", T0, 3, LANE)
    k.v2("v_add_u32", T0, sT0, T0)
    k.v2("v_and_b32", T3, 7, LANE)
    k.s2("s_mul_i32", sT1, sB, 96)
    k.s1("s_mov_b32", sT2, 1280)
    for i in range(2):
        if i:
            k.v2("v_add_u32", T0, 8, T0)
        k.v3("v_bfe_u32", T1, T0, 1, 3)
        k.v2("v_xor_b32", T1, T1, T3)
        k.v2("v_add_u32", T2, sT1, T0)
        k.v2("v_mul_lo_u32", T2, T2, sT2)
        k.v3("v_lshl_add_u32", v(XD[i]), T1, 4, T2)
        if i:
            k.v2("v_subrev_u32", v(XD[i]), 1024, v(XD[i]))

    k.salu("s_waitcnt lgkmcnt(0)")
    build_srd(k, SX, 32, X_BYTES)
    build_srd(k, SWQ, 38, W_BYTES)
    build_srd(k, SWS, 46, WS_BYTES)
    k.s1("s_mov_b32", sKX, sKW)
    k.stamp()

    def run(ps):
        for p in ps:
            p()

    def weave(prim, *secs):
        secs = [(list(l), st, sd, per) for (l, st, sd, per) in secs]
        for i, p in enumerate(prim):
            p()
            for (l, st, sd, per) in secs:
                if i >= st and (i - st) % sd == 0:
                    for _ in range(per):
                        if l:
                            l.pop(0)()
        for (l, st, sd, per) in secs:
            run(l)

    def wqs_off(pos):
        return (pos & 1) * 16384 + (pos >> 1) * 65536

    def setm0(base, off):
        if off:
            k.s2("s_add_u32", "m0", base, off)
        else:
            k.s1("s_mov_b32", "m0", base)

    def bump(ctr):
        k.s2("s_add_u32", ctr, ctr, 1)
        k.salu(f"s_cmp_eq_u32 {ctr}, 10")
        k.salu(f"s_cselect_b32 {ctr}, 0, {ctr}", wr=[ctr])

    def dma_wq(c):
        def p0():
            setm0(sM0W, wqs_off(c % 4))
            if c % 2 == 0:
                k.s2("s_lshl_b32", sWqOff, sKW, 19)
            else:
                k.s2("s_add_u32", sWqOff, sWqOff, 262144)
            k.vmem(f"buffer_load_dwordx4 {v(WQD[0])}, {sr(SWQ, 4)}, {sWqOff} offen lds",
                   rd=[v(WQD[0]), sWqOff], tag=("wq", c), dma=True)
            k.vmem(f"buffer_load_dwordx4 {v(WQD[1])}, {sr(SWQ, 4)}, {sWqOff} offen offset:1024 lds",
                   rd=[v(WQD[1]), sWqOff], tag=("wq", c), dma=True)
            if c % 2 == 1:
                bump(sKW)
        return [p0]

    def dma_x(j):
        def p0():
            setm0(sM0X, (j & 1) * 12288)
            k.s2("s_lshl_b32", sXOff, sKX, 7)
            k.vmem(f"buffer_load_dwordx4 {v(XD[0])}, {sr(SX, 4)}, {sXOff} offen lds",
                   rd=[v(XD[0]), sXOff], tag=("x", j), dma=True)
            k.salu("s_mov_b32 exec_hi, 0")
            k.vmem(f"buffer_load_dwordx4 {v(XD[1])}, {sr(SX, 4)}, {sXOff} offen offset:1024 lds",
                   rd=[v(XD[1]), sXOff], tag=("x", j), dma=True)
            k.salu("s_mov_b32 exec_hi, -1")
            bump(sKX)
        return [p0]

    run(dma_x(0) + dma_wq(0) + dma_wq(1))
    if CT == 1:
        code_touch(k, "K1", "K1_CODE_END", "v63", "v2", "v31", 512)
    build_srd(k, SK, 34, KV_BYTES)
    build_srd(k, SV, 36, KV_BYTES)
    build_srd(k, SWO, 40, W_BYTES)
    build_srd(k, SOUT, 42, OUT_BYTES)
    build_srd(k, SDBG, 44, 256)
    k.v2("v_xor_b32", T0, vQ, vG)
    k.v2("v_lshlrev_b32", T0, 4, T0)
    k.v3("v_lshl_add_u32", v(KD[0]), vG, 8, T0)
    for i in range(1, 4):
        k.v2("v_xor_b32", v(KD[i]), 64 * i, v(KD[0]))
    k.v2("v_lshlrev_b32", T0, 1, vG)
    k.v2("v_xor_b32", T0, T0, vQ)
    k.v2("v_lshlrev_b32", T0, 4, T0)
    k.v3("v_lshl_add_u32", v(VD[0]), vG, 8, T0)
    k.v2("v_xor_b32", v(VD[1]), 128, v(VD[0]))
    k.v3("v_bfe_u32", T0, LANE, 2, 2)
    k.v2("v_and_b32", T1, 1, vG)
    k.v3("v_lshl_add_u32", T1, T1, 2, T0)
    k.v3("v_lshl_add_u32", T2, vG, 3, T0)
    k.v2("v_lshlrev_b32", T2, 9, T2)
    k.v2("v_and_b32", T3, 3, LANE)
    k.v3("v_lshl_add_u32", T2, T3, 3, T2)
    k.s2("s_lshl_b32", sT0, sGrp, 8)
    k.s2("s_add_u32", sT0, sT0, 32768)
    k.v2("v_add_u32", T2, sT0, T2)
    k.s2("s_lshl_b32", sT0, sKh, 2)
    k.v2("v_xor_b32", T1, sT0, T1)
    for dt in range(4):
        k.v2("v_xor_b32", T3, dt, T1)
        k.v3("v_lshl_add_u32", v(WQR[dt]), T3, 5, T2)
    k.s2("s_mul_i32", sT0, sQh, 48 * 128)
    k.s2("s_add_u32", sT0, sT0, XS0)
    k.v2("v_lshlrev_b32", T0, 7, vQ)
    k.v2("v_add_u32", T0, sT0, T0)
    k.v2("v_lshrrev_b32", T1, 1, vQ)
    k.v2("v_xor_b32", T1, T1, vG)
    k.v3("v_lshl_add_u32", v(XR[0]), T1, 4, T0)
    k.v2("v_xor_b32", v(XR[1]), 64, v(XR[0]))
    k.s2("s_mul_i32", sT0, sQh, 12 * 1024)
    k.s2("s_add_u32", sT0, sT0, sRing)
    k.s2("s_add_u32", sT0, sT0, 32768)
    k.v2("v_add_u32", v(QR), sT0, L16)
    k.s2("s_lshl_b32", sT1, sKh, 11)
    k.s2("s_add_u32", sT0, sT0, sT1)
    k.v2("v_lshrrev_b32", T0, 1, vG)
    k.v2("v_lshlrev_b32", T0, 8, T0)
    k.v3("v_lshl_add_u32", T0, vQ, 4, T0)
    k.v2("v_and_b32", T1, 1, vG)
    k.v3("v_lshl_add_u32", T0, T1, 3, T0)
    k.v2("v_add_u32", v(QW), sT0, T0)
    k.s2("s_lshl_b32", sT0, sKh, 13)
    k.s2("s_add_u32", sT0, sT0, sRing)
    k.v2("v_xor_b32", T0, vG, vQ)
    k.v2("v_lshlrev_b32", T0, 4, T0)
    k.v3("v_lshl_add_u32", T0, vQ, 8, T0)
    k.v2("v_add_u32", v(KR[0]), sT0, T0)
    for ds_ in range(1, 4):
        k.v2("v_xor_b32", v(KR[ds_]), 64 * ds_, v(KR[0]))
    sRho = "s46"
    if opt.get("omap", 1) == 0:
        k.s2("s_lshr_b32", sT1, "s2", 3)
        k.s2("s_and_b32", sCb, sT1, 7)
        k.s2("s_lshr_b32", sT1, sT1, 3)
        k.s2("s_lshl_b32", sRho, sT1, 1)
        k.s2("s_add_u32", sRho, sRho, sCb)
        k.s2("s_bfe_u32", sT0, "s2", "0x20001")
        k.s2("s_lshl_b32", sT0, sT0, 2)
        k.s2("s_add_u32", sRb, sT0, sT1)
    else:
        k.s2("s_bfe_u32", sCb, "s2", "0x20003")
        k.s2("s_lshr_b32", sT1, "s2", 5)
        k.s2("s_lshl_b32", sRho, sCb, 1)
        k.s2("s_add_u32", sRho, sRho, sT1)
        k.s2("s_bfe_u32", sT0, "s2", "0x10001")
        k.s2("s_lshl_b32", sT0, sT0, 2)
        k.s2("s_add_u32", sCb, sCb, sT0)
        k.s2("s_bfe_u32", sT0, "s2", "0x10002")
        k.s2("s_lshl_b32", sT0, sT0, 3)
        k.s2("s_add_u32", sRb, sT0, sT1)
    k.s2("s_lshl_b32", sRb, sRb, 1)
    k.s2("s_and_b32", sT2, "s2", 1)
    k.s2("s_add_u32", sRb, sRb, sT2)
    k.s2("s_lshl_b32", sA, sT2, 3)
    k.s2("s_add_u32", sA, sA, sW)
    k.s2("s_lshl_b32", sA, sA, 3)
    k.s2("s_mul_i32", sBo, sA, 40)
    k.s2("s_mul_i32", sT0, sCb, 5)
    k.s2("s_add_u32", sBo, sBo, sT0)
    k.s2("s_lshl_b32", sBo, sBo, 10)
    k.s2("s_add_u32", sBo, sBo, WOT)
    k.s2("s_lshl_b32", sFl, sB, 4)
    k.s2("s_add_u32", sFl, sFl, sHp)
    k.s2("s_lshl_b32", sFl, sFl, 8)
    k.s2("s_add_u32", sFl, sFl, FLG)
    k.salu(f"s_cmp_eq_u32 {sW}, 0")
    k.salu(f"s_cselect_b32 {sFl}, {sFl}, {OOB}", wr=[sFl])

    sN0, sN1 = "s30", "s31"

    def flag_store(saddr, srd=SWS):
        k.v1("v_mov_b32", "v2", sN0)
        k.v1("v_mov_b32", "v3", sN1)
        k.v1("v_mov_b32", T0, 0)
        k.salu("s_mov_b64 exec, 1")
        k.vmem(f"buffer_store_dwordx2 v[2:3], {T0}, {sr(srd, 4)}, {saddr} offen sc1", rd=["v2", "v3", T0, saddr], tag="flag")
        k.salu("s_mov_b64 exec, -1")
        k.nop(2)

    k.salu("s_memrealtime s[30:31]")
    k.s2("s_or_b32", sT0, "s2", sW)
    k.salu(f"s_cmp_eq_u32 {sT0}, 0")
    k.salu(f"s_cselect_b32 {sT0}, 0, {OOB}", wr=[sT0])
    k.salu("s_waitcnt lgkmcnt(0)")
    k.s2("s_or_b32", sN1, sN1, "0x80000000")
    flag_store(sT0, SDBG)
    if opt.get("dly", 0) == 1:
        k.wait_vm("touch")
    if opt.get("dly", 0) == 2:
        k.wait_vm(("x", 0))
    if opt.get("dly", 0) == 3:
        k.wait_vm(("wq", 0))
    run(dma_x(1) + dma_wq(2) + dma_wq(3))
    split = len(k.lines)
    k.fence()
    if opt.get(f"prio{G}", 0):
        k.salu(f"s_setprio {opt.get(f'prio{G}')}")

    JIT = opt.get("jit", 0)

    def slot_of(c):
        if not JIT:
            return c % 4
        return (c + 1) % 2 if c < 8 else [2, 3, 1, 0][(c - 8) % 4]

    X5 = opt.get("x5", 0)
    X5OFF = 131072 - G * 49152

    def dma_kv(c, staged=None):
        slot = slot_of(c)
        cc = c % 8

        def piece(i):
            def p():
                if staged is None:
                    setm0(sM0K, X5OFF if (X5 and c == 15) else slot * 16384)
                if cc:
                    k.s2("s_xor_b32", sOff, sKV, cc * 16384)
                else:
                    k.s1("s_mov_b32", sOff, sKV)
                a, srd = (v(KD[i]), SK) if c < 8 else (v(VD[i & 1]), SV)
                if staged is None:
                    k.vmem(f"buffer_load_dwordx4 {a}, {sr(srd, 4)}, {sOff} offen offset:{i * 1024}{NT} lds",
                           rd=[a, sOff], tag=("kv", c), dma=True)
                else:
                    d = staged + 4 * i
                    k.vmem(f"buffer_load_dwordx4 {vr(d, 4)}, {a}, {sr(srd, 4)}, {sOff} offen offset:{i * 1024}{NT}",
                           wr=vs(d, 4), rd=[a, sOff], tag=("kv", c))
            return p
        return [piece(i) for i in range(4)]

    FOLD = opt.get("fold", 0)
    NM = [244, 248, 252]
    NSTG = 6 if JIT else opt.get("nstg", 5 if FOLD else 6)
    assert not (FOLD and NSTG > 5)
    sched = [opt.get(f"k{n}", d) for n, d in enumerate([7, 10, 13, 16, 19, 20, 21, 22])]
    issue = {}
    for n in range(2 + NSTG):
        issue.setdefault(sched[n], []).extend(dma_kv(n, None if n < 2 else STG + 16 * (n - 2)))

    WOL = 0
    WO_DMA, WO_DO, WO_SIG = opt.get("wodma", 0), opt.get("wodo", 4), opt.get("wosig", 7)
    assert WO_DO < sched[0] - 0

    def wo_dma():
        k.s2("s_lshr_b32", sT0, "s2", 1)
        k.s2("s_lshl_b32", sT0, sT0, 5)
        k.s2("s_lshl_b32", sT1, sW, 2)
        k.s2("s_add_u32", sT0, sT0, sT1)
        k.s2("s_mul_i32", sT0, sT0, 1280)
        k.s2("s_and_b32", sT2, "s2", 1)
        k.s2("s_mul_i32", sT2, sT2, 640)
        k.s2("s_add_u32", sT0, sT0, sT2)
        k.s2("s_mul_i32", sT1, sW, 4 * 640)
        if WOL:
            k.s2("s_add_u32", sT1, sT1, WOL)
        k.salu("s_mov_b32 exec_hi, 0xff")
        for i in range(4):
            k.s1("s_mov_b32", "m0", sT1)
            k.vmem(f"buffer_load_dwordx4 {L16}, {sr(SWO, 4)}, {sT0} offen lds", rd=[L16, sT0], tag="wo", dma=True)
            k.s2("s_add_u32", sT0, sT0, 1280)
            k.s2("s_add_u32", sT1, sT1, 640)
        k.salu("s_mov_b32 exec_hi, -1")

    WD = 144
    NWO = 3 if G == 0 else 2

    def wo_read():
        k.v3("v_bfe_u32", T0, LANE, 2, 2)
        k.v3("v_lshl_add_u32", T0, vG, 2, T0)
        k.v2("v_mul_u32_u24", T0, 640, T0)
        k.v2("v_and_b32", T1, 3, LANE)
        k.v3("v_lshl_add_u32", T0, T1, 3, T0)
        k.s2("s_lshl_b32", sT0, sW, 5)
        if WOL:
            k.s2("s_add_u32", sT0, sT0, WOL)
        k.v2("v_add_u32", T0, sT0, T0)
        for i in range(NWO):
            for u in range(2):
                d = WD + i * 4 + 2 * u
                k.ds(f"ds_read_b64_tr_b16 {vr(d, 2)}, {T0} offset:{u * 10240 + i * 256}",
                     wr=vs(d, 2), rd=[T0], tag="wor")

    def wo_store():
        k.s2("s_mul_i32", sT0, "s2", 20)
        k.s2("s_add_u32", sT0, sT0, sW)
        k.s2("s_lshl_b32", sT0, sT0, 10)
        k.s2("s_add_u32", sT0, sT0, WOT)
        for i in range(NWO):
            k.vmem(f"buffer_store_dwordx4 {vr(WD + 4 * i, 4)}, {L16}, {sr(SWS, 4)}, {sT0} offen sc1",
                   rd=vs(WD + 4 * i, 4) + [L16, sT0], tag="wost", store_data=vs(WD + 4 * i, 4))
            if i < NWO - 1:
                k.s2("s_add_u32", sT0, sT0, 8192)

    def w_signal():
        k.s2("s_lshl_b32", sT2, "s2", 6)
        k.s2("s_add_u32", sT2, sT2, WFL)
        k.salu(f"s_cmp_eq_u32 {sW}, 0")
        k.salu(f"s_cselect_b32 {sT2}, {sT2}, {OOB}", wr=[sT2])
        flag_store(sT2)

    def tlb_touch():
        k.s2("s_lshl_b32", sT0, sB, 1)
        k.s2("s_add_u32", sT0, sT0, sQh)
        k.s2("s_lshl_b32", sT0, sT0, 7)
        k.s2("s_lshl_b32", sT1, sHead, 2)
        k.s2("s_add_u32", sT0, sT0, sT1)
        k.s2("s_lshl_b32", sT1, sKh, 1)
        k.s2("s_add_u32", sT0, sT0, sT1)
        k.s2("s_mul_i32", sT0, sT0, 3072)
        k.v1("v_mov_b32", T0, 0)
        k.vmem(f"buffer_load_dword v156, {T0}, {sr(SWS, 4)}, {sT0} offen sc1", wr=["v156"], rd=[T0, sT0], tag="tlb")
        k.s1("s_mov_b32", sT1, FLG + (1 << 19))
        k.vmem(f"buffer_load_dword v157, {T0}, {sr(SWS, 4)}, {sT1} offen sc1", wr=["v157"], rd=[T0, sT1], tag="tlb")
        k.s2("s_mul_i32", sT2, sRb, 48 * 1280)
        k.vmem(f"buffer_load_dword v158, {T0}, {sr(SOUT, 4)}, {sT2} offen sc1", wr=["v158"], rd=[T0, sT2], tag="tlb")

    NV = 62

    def nonce_load():
        k.v1("v_mov_b32", v(61), 0)
        k.vmem(f"buffer_load_dwordx2 {vr(NV, 2)}, v61, {sr(SDBG, 4)}, 0 offen sc1", wr=vs(NV, 2), rd=["v61"], tag="nonce")

    def nonce_check():
        name = f"K1_N{sfx}"
        k.wait_vm("nonce")
        k.s1("s_mov_b32", sT1, 0)
        k.label(f"{name}_CMP")
        k._emit(f"v_readfirstlane_b32 {sN0}, v{NV}")
        k._emit(f"v_readfirstlane_b32 {sN1}, v{NV + 1}")
        k._emit(f"s_add_u32 {sT1}, {sT1}, 1")
        k._emit(f"s_cmp_lg_u32 {sN1}, 0")
        k._emit(f"s_cbranch_scc1 {name}_OK")
        k._emit(f"s_cmp_ge_u32 {sT1}, 0x40000")
        k._emit(f"s_cbranch_scc1 {name}_OK")
        k._emit("s_sleep 4")
        k._emit(f"buffer_load_dwordx2 {vr(NV, 2)}, v61, {sr(SDBG, 4)}, 0 offen sc1")
        k._emit("s_waitcnt vmcnt(0)")
        k._emit(f"s_branch {name}_CMP")
        k.label(f"{name}_OK")
        k.nop(4)

    def q_reads(c):
        ops = []
        A = QA[c & 1]
        B = A + 16
        for qt in range(3):
            ops.append(lambda qt=qt: k.ds(
                f"ds_read_b128 {vr(B + 4 * qt, 4)}, {v(XR[c & 1])} offset:{qt * 2048 + ((c // 2) & 1) * 12288}",
                wr=vs(B + 4 * qt, 4), rd=[v(XR[c & 1])], tag="qf"))
        for dt in range(4):
            def rd2(dt=dt):
                if c > 0 and c % 2 == 0:
                    k.v2("v_xor_b32", v(WQR[dt]), "0x10000", v(WQR[dt]))
                for u in range(2):
                    k.ds(f"ds_read_b64_tr_b16 {vr(A + 4 * dt + 2 * u, 2)}, {v(WQR[dt])} offset:{u * 2048 + (c & 1) * 16384}",
                         wr=vs(A + 4 * dt + 2 * u, 2), rd=[v(WQR[dt])], tag="qf")
            ops.append(rd2)
        return ops

    if WO_DMA == -1:
        wo_dma()
    run(issue.get(-1, []))
    k.wait_vm(("x", 0))
    k.wait_vm(("wq", 0))
    k.barrier()
    k.stamp()
    run(q_reads(0))
    for c in range(20):
        k.comment(f"---- qproj kstep {c}")
        if c + 1 < 20:
            k.wait_vm(("x", (c + 1) // 2))
            k.wait_vm(("wq", c + 1))
        if c == WO_DO:
            k.wait_vm("wo")
        if c == WO_SIG - 1:
            nonce_check()
        if c == WO_SIG:
            k.wait_vm("wost")
        k.wait_lg0()
        k.barrier()
        if c in ((3, 7, 11, 15) if not opt.get("dbg15") else (7, 15)):
            k.stamp()
        pieces = []
        if c % 2 == 1 and (c + 1) // 2 + 1 < 10:
            pieces += dma_x((c + 1) // 2 + 1)
        if c + 4 < 20:
            pieces += dma_wq(c + 4)
        if c == WO_DMA:
            pieces.append(wo_dma)
        if c == WO_DO + 1:
            pieces.append(wo_store)
        if c == WO_SIG - 4:
            pieces.insert(0, nonce_load)
        if c == opt.get("tlb", -1):
            pieces.append(tlb_touch)
        if c == WO_SIG and G == 0:
            pieces.append(w_signal)
        pieces += issue.get(c, [])
        A = QA[c & 1]
        B = A + 16
        mf = []
        for dt in range(4):
            for qt in range(3):
                d = ACC + (dt * 3 + qt) * 4
                mf.append(lambda d=d, dt=dt, qt=qt: k.mfma(d, A + 4 * dt, B + 4 * qt, d if c else None))
        rds = q_reads(c + 1) if c + 1 < 20 else []
        if c == WO_DO:
            rds.append(wo_read)
        weave(mf, (rds, 0, 1, 1), (pieces, opt.get("qdma0", 1) if G == 0 else opt.get("qdma1", 7), 3, 1))
    k.stamp()
    TQ = 32
    for dt in range(4):
        for qt in range(3):
            d = ACC + (dt * 3 + qt) * 4
            t = TQ + (dt * 3 + qt) * 2
            if FOLD:
                for r in range(4):
                    k.v2("v_mul_f32", v(d + r), sC, v(d + r))
            k.v2("v_cvt_pk_bf16_f32", v(t), v(d), v(d + 1))
            k.v2("v_cvt_pk_bf16_f32", v(t + 1), v(d + 2), v(d + 3))
            k.ds(f"ds_write_b64 {v(QW)}, {vr(t, 2)} offset:{qt * 4096 + dt * 512}", rd=[v(QW)] + vs(t, 2), tag="qw")
    k.v3("v_bfe_u32", T0, LANE, 2, 2)
    k.v2("v_and_b32", T1, 1, vG)
    k.v3("v_lshl_add_u32", T1, T1, 2, T0)
    k.s2("s_lshl_b32", sT0, sKh, 2)
    k.s2("s_xor_b32", sT0, sT0, 4)
    k.v2("v_xor_b32", T1, sT0, T1)
    k.v3("v_lshl_add_u32", T2, vG, 2, T0)
    k.v2("v_lshlrev_b32", T2, 8, T2)
    k.v2("v_and_b32", T3, 3, LANE)
    k.v3("v_lshl_add_u32", T2, T3, 3, T2)
    k.s2("s_lshl_b32", sT0, sKh, 13)
    k.s2("s_add_u32", sT0, sT0, sRing)
    k.v2("v_add_u32", T2, sT0, T2)
    for j in range(8):
        k.v2("v_xor_b32", T3, j, T1)
        k.v3("v_lshl_add_u32", v(VR[j]), T3, 5, T2)

    def k_reads(c):
        slot = slot_of(c)
        ops = []
        for t in range(2):
            for ds_ in range(4):
                d = FR + (t * 4 + ds_) * 4
                ops.append(lambda d=d, t=t, ds_=ds_: k.ds(
                    f"ds_read_b128 {vr(d, 4)}, {v(KR[ds_])} offset:{slot * 16384 + t * 4096}",
                    wr=vs(d, 4), rd=[v(KR[ds_])], tag=("kf", t, ds_)))
        return ops

    def v_reads(c, half):
        x5 = X5 and c == 15
        slot = 0 if x5 else slot_of(c)
        ops = []
        for j in range(4 * half, 4 * half + 4):
            for u in range(2):
                d = FR + j * 4 + 2 * u

                def op(d=d, j=j, u=u):
                    if x5 and u == 0:
                        k.v2("v_add_u32", v(VR[j]), X5OFF, v(VR[j]))
                    k.ds(f"ds_read_b64_tr_b16 {vr(d, 2)}, {v(VR[j])} offset:{slot * 16384 + u * 4096}",
                         wr=vs(d, 2), rd=[v(VR[j])], tag=("vf", j))
                ops.append(op)
        return ops

    def sreg(qt, t):
        return S0 + (qt * 2 + t) * 4

    def xlane3(op, rs, tmps):
        for sw in ("v_permlane32_swap_b32", "v_permlane16_swap_b32"):
            for r, t in zip(rs, tmps):
                k.v1("v_mov_b32", v(t), v(r))
            for r, t in zip(rs, tmps):
                k.valu(f"{sw} {v(r)}, {v(t)}", wr=[v(r), v(t)], rd=[v(r), v(t)], perm=True)
            for r, t in zip(rs, tmps):
                k.v2(op, v(r), v(r), v(t))

    def max8x3(dsts):
        for qt in range(3):
            b = sreg(qt, 0)
            k.v3("v_max3_f32", v(dsts[qt]), v(b), v(b + 1), v(b + 2))
        for i in (3, 5):
            for qt in range(3):
                b = sreg(qt, 0)
                k.v3("v_max3_f32", v(dsts[qt]), v(dsts[qt]), v(b + i), v(b + i + 1))
        for qt in range(3):
            b = sreg(qt, 0)
            k.v2("v_max_f32", v(dsts[qt]), v(dsts[qt]), v(b + 7))

    sites = []

    def s_mfma(c):
        ops = []
        for t in range(2):
            for ds_ in range(4):
                for qt in range(3):
                    def op(t=t, ds_=ds_, qt=qt):
                        if qt == 0:
                            k.wait_lg(("kf", t, ds_))
                        d = sreg(qt, t)
                        k.mfma(d, FR + (t * 4 + ds_) * 4, QF + (qt * 4 + ds_) * 4,
                               d if ds_ else (NM[qt] if (FOLD and c > 0) else None))
                    ops.append(op)
        return ops

    def softmax(c):
        ops = []

        def fm(r0):
            if FOLD and c > 0:
                return
            for r in range(r0, r0 + 4):
                for qt in range(3):
                    x = sreg(qt, 0) + r
                    if FOLD:
                        k.v2("v_sub_f32", v(x), v(x), v(MC[qt]))
                    else:
                        k.v3("v_fma_f32", v(x), v(x), sC, f"-{v(MC[qt])}")

        def head():
            k.comment(f"softmax {c}")
            if c == 0:
                max8x3(MC)
                xlane3("v_max_f32", MC, [SP, SP + 1, SP + 2])
                for qt in range(3):
                    if FOLD:
                        for r in range(4):
                            k.v2("v_sub_f32", v(NM[qt] + r), 0, v(MC[qt]))
                    else:
                        k.v2("v_mul_f32", v(MC[qt]), sC, v(MC[qt]))
            fm(0)

        def check():
            if c > 0:
                max8x3([SP, SP + 1, SP + 2])
                k.v3("v_max3_f32", v(SP + 3), v(SP), v(SP + 1), v(SP + 2))
                k.valu(f"v_cmp_lt_f32 vcc, {sThr}, {v(SP + 3)}", wr=["vcc"], rd=[sThr, v(SP + 3)])
                k.s1("s_mov_b32", sRet, c)
                k.nop(4)
                k.salu(f"s_cbranch_vccnz K1_SLOW{sfx}")
                k.label(f"K1_RET{c}{sfx}")
                sites.append(c)
                k.fence()
        ops += [head, lambda: fm(4), check]

        def body(r):
            if r < 8:
                for qt in range(3):
                    x = sreg(qt, 0) + r
                    k.v1("v_exp_f32", v(x), v(x), trans=True)
            if r >= 1:
                rr = r - 1
                for qt in range(3):
                    b = sreg(qt, 0)
                    if c == 0 and rr == 0:
                        continue
                    if c == 0 and rr == 1:
                        k.v2("v_add_f32", v(LS[qt]), v(b), v(b + 1))
                    else:
                        k.v2("v_add_f32", v(LS[qt]), v(LS[qt]), v(b + rr))
                if rr % 2 == 1:
                    for qt in range(3):
                        b = sreg(qt, 0)
                        k.v2("v_cvt_pk_bf16_f32", v(preg(c) + qt * 4 + rr // 2), v(b + rr - 1), v(b + rr))
        for r in range(9):
            ops.append(lambda r=r: body(r))
        return ops

    def pv_mfma(c, half):
        cv = c - 8
        ops = []
        for j in range(4 * half, 4 * half + 4):
            for qt in range(3):
                def op(j=j, qt=qt):
                    if qt == 0:
                        k.wait_lg(("vf", j))
                    d = oreg(j, qt)
                    k.mfma(d, FR + j * 4, preg(cv) + qt * 4, d if cv else None)
                ops.append(op)
        return ops

    def stage_out(n):
        k.wait_vm(("kv", n))
        k.s2("s_add_u32", sT2, sM0K, slot_of(n) * 16384)
        k.v2("v_add_u32", T3, sT2, L16)
        for i in range(4):
            d = STG + 16 * (n - 2) + 4 * i
            k.ds(f"ds_write_b128 {T3}, {vr(d, 4)} offset:{i * 1024}", rd=[T3] + vs(d, 4), tag="stg")

    if JIT:
        so_at = {n: n - 1 for n in range(2, 8)}
        dma_at = {8: opt.get("d8", 3), 9: opt.get("d9", 4)}
        dma_at.update({n: n - 3 for n in range(10, 16)})
    else:
        so_at = {n: (1 if n < 4 else n - 2) for n in range(2, 2 + NSTG)}
        dma_at = {n: max(1, n - 3) for n in range(2 + NSTG, 16)}

    if X5:
        dma_at[15] = 11

    OF = ["", " sc1", " nt", " sc0 sc1"][opt.get("of", 1)]
    BF = ["", " sc1", " sc0", " nt"][opt.get("bf", 1)]
    AF = ["", " sc1", " sc0", " nt"][opt.get("af", 1)]
    BSL = [148, 168, 188, 68, 96, 116, 208, 228]
    AR = [88, 92, 136, 140, 144, 248, 252]
    OACC = 8
    L16B = "v8"
    sOB, sOA = "s65", "s66"

    def rot_off(dst, j, base, stride):
        k.s2("s_add_u32", dst, sRho, j)
        k.s2("s_and_b32", dst, dst, 7)
        k.s2("s_mul_i32", dst, dst, stride)
        k.s2("s_add_u32", dst, dst, base)

    def loadB(j):
        ops = []
        for nt in range(5):
            def op(nt=nt):
                if nt == 0:
                    rot_off(sOB, j, sBo, 40960)
                a, o = (L16, nt * 1024) if nt < 4 else (L16B, 0)
                d = BSL[j] + 4 * nt
                k.vmem(f"buffer_load_dwordx4 {vr(d, 4)}, {a}, {sr(SWS, 4)}, {sOB} offen offset:{o}{BF}",
                       wr=vs(d, 4), rd=[a, sOB], tag=("b", j))
            ops.append(op)
        return ops

    WCHK = opt.get("wchk", 13 if X5 else 10)
    EARLYB = 1
    EB = [opt.get("eb0", 15), opt.get("eb1", 15), opt.get("eb2", 15)]

    def flag_load(soff, imm, tag):
        k.vmem(f"buffer_load_dwordx2 v[2:3], {T3}, {sr(SWS, 4)}, {soff} offen offset:{imm} sc1", wr=["v2", "v3"],
               rd=[T3] + ([soff] if isinstance(soff, str) else []), tag=tag)

    def flag_check(soff, imm, name, tag):
        k.wait_vm(tag)
        k.s1("s_mov_b32", sT1, 0)
        k.label(f"{name}_CMP")
        k._emit(f"v_cmp_ne_u64 vcc, s[30:31], v[2:3]")
        k._emit(f"s_add_u32 {sT1}, {sT1}, 1")
        k._emit("s_nop 3")
        k._emit(f"s_cbranch_vccz {name}_OK")
        k._emit(f"s_cmp_ge_u32 {sT1}, 0x40000")
        k._emit(f"s_cbranch_scc1 {name}_OK")
        k._emit(f"s_sleep {opt.get('slp', 4)}")
        k._emit(f"buffer_load_dwordx2 v[2:3], {T3}, {sr(SWS, 4)}, {soff} offen offset:{imm} sc1")
        k._emit("s_waitcnt vmcnt(0)")
        k._emit(f"s_branch {name}_CMP")
        k.label(f"{name}_OK")

    sWf = "s45"

    def sync(c):
        if opt.get("dbg15") and c == 15:
            k.stamp()
        if c < 16 and not (2 <= c < 2 + NSTG):
            k.wait_vm(("kv", c))
        if opt.get("dbg15") and c == 15:
            k.stamp()
        if c == WCHK:
            flag_check(sWf, 0, f"K1_W{sfx}", "wp")
        k.wait_lg0()
        k.barrier()
        k.stamp()
        if c == WCHK - 2:
            k.v2("v_and_b32", T3, 7, LANE)
            k.v2("v_lshlrev_b32", T3, 7, T3)
            k.s2("s_lshl_b32", sWf, sA, 7)
            k.s2("s_lshr_b32", sT0, sCb, 2)
            k.s2("s_lshl_b32", sT0, sT0, 6)
            k.s2("s_add_u32", sWf, sWf, sT0)
            k.s2("s_add_u32", sWf, sWf, WFL)
            flag_load(sWf, 0, "wp")

    SCR = G * 65536 + (16384 if JIT else 0)
    for c in range(17):
        k.comment(f"---- interval {c}")
        if c < 16:
            sync(c)
        so = [(lambda n=n: stage_out(n)) for n in sorted(so_at) if so_at[n] == c]
        dm = list(issue.get(20 + c, []))
        for n in sorted(dma_at):
            if dma_at[n] == c:
                dm += dma_kv(n)
        if c == 0:
            for ds_ in range(4):
                for qt in range(3):
                    d = QF + (qt * 4 + ds_) * 4
                    k.ds(f"ds_read_b128 {vr(d, 4)}, {v(QR)} offset:{(qt * 4 + ds_) * 1024}",
                         wr=vs(d, 4), rd=[v(QR)], tag="qr")
            run(k_reads(0))
            run(dm)
            if G == 0:
                run(s_mfma(0))
        elif c <= 8:
            rds = k_reads(c) if c < 8 else v_reads(8, 0)
            if G == 1:
                weave(s_mfma(c - 1), (so, 2, 6, 1))
            else:
                run(so)
            weave(softmax(c - 1), (rds, 0, 1, 2), (dm, 3, 1, 1))
            if c < 8:
                if G == 0:
                    run(s_mfma(c))
            else:
                weave(pv_mfma(8, 0), (v_reads(8, 1), 0, 1, 1))
        elif c < 16:
            if c == (9 if X5 else 11):
                xlane3("v_add_f32", LS, [1, 2, 3])
                k.s2("s_lshl_b32", sT0, sW, 9)
                k.s2("s_add_u32", sT0, sT0, STAT)
                k.v3("v_lshl_add_u32", T3, vQ, 5, sT0)
                k.ds(f"ds_write_b128 {T3}, {vr(ST, 4)}", rd=[T3] + vs(ST, 4), tag="mw")
                k.ds(f"ds_write_b64 {T3}, {vr(ST + 4, 2)} offset:16", rd=[T3] + vs(ST + 4, 2), tag="mw")
            if c == (10 if X5 else 12):
                k.s2("s_lshl_b32", sT0, sW, 9)
                k.s2("s_xor_b32", sT0, sT0, 1024)
                k.s2("s_add_u32", sT0, sT0, STAT)
                k.v3("v_lshl_add_u32", T3, vQ, 5, sT0)
                k.ds(f"ds_read_b128 {vr(148, 4)}, {T3}", wr=vs(148, 4), rd=[T3], tag="ps")
                k.ds(f"ds_read_b64 {vr(152, 2)}, {T3} offset:16", wr=vs(152, 2), rd=[T3], tag="ps")
            if c == (11 if X5 else 13):
                PS, MM, R3 = 148, [156, 157, 158], range(3)
                for qt in R3:
                    k.v2("v_max_f32", v(MM[qt]), v(MC[qt]), v(PS + qt))
                for qt in R3:
                    k.v2("v_sub_f32", v(MC[qt]), v(MC[qt]), v(MM[qt]))
                    k.v2("v_sub_f32", v(PS + qt), v(PS + qt), v(MM[qt]))
                for qt in R3:
                    k.v1("v_exp_f32", v(MC[qt]), v(MC[qt]), trans=True)
                    k.v1("v_exp_f32", v(PS + qt), v(PS + qt), trans=True)
                for qt in R3:
                    k.v2("v_mul_f32", v(MM[qt]), v(MC[qt]), v(LS[qt]))
                for qt in R3:
                    k.v3("v_fma_f32", v(MM[qt]), v(PS + qt), v(PS + 3 + qt), v(MM[qt]))
                for qt in R3:
                    k.v1("v_rcp_f32", v(MM[qt]), v(MM[qt]), trans=True)
                for qt in R3:
                    k.v2("v_mul_f32", v(MC[qt]), v(MC[qt]), v(MM[qt]))
                    k.v2("v_mul_f32", v(LS[qt]), v(PS + qt), v(MM[qt]))
            if c == 9:
                k.v2("v_add_u32", L16B, 4096, L16)
            if EARLYB:
                for jb, cb_ in enumerate(EB):
                    if cb_ == c:
                        dm = dm + loadB(jb)
            d0, d1 = (dm, []) if G == 0 else ([], dm)
            if len(dm) > 4:
                d0, d1 = dm[:len(dm) // 2], dm[len(dm) // 2:]
            weave(pv_mfma(c - 1, 1), (v_reads(c, 0), 0, 1, 1), (d0, 1, 2, 1))
            weave(pv_mfma(c, 0), (v_reads(c, 1), 0, 1, 1), (d1, 1, 2, 1))
        else:
            k.s2("s_mul_i32", sT0, sWl, 12288)
            k.s2("s_add_u32", sT0, sT0, SCR)
            k.v2("v_add_u32", T1, sT0, L16)
            wr_ops = []
            for j in range(4):
                for qt in range(3):
                    wr_ops.append(lambda j=j, qt=qt: k.ds(
                        f"ds_write_b128 {T1}, {vr(oreg(j, qt), 4)} offset:{(j * 3 + qt) * 1024}",
                        rd=[T1] + vs(oreg(j, qt), 4), tag="mw"))
            k.wait_lg0()
            weave(pv_mfma(15, 1), (wr_ops, 0, 1, 1))
    k.stamp()
    k.wait_lg0()
    k.barrier()
    k.s2("s_xor_b32", sT1, sWl, 2)
    k.s2("s_mul_i32", sT0, sT1, 12288)
    k.s2("s_add_u32", sT0, sT0, SCR)
    k.v2("v_add_u32", T1, sT0, L16)
    for j in range(4):
        for qt in range(3):
            d = oreg(j, qt)
            k.ds(f"ds_read_b128 {vr(d, 4)}, {T1} offset:{(j * 3 + qt) * 1024}", wr=vs(d, 4), rd=[T1], tag=("po", j))
    for jb, cb_ in enumerate(EB):
        if cb_ == 16:
            run(loadB(jb))
    FO, FP = MC, LS
    k.s2("s_lshl_b32", sT0, sB, 1)
    k.s2("s_add_u32", sT0, sT0, sQh)
    k.s2("s_lshl_b32", sT0, sT0, 7)
    k.s2("s_lshl_b32", sT1, sHead, 2)
    k.s2("s_add_u32", sT0, sT0, sT1)
    k.s2("s_lshl_b32", sT1, sKh, 1)
    k.s2("s_add_u32", sT0, sT0, sT1)
    k.s2("s_mul_i32", sT0, sT0, 3072)
    if OWS:
        k.s2("s_add_u32", sT0, sT0, OWS)
    k.s2("s_add_u32", sT1, sT0, 3072)
    OD = 208
    for jj in range(2):
        for e in range(2):
            j = 2 * jj + e
            for qt in range(3):
                d = oreg(4 + j, qt)
                for r in range(4):
                    k.v2("v_mul_f32", v(d + r), v(d + r), v(FO[qt]))
            k.wait_lg(("po", j))
            for qt in range(3):
                d = oreg(4 + j, qt)
                p = oreg(j, qt)
                for r in range(4):
                    k.valu(f"v_fmac_f32 {v(d + r)}, {v(p + r)}, {v(FP[qt])}", wr=[v(d + r)],
                           rd=[v(d + r), v(p + r), v(FP[qt])])
                od = OD + (jj * 3 + qt) * 4 + 2 * e
                k.v2("v_cvt_pk_bf16_f32", v(od), v(d), v(d + 1))
                k.v2("v_cvt_pk_bf16_f32", v(od + 1), v(d + 2), v(d + 3))
        for qt in range(3):
            od = OD + (jj * 3 + qt) * 4
            so = sT1 if jj else sT0
            k.vmem(f"buffer_store_dwordx4 {vr(od, 4)}, {L16}, {sr(SWS, 4)}, {so} offen offset:{qt * 1024} sc1",
                   rd=vs(od, 4) + [L16, so], tag="ost", store_data=vs(od, 4))
    k.salu("s_branch K1_TAIL")
    mark_tail = len(k.lines)

    k.label("K1_TAIL")
    k.fence()
    rest = [j for j in range(8) if not (j < 3 and EB[j] < 17)]
    for j in rest[:opt.get("npre", 3)]:
        run(loadB(j))
    k.wait_vm("ost")
    k.barrier()
    k.stamp()
    flag_store(sFl)
    for j in rest[opt.get("npre", 3):]:
        run(loadB(j))
    sA1, sA2, sPo, sPf = "s60", "s61", "s62", "s63"
    k.s2("s_lshl_b32", sA2, sRb, 7)
    k.s2("s_add_u32", sA2, sA2, sA)
    k.s2("s_xor_b32", sA1, sA2, 128)
    k.s2("s_mul_i32", sA1, sA1, 3072)
    k.s2("s_mul_i32", sA2, sA2, 3072)
    if OWS:
        k.s2("s_add_u32", sA1, sA1, OWS)
        k.s2("s_add_u32", sA2, sA2, OWS)
    k.s2("s_lshr_b32", sFl, sRb, 1)
    k.s2("s_lshl_b32", sFl, sFl, 12)
    k.s2("s_lshl_b32", sT0, sA, 5)
    k.s2("s_add_u32", sFl, sFl, sT0)
    k.s2("s_add_u32", sFl, sFl, FLG)
    k.s2("s_lshl_b32", sPo, "s2", 4)
    k.s2("s_add_u32", sPo, sPo, sW)
    k.s2("s_lshl_b32", sPo, sPo, 10)
    k.s2("s_add_u32", sPo, sPo, PART)
    k.s2("s_lshl_b32", sPf, "s2", 3)
    k.s2("s_add_u32", sPf, sPf, sW)
    k.s2("s_lshl_b32", sPf, sPf, 6)
    k.s2("s_add_u32", sPf, sPf, PFL)
    k.v1("v_mov_b32", T3, 0)
    flag_load(sFl, 0, "f0")
    flag_check(sFl, 0, "K1_F0", "f0")
    k.stamp()

    def loadA(f):
        ps, j, mt = f // 24, (f % 24) // 3, f % 3
        if mt == 0:
            rot_off(sOA, j, sA2 if ps else sA1, 3072)
        d = AR[f % 7]
        k.vmem(f"buffer_load_dwordx4 {vr(d, 4)}, {L16}, {sr(SWS, 4)}, {sOA} offen offset:{mt * 1024}{AF}",
               wr=vs(d, 4), rd=[L16, sOA], tag=("a", f))

    LW = "v0"

    def acc_to_lds():
        for t in range(15):
            k.ds(f"ds_write_b128 {LW}, {vr(OACC + 4 * t, 4)} offset:{t * 1024}", rd=[LW] + vs(OACC + 4 * t, 4), tag="w")

    def gather(i, RB):
        k.s2("s_lshl_b32", sT0, sW, 10)
        k.s2("s_add_u32", sT0, sT0, i * 8192)
        k.v2("v_add_u32", T0, sT0, L16)
        k.v2("v_add_u32", T1, 65536, T0)
        for s_ in range(8):
            d = RB + s_ * 4
            k.ds(f"ds_read_b128 {vr(d, 4)}, {T0 if s_ < 4 else T1} offset:{(s_ % 4) * 16384}", wr=vs(d, 4),
                 rd=[T0 if s_ < 4 else T1], tag=("r", i))

    def tree(RB):
        for step in (16, 8, 4):
            for o in range(0, step):
                k.v2("v_add_f32", v(RB + o), v(RB + o), v(RB + o + step))

    k.s2("s_lshl_b32", sT0, sW, 14)
    k.v2("v_add_u32", LW, sT0, L16)
    for f in range(7):
        loadA(f)
    R1 = opt.get("r1", 2)
    for f in range(48):
        ps, j, mt = f // 24, (f % 24) // 3, f % 3
        if f == 24:
            k.stamp()
            acc_to_lds()
        if ps == 1 and mt == 0 and j == R1:
            k.comment("reduce pass-1 partials and hand them to the partner")
            k.wait_lg0()
            k.barrier()
            for i in range(2):
                RB = 148
                gather(i, RB)
                k.wait_lg(("r", i))
                tree(RB)
                d = RB + 32 + 4 * i
                for r in range(4):
                    k.v1("v_mov_b32", v(d + r), v(RB + r))
                so = sPo
                if i:
                    k.s2("s_add_u32", sT2, sPo, 8192)
                    so = sT2
                k.vmem(f"buffer_store_dwordx4 {vr(d, 4)}, {L16}, {sr(SWS, 4)}, {so} offen sc1",
                       rd=vs(d, 4) + [L16, so], tag="pst", store_data=vs(d, 4))
            k.stamp()
        if ps == 1 and mt == 0 and j == R1 + 3:
            k.wait_vm("pst")
            flag_store(sPf)
            k.barrier()
        k.wait_vm(("a", f))
        if ps == 0 and mt == 0:
            k.wait_vm(("b", j))
        for nt in range(5):
            d = OACC + (nt * 3 + mt) * 4
            k.mfma(d, BSL[j] + 4 * nt, AR[f % 7], d if j else None)
        if f + 7 < 48:
            loadA(f + 7)
    k.stamp()
    k.s2("s_xor_b32", sPf, sPf, 512)
    k.s2("s_xor_b32", sPo, sPo, 16384)
    k.v1("v_mov_b32", T3, 0)
    flag_load(sPf, 0, "pf")
    acc_to_lds()
    flag_check(sPf, 0, "K1_PF", "pf")
    PP = 208
    k.vmem(f"buffer_load_dwordx4 {vr(PP, 4)}, {L16}, {sr(SWS, 4)}, {sPo} offen sc1", wr=vs(PP, 4), rd=[L16, sPo], tag=("pp", 0))
    k.s2("s_add_u32", sT2, sPo, 8192)
    k.vmem(f"buffer_load_dwordx4 {vr(PP + 4, 4)}, {L16}, {sr(SWS, 4)}, {sT2} offen sc1", wr=vs(PP + 4, 4), rd=[L16, sT2], tag=("pp", 1))
    k.wait_lg0()
    k.barrier()
    k.stamp()
    gather(0, 72)
    gather(1, 104)
    k.v2("v_mul_u32_u24", T2, 1280, vQ)
    k.v3("v_lshl_add_u32", T2, vG, 3, T2)
    for i in range(2):
        k.s2("s_add_u32", sT0, sW, 8 * i)
        k.s2("s_mul_i32", sT1, sT0, 11)
        k.s2("s_lshr_b32", sT1, sT1, 5)
        k.s2("s_mul_i32", sT2, sT1, 3)
        k.s2("s_sub_u32", sT2, sT0, sT2)
        k.s2("s_mul_i32", sA, sRb, 48)
        k.s2("s_lshl_b32", sT2, sT2, 4)
        k.s2("s_add_u32", sA, sA, sT2)
        k.s2("s_mul_i32", sA, sA, 1280)
        k.s2("s_mul_i32", sBo, sCb, 160)
        k.s2("s_add_u32", sA, sA, sBo)
        k.s2("s_lshl_b32", sT1, sT1, 5)
        k.s2("s_add_u32", sA, sA, sT1)
        if i == 1:
            k.salu(f"s_cmp_lt_u32 {sW}, 7")
            k.salu(f"s_cselect_b32 {sA}, {sA}, {OOB}", wr=[sA])
        k.wait_lg(("r", i))
        d = 72 + i * 32
        tree(d)
        k.wait_vm(("pp", i))
        for r in range(4):
            k.v2("v_add_f32", v(d + r), v(d + r), v(PP + 4 * i + r))
        k.v2("v_cvt_pk_bf16_f32", v(d + 4), v(d), v(d + 1))
        k.v2("v_cvt_pk_bf16_f32", v(d + 5), v(d + 2), v(d + 3))
        k.vmem(f"buffer_store_dwordx2 {vr(d + 4, 2)}, {T2}, {sr(SOUT, 4)}, {sA} offen{OF}",
               rd=vs(d + 4, 2) + [T2, sA], tag="st")
    if opt.get("ts"):
        k.wait_vm0()
    k.flush_stamps(SWS, sW, TSBASE, 8)
    k.salu("s_endpgm")
    k.tail = k.lines[mark_tail:]
    del k.lines[mark_tail:]

    k.label(f"K1_SLOW{sfx}")
    k.nop(8)
    D = [SP, SP + 1, SP + 2]
    F = [SP + 4, SP + 5, SP + 6]
    xlane3("v_max_f32", D, [SP + 8, SP + 9, SP + 10])
    for qt in range(3):
        k.v1("v_ceil_f32", v(D[qt]), v(D[qt]))
        k.v2("v_max_f32", v(D[qt]), 0, v(D[qt]))
        k.v2("v_add_f32", v(MC[qt]), v(MC[qt]), v(D[qt]))
        if FOLD:
            for r in range(4):
                k.v2("v_sub_f32", v(NM[qt] + r), 0, v(MC[qt]))
        for r in range(8):
            x = sreg(qt, 0) + r
            k.v2("v_sub_f32", v(x), v(x), v(D[qt]))
        k.v2("v_sub_f32", v(F[qt]), 0, v(D[qt]))
        k.v1("v_exp_f32", v(F[qt]), v(F[qt]), trans=True)
        k.v2("v_mul_f32", v(LS[qt]), v(LS[qt]), v(F[qt]))
    for cc in range(7):
        if cc > 0:
            k.salu(f"s_cmp_le_u32 {sRet}, {cc}")
            k.salu(f"s_cbranch_scc1 K1_SLOW_DONE{sfx}")
        for qt in range(3):
            for r in range(4):
                x = preg(cc) + qt * 4 + r
                a, b = SP + 8, SP + 9
                k.v2("v_lshlrev_b32", v(a), 16, v(x))
                k.v2("v_and_b32", v(b), "0xffff0000", v(x))
                k.v2("v_mul_f32", v(a), v(a), v(F[qt]))
                k.v2("v_mul_f32", v(b), v(b), v(F[qt]))
                k.v2("v_cvt_pk_bf16_f32", v(x), v(a), v(b))
    k.label(f"K1_SLOW_DONE{sfx}")
    k.nop(4)
    for c in sites[:-1]:
        k.salu(f"s_cmp_eq_u32 {sRet}, {c}")
        k.salu(f"s_cbranch_scc1 K1_RET{c}{sfx}")
    k.salu(f"s_branch K1_RET{sites[-1]}{sfx}")
    return k, split


def build(opt):
    k0, split = gen(opt, 0)
    k1, _ = gen(opt, 1)
    assert k0.tail == k1.tail
    lines = k0.lines[:split]
    lines += ["    s_cmp_eq_u32 s49, 1", "    s_cbranch_scc1 K1_G1"]
    lines += k0.lines[split:]
    lines.append("K1_G1:")
    lines += k1.lines[split:]
    lines += k0.tail
    lines += ["K1_END:", "    s_endpgm", "K1_CODE_END:"]
    name = NAME + "_kernel"
    out = HEADER
    out += "; @launch grid=(256,1,1) block=(512,1,1) lds=163840\n"
    out += '.amdgcn_target "amdgcn-amd-amdhsa--gfx950"\n.text\n'
    out += f".globl {name}\n.p2align 8\n.type {name},@function\n{name}:\n" + "\n".join(lines) + "\n"
    out += '.section .rodata,"a"\n.p2align 6\n'
    out += kd(name, 256, 102)
    return out, k0


if __name__ == "__main__":
    opt = {}
    path = sys.argv[1] if len(sys.argv) > 1 else f"cdna_kernels/{NAME}.s"
    for a in sys.argv[2:]:
        kk, vv = a.split("=")
        opt[kk] = float(vv) if "." in vv else int(vv)
    txt, k1 = build(opt)
    open(path, "w").write(txt)
    print("wrote", path, len(txt), "bytes; slots", k1.slot, "stamps", k1.nstamp)
```

```python
import sys
import dsl
from dsl import Kern, vr, sr, vs, ss
from gen1 import (NAME, X_BYTES, KV_BYTES, W_BYTES, OUT_BYTES, WS_BYTES, OWS, WOT, CSCALE, TSBASE,
                  f32bits, build_srd, add_stamps, code_touch, HEADER, kd)

dsl.EXACT_VM = True
THRESH = 10.0
FLG = 24 << 20
WFL = 25 << 20
PART = 26 << 20
PFL = 31 << 20
OOB = "0x7f000000"


def v(i):
    return f"v{i}"


def gen(opt, G):
    k = Kern()
    add_stamps(k, opt)
    sfx = f"_{G}"
    NT = " nt" if opt.get("nt", 1) else ""
    SX, SK, SV, SWQ, SWO, SWS, SOUT, SDBG = 4, 8, 12, 16, 20, 24, 32, 36
    sW, sGrp, sQh, sKh, sWl, sHp, sB = "s48", "s49", "s50", "s51", "s52", "s53", "s54"
    sKV, sT0, sT1, sT2, sC, sRing, sM0K, sM0W, sM0X, sOff = (
        "s55", "s56", "s57", "s58", "s59", "s60", "s61", "s62", "s63", "s64")
    sWqOff, sXOff, sHead, sRet, sThr = "s65", "s66", "s67", "s28", "s29"
    sKW, sKX = "s3", "s47"
    sRb, sCb, sA, sBo, sFl = "s40", "s41", "s42", "s43", "s44"
    XS0 = 131072
    STAT = 155648

    k.stamp()
    k.salu("s_cmp_ge_u32 s2, 256")
    k.salu("s_cbranch_scc1 K1_END")
    k.salu("s_load_dwordx16 s[32:47], s[0:1], 0")
    CT = opt.get("ct", 0)
    if CT == 0:
        code_touch(k, "K1", "K1_CODE_END", "v0", "v2", "v31", 512)
    else:
        k.v1("v_mov_b32", "v63", "v0")
    k.v2("v_lshrrev_b32", "v1", 6, "v0")
    k.v2("v_and_b32", "v0", 63, "v0")
    k.valu(f"v_readfirstlane_b32 {sW}, v1", wr=[sW], rd=["v1"], lane=True)
    k.s2("s_and_b32", sT0, "s2", 7)
    k.s2("s_lshr_b32", sT1, "s2", 3)
    k.s2("s_and_b32", sHp, sT0, 3)
    k.s2("s_lshl_b32", sHp, sHp, 2)
    k.s2("s_and_b32", sT2, sT1, 3)
    k.s2("s_add_u32", sHp, sHp, sT2)
    if opt.get("hpx", 0):
        k.s2("s_xor_b32", sHp, sHp, opt.get("hpx"))
    k.s2("s_mul_i32", sKW, sT2, 10)
    k.s2("s_lshr_b32", sT2, sT1, 2)
    k.s2("s_mul_i32", sOff, sT2, 5)
    k.s2("s_add_u32", sKW, sKW, sOff)
    k.s2("s_lshr_b32", sKW, sKW, 2)
    k.s2("s_sub_u32", sOff, sKW, 10)
    k.salu(f"s_cmp_ge_u32 {sKW}, 10")
    k.salu(f"s_cselect_b32 {sKW}, {sOff}, {sKW}", wr=[sKW])
    if opt.get("rot", 1) == 0:
        k.s1("s_mov_b32", sKW, 0)
    elif opt.get("rot", 1) == 2:
        k.s2("s_and_b32", sKW, sKW, 1)
        k.s2("s_mul_i32", sKW, sKW, 5)
    k.s2("s_lshr_b32", sB, sT0, 2)
    k.s2("s_lshl_b32", sB, sB, 3)
    k.s2("s_add_u32", sB, sB, sT2)
    k.s2("s_lshr_b32", sGrp, sW, 2)
    k.s2("s_and_b32", sQh, sW, 1)
    k.s2("s_bfe_u32", sKh, sW, "0x10001")
    k.s2("s_and_b32", sWl, sW, 3)
    k.s2("s_lshl_b32", sHead, sHp, 1)
    k.s2("s_add_u32", sHead, sHead, sGrp)
    k.s2("s_lshl_b32", sT0, sB, 5)
    k.s2("s_add_u32", sT0, sT0, sHead)
    k.s2("s_lshl_b32", sKV, sT0, 17)
    k.s2("s_lshl_b32", sT1, sWl, 12)
    k.s2("s_add_u32", sKV, sKV, sT1)
    KROT = opt.get("krot", 4)
    if KROT:
        if KROT == 1:
            k.s2("s_add_u32", sT2, sHp, sB)
        elif KROT == 2:
            k.s2("s_and_b32", sT2, sHp, 1)
            k.s2("s_lshl_b32", sT2, sT2, 2)
        elif KROT == 3:
            k.s2("s_mul_i32", sT2, sT0, 5)
            k.s2("s_lshr_b32", sOff, sT0, 3)
            k.s2("s_add_u32", sT2, sT2, sOff)
        elif KROT == 4:
            k.s1("s_mov_b32", sT2, sHead)
        elif KROT == 5:
            k.s1("s_mov_b32", sT2, sB)
        elif KROT == 6:
            k.s2("s_lshl_b32", sT2, sGrp, 2)
        k.s2("s_and_b32", sT2, sT2, 7)
        k.s2("s_lshl_b32", sT2, sT2, 14)
        k.s2("s_or_b32", sKV, sKV, sT2)
    k.s2("s_lshl_b32", sRing, sGrp, 16)
    k.s2("s_add_u32", sM0K, sRing, sT1)
    k.s2("s_lshl_b32", sM0W, sW, 11)
    k.s2("s_add_u32", sM0W, sM0W, 32768)
    k.s2("s_mul_i32", sM0X, sW, 1536)
    k.s2("s_add_u32", sM0X, sM0X, XS0)
    k.s1("s_mov_b32", sC, hex(f32bits(CSCALE)))
    k.s1("s_mov_b32", sThr, hex(f32bits(opt.get("thr", THRESH))))

    LANE = "v0"
    T0, T1, T2, T3 = "v1", "v2", "v3", "v4"
    vG, vQ, L16 = "v5", "v6", "v7"
    KD = [8, 9, 10, 11]
    KR = [12, 13, 14, 15]
    VD = [16, 17]
    ST = 18
    MC = [18, 19, 20]
    LS = [21, 22, 23]
    VR = [24, 25, 26, 27, 28, 29, 30, 31]
    FR, QF, S0, SP = 32, 64, 112, 136
    ACC = 64
    QA = [32, 112]
    WQD = [24, 25]
    XD = [26, 27]
    WQR = [28, 29, 30, 60]
    XR = [18, 19]
    QW, QR = 20, 21
    STG = 160

    def preg(c):
        return 148 if c == 0 else 160 + 12 * (c - 1)

    def oreg(j, qt):
        o = j * 3 + qt
        return QF + 4 * o if o < 21 else 244 + 4 * (o - 21)

    k.v2("v_lshrrev_b32", vG, 4, LANE)
    k.v2("v_and_b32", vQ, 15, LANE)
    k.v2("v_lshlrev_b32", L16, 4, LANE)
    k.v2("v_lshrrev_b32", T0, 5, LANE)
    k.s2("s_lshl_b32", sT0, sKh, 2)
    k.v2("v_add_u32", T1, sT0, T0)
    k.s2("s_lshl_b32", sT0, sW, 2)
    k.v2("v_add_u32", T0, sT0, T0)
    k.v2("v_lshlrev_b32", T0, 13, T0)
    k.s2("s_lshl_b32", sT0, sHp, 9)
    k.v2("v_add_u32", T0, sT0, T0)
    k.v3("v_bfe_u32", T2, LANE, 4, 1)
    k.v3("v_lshl_add_u32", T0, T2, 8, T0)
    for i in range(2):
        k.v2("v_add_u32", T2, 2 * i, T1)
        k.v2("v_lshlrev_b32", T2, 1, T2)
        k.v2("v_xor_b32", T2, T2, vQ)
        k.v3("v_lshl_add_u32", v(WQD[i]), T2, 4, T0)
        if i:
            k.v2("v_add_u32", v(WQD[i]), 2 * 8192 - 1024, v(WQD[i]))
    k.s2("s_mul_i32", sT0, sW, 12)
    k.v2("v_lshrrev_b32", T0, 3, LANE)
    k.v2("v_add_u32", T0, sT0, T0)
    k.v2("v_and_b32", T3, 7, LANE)
    k.s2("s_mul_i32", sT1, sB, 96)
    k.s1("s_mov_b32", sT2, 1280)
    for i in range(2):
        if i:
            k.v2("v_add_u32", T0, 8, T0)
        k.v3("v_bfe_u32", T1, T0, 1, 3)
        k.v2("v_xor_b32", T1, T1, T3)
        k.v2("v_add_u32", T2, sT1, T0)
        k.v2("v_mul_lo_u32", T2, T2, sT2)
        k.v3("v_lshl_add_u32", v(XD[i]), T1, 4, T2)
        if i:
            k.v2("v_subrev_u32", v(XD[i]), 1024, v(XD[i]))

    k.salu("s_waitcnt lgkmcnt(0)")
    build_srd(k, SX, 32, X_BYTES)
    build_srd(k, SWQ, 38, W_BYTES)
    build_srd(k, SWS, 46, WS_BYTES)
    k.s1("s_mov_b32", sKX, sKW)
    k.stamp()

    def run(ps):
        for p in ps:
            p()

    def weave(prim, *secs):
        secs = [(list(l), st, sd, per) for (l, st, sd, per) in secs]
        for i, p in enumerate(prim):
            p()
            for (l, st, sd, per) in secs:
                if i >= st and (i - st) % sd == 0:
                    for _ in range(per):
                        if l:
                            l.pop(0)()
        for (l, st, sd, per) in secs:
            run(l)

    def wqs_off(pos):
        return (pos & 1) * 16384 + (pos >> 1) * 65536

    def setm0(base, off):
        if off:
            k.s2("s_add_u32", "m0", base, off)
        else:
            k.s1("s_mov_b32", "m0", base)

    def bump(ctr):
        k.s2("s_add_u32", ctr, ctr, 1)
        k.salu(f"s_cmp_eq_u32 {ctr}, 10")
        k.salu(f"s_cselect_b32 {ctr}, 0, {ctr}", wr=[ctr])

    def dma_wq(c):
        def p0():
            setm0(sM0W, wqs_off(c % 4))
            if c % 2 == 0:
                k.s2("s_lshl_b32", sWqOff, sKW, 19)
            else:
                k.s2("s_add_u32", sWqOff, sWqOff, 262144)
            k.vmem(f"buffer_load_dwordx4 {v(WQD[0])}, {sr(SWQ, 4)}, {sWqOff} offen lds",
                   rd=[v(WQD[0]), sWqOff], tag=("wq", c), dma=True)
            k.vmem(f"buffer_load_dwordx4 {v(WQD[1])}, {sr(SWQ, 4)}, {sWqOff} offen offset:1024 lds",
                   rd=[v(WQD[1]), sWqOff], tag=("wq", c), dma=True)
            if c % 2 == 1:
                bump(sKW)
        return [p0]

    def dma_x(j):
        def p0():
            setm0(sM0X, (j & 1) * 12288)
            k.s2("s_lshl_b32", sXOff, sKX, 7)
            k.vmem(f"buffer_load_dwordx4 {v(XD[0])}, {sr(SX, 4)}, {sXOff} offen lds",
                   rd=[v(XD[0]), sXOff], tag=("x", j), dma=True)
            k.salu("s_mov_b32 exec_hi, 0")
            k.vmem(f"buffer_load_dwordx4 {v(XD[1])}, {sr(SX, 4)}, {sXOff} offen offset:1024 lds",
                   rd=[v(XD[1]), sXOff], tag=("x", j), dma=True)
            k.salu("s_mov_b32 exec_hi, -1")
            bump(sKX)
        return [p0]

    run(dma_x(0) + dma_wq(0) + dma_wq(1))
    if CT == 1:
        code_touch(k, "K1", "K1_CODE_END", "v63", "v2", "v31", 512)
    build_srd(k, SK, 34, KV_BYTES)
    build_srd(k, SV, 36, KV_BYTES)
    build_srd(k, SWO, 40, W_BYTES)
    build_srd(k, SOUT, 42, OUT_BYTES)
    build_srd(k, SDBG, 44, 256)
    k.v2("v_xor_b32", T0, vQ, vG)
    k.v2("v_lshlrev_b32", T0, 4, T0)
    k.v3("v_lshl_add_u32", v(KD[0]), vG, 8, T0)
    for i in range(1, 4):
        k.v2("v_xor_b32", v(KD[i]), 64 * i, v(KD[0]))
    k.v2("v_lshlrev_b32", T0, 1, vG)
    k.v2("v_xor_b32", T0, T0, vQ)
    k.v2("v_lshlrev_b32", T0, 4, T0)
    k.v3("v_lshl_add_u32", v(VD[0]), vG, 8, T0)
    k.v2("v_xor_b32", v(VD[1]), 128, v(VD[0]))
    k.v3("v_bfe_u32", T0, LANE, 2, 2)
    k.v2("v_and_b32", T1, 1, vG)
    k.v3("v_lshl_add_u32", T1, T1, 2, T0)
    k.v3("v_lshl_add_u32", T2, vG, 3, T0)
    k.v2("v_lshlrev_b32", T2, 9, T2)
    k.v2("v_and_b32", T3, 3, LANE)
    k.v3("v_lshl_add_u32", T2, T3, 3, T2)
    k.s2("s_lshl_b32", sT0, sGrp, 8)
    k.s2("s_add_u32", sT0, sT0, 32768)
    k.v2("v_add_u32", T2, sT0, T2)
    k.s2("s_lshl_b32", sT0, sKh, 2)
    k.v2("v_xor_b32", T1, sT0, T1)
    for dt in range(4):
        k.v2("v_xor_b32", T3, dt, T1)
        k.v3("v_lshl_add_u32", v(WQR[dt]), T3, 5, T2)
    k.s2("s_mul_i32", sT0, sQh, 48 * 128)
    k.s2("s_add_u32", sT0, sT0, XS0)
    k.v2("v_lshlrev_b32", T0, 7, vQ)
    k.v2("v_add_u32", T0, sT0, T0)
    k.v2("v_lshrrev_b32", T1, 1, vQ)
    k.v2("v_xor_b32", T1, T1, vG)
    k.v3("v_lshl_add_u32", v(XR[0]), T1, 4, T0)
    k.v2("v_xor_b32", v(XR[1]), 64, v(XR[0]))
    k.s2("s_mul_i32", sT0, sQh, 12 * 1024)
    k.s2("s_add_u32", sT0, sT0, sRing)
    k.s2("s_add_u32", sT0, sT0, 32768)
    k.v2("v_add_u32", v(QR), sT0, L16)
    k.s2("s_lshl_b32", sT1, sKh, 11)
    k.s2("s_add_u32", sT0, sT0, sT1)
    k.v2("v_lshrrev_b32", T0, 1, vG)
    k.v2("v_lshlrev_b32", T0, 8, T0)
    k.v3("v_lshl_add_u32", T0, vQ, 4, T0)
    k.v2("v_and_b32", T1, 1, vG)
    k.v3("v_lshl_add_u32", T0, T1, 3, T0)
    k.v2("v_add_u32", v(QW), sT0, T0)
    k.s2("s_lshl_b32", sT0, sKh, 13)
    k.s2("s_add_u32", sT0, sT0, sRing)
    k.v2("v_xor_b32", T0, vG, vQ)
    k.v2("v_lshlrev_b32", T0, 4, T0)
    k.v3("v_lshl_add_u32", T0, vQ, 8, T0)
    k.v2("v_add_u32", v(KR[0]), sT0, T0)
    for ds_ in range(1, 4):
        k.v2("v_xor_b32", v(KR[ds_]), 64 * ds_, v(KR[0]))
    sRho = "s46"
    if opt.get("omap", 1) == 0:
        k.s2("s_lshr_b32", sT1, "s2", 3)
        k.s2("s_and_b32", sCb, sT1, 7)
        k.s2("s_lshr_b32", sT1, sT1, 3)
        k.s2("s_lshl_b32", sRho, sT1, 1)
        k.s2("s_add_u32", sRho, sRho, sCb)
        k.s2("s_bfe_u32", sT0, "s2", "0x20001")
        k.s2("s_lshl_b32", sT0, sT0, 2)
        k.s2("s_add_u32", sRb, sT0, sT1)
    else:
        k.s2("s_bfe_u32", sCb, "s2", "0x20003")
        k.s2("s_lshr_b32", sT1, "s2", 5)
        k.s2("s_lshl_b32", sRho, sCb, 1)
        k.s2("s_add_u32", sRho, sRho, sT1)
        k.s2("s_bfe_u32", sT0, "s2", "0x10001")
        k.s2("s_lshl_b32", sT0, sT0, 2)
        k.s2("s_add_u32", sCb, sCb, sT0)
        k.s2("s_bfe_u32", sT0, "s2", "0x10002")
        k.s2("s_lshl_b32", sT0, sT0, 3)
        k.s2("s_add_u32", sRb, sT0, sT1)
    k.s2("s_lshl_b32", sRb, sRb, 1)
    k.s2("s_and_b32", sT2, "s2", 1)
    k.s2("s_add_u32", sRb, sRb, sT2)
    k.s2("s_lshl_b32", sA, sT2, 3)
    k.s2("s_add_u32", sA, sA, sW)
    k.s2("s_lshl_b32", sA, sA, 3)
    k.s2("s_mul_i32", sBo, sA, 40)
    k.s2("s_mul_i32", sT0, sCb, 5)
    k.s2("s_add_u32", sBo, sBo, sT0)
    k.s2("s_lshl_b32", sBo, sBo, 10)
    k.s2("s_add_u32", sBo, sBo, WOT)
    k.s2("s_lshl_b32", sFl, sB, 4)
    k.s2("s_add_u32", sFl, sFl, sHp)
    k.s2("s_lshl_b32", sFl, sFl, 8)
    k.s2("s_add_u32", sFl, sFl, FLG)
    k.salu(f"s_cmp_eq_u32 {sW}, 0")
    k.salu(f"s_cselect_b32 {sFl}, {sFl}, {OOB}", wr=[sFl])

    sN0, sN1 = "s30", "s31"

    def flag_store(saddr, srd=SWS):
        k.v1("v_mov_b32", "v2", sN0)
        k.v1("v_mov_b32", "v3", sN1)
        k.v1("v_mov_b32", T0, 0)
        k.salu("s_mov_b64 exec, 1")
        k.vmem(f"buffer_store_dwordx2 v[2:3], {T0}, {sr(srd, 4)}, {saddr} offen sc1", rd=["v2", "v3", T0, saddr], tag="flag")
        k.salu("s_mov_b64 exec, -1")
        k.nop(2)

    k.salu("s_memrealtime s[30:31]")
    k.s2("s_or_b32", sT0, "s2", sW)
    k.salu(f"s_cmp_eq_u32 {sT0}, 0")
    k.salu(f"s_cselect_b32 {sT0}, 0, {OOB}", wr=[sT0])
    k.salu("s_waitcnt lgkmcnt(0)")
    k.s2("s_or_b32", sN1, sN1, "0x80000000")
    flag_store(sT0, SDBG)
    if opt.get("dly", 0) == 1:
        k.wait_vm("touch")
    if opt.get("dly", 0) == 2:
        k.wait_vm(("x", 0))
    if opt.get("dly", 0) == 3:
        k.wait_vm(("wq", 0))
    run(dma_x(1) + dma_wq(2) + dma_wq(3))
    split = len(k.lines)
    k.fence()
    if opt.get(f"prio{G}", 0):
        k.salu(f"s_setprio {opt.get(f'prio{G}')}")

    JIT = opt.get("jit", 0)

    def slot_of(c):
        if not JIT:
            return c % 4
        return (c + 1) % 2 if c < 8 else [2, 3, 1, 0][(c - 8) % 4]

    X5 = opt.get("x5", 0)
    X5OFF = 131072 - G * 49152

    def dma_kv(c, staged=None):
        slot = slot_of(c)
        cc = c % 8

        def piece(i):
            def p():
                if staged is None:
                    setm0(sM0K, X5OFF if (X5 and c == 15) else slot * 16384)
                if cc:
                    k.s2("s_xor_b32", sOff, sKV, cc * 16384)
                else:
                    k.s1("s_mov_b32", sOff, sKV)
                a, srd = (v(KD[i]), SK) if c < 8 else (v(VD[i & 1]), SV)
                if staged is None:
                    k.vmem(f"buffer_load_dwordx4 {a}, {sr(srd, 4)}, {sOff} offen offset:{i * 1024}{NT} lds",
                           rd=[a, sOff], tag=("kv", c), dma=True)
                else:
                    d = staged + 4 * i
                    k.vmem(f"buffer_load_dwordx4 {vr(d, 4)}, {a}, {sr(srd, 4)}, {sOff} offen offset:{i * 1024}{NT}",
                           wr=vs(d, 4), rd=[a, sOff], tag=("kv", c))
            return p
        return [piece(i) for i in range(4)]

    FOLD = opt.get("fold", 0)
    NM = [244, 248, 252]
    NSTG = 6 if JIT else opt.get("nstg", 5 if FOLD else 6)
    assert not (FOLD and NSTG > 5)
    sched = [opt.get(f"k{n}", d) for n, d in enumerate([7, 10, 13, 16, 19, 20, 21, 22])]
    issue = {}
    for n in range(2 + NSTG):
        issue.setdefault(sched[n], []).extend(dma_kv(n, None if n < 2 else STG + 16 * (n - 2)))

    WOL = 0
    WO_DMA, WO_DO, WO_SIG = opt.get("wodma", 0), opt.get("wodo", 4), opt.get("wosig", 7)
    assert WO_DO < sched[0] - 0

    def wo_dma():
        k.s2("s_lshr_b32", sT0, "s2", 1)
        k.s2("s_lshl_b32", sT0, sT0, 5)
        k.s2("s_lshl_b32", sT1, sW, 2)
        k.s2("s_add_u32", sT0, sT0, sT1)
        k.s2("s_mul_i32", sT0, sT0, 1280)
        k.s2("s_and_b32", sT2, "s2", 1)
        k.s2("s_mul_i32", sT2, sT2, 640)
        k.s2("s_add_u32", sT0, sT0, sT2)
        k.s2("s_mul_i32", sT1, sW, 4 * 640)
        if WOL:
            k.s2("s_add_u32", sT1, sT1, WOL)
        k.salu("s_mov_b32 exec_hi, 0xff")
        for i in range(4):
            k.s1("s_mov_b32", "m0", sT1)
            k.vmem(f"buffer_load_dwordx4 {L16}, {sr(SWO, 4)}, {sT0} offen lds", rd=[L16, sT0], tag="wo", dma=True)
            k.s2("s_add_u32", sT0, sT0, 1280)
            k.s2("s_add_u32", sT1, sT1, 640)
        k.salu("s_mov_b32 exec_hi, -1")

    WD = 144
    NWO = 3 if G == 0 else 2

    def wo_read():
        k.v3("v_bfe_u32", T0, LANE, 2, 2)
        k.v3("v_lshl_add_u32", T0, vG, 2, T0)
        k.v2("v_mul_u32_u24", T0, 640, T0)
        k.v2("v_and_b32", T1, 3, LANE)
        k.v3("v_lshl_add_u32", T0, T1, 3, T0)
        k.s2("s_lshl_b32", sT0, sW, 5)
        if WOL:
            k.s2("s_add_u32", sT0, sT0, WOL)
        k.v2("v_add_u32", T0, sT0, T0)
        for i in range(NWO):
            for u in range(2):
                d = WD + i * 4 + 2 * u
                k.ds(f"ds_read_b64_tr_b16 {vr(d, 2)}, {T0} offset:{u * 10240 + i * 256}",
                     wr=vs(d, 2), rd=[T0], tag="wor")

    def wo_store():
        k.s2("s_mul_i32", sT0, "s2", 20)
        k.s2("s_add_u32", sT0, sT0, sW)
        k.s2("s_lshl_b32", sT0, sT0, 10)
        k.s2("s_add_u32", sT0, sT0, WOT)
        for i in range(NWO):
            k.vmem(f"buffer_store_dwordx4 {vr(WD + 4 * i, 4)}, {L16}, {sr(SWS, 4)}, {sT0} offen sc1",
                   rd=vs(WD + 4 * i, 4) + [L16, sT0], tag="wost", store_data=vs(WD + 4 * i, 4))
            if i < NWO - 1:
                k.s2("s_add_u32", sT0, sT0, 8192)

    def w_signal():
        k.s2("s_lshl_b32", sT2, "s2", 6)
        k.s2("s_add_u32", sT2, sT2, WFL)
        k.salu(f"s_cmp_eq_u32 {sW}, 0")
        k.salu(f"s_cselect_b32 {sT2}, {sT2}, {OOB}", wr=[sT2])
        flag_store(sT2)

    def tlb_touch():
        k.s2("s_lshl_b32", sT0, sB, 1)
        k.s2("s_add_u32", sT0, sT0, sQh)
        k.s2("s_lshl_b32", sT0, sT0, 7)
        k.s2("s_lshl_b32", sT1, sHead, 2)
        k.s2("s_add_u32", sT0, sT0, sT1)
        k.s2("s_lshl_b32", sT1, sKh, 1)
        k.s2("s_add_u32", sT0, sT0, sT1)
        k.s2("s_mul_i32", sT0, sT0, 3072)
        k.v1("v_mov_b32", T0, 0)
        k.vmem(f"buffer_load_dword v156, {T0}, {sr(SWS, 4)}, {sT0} offen sc1", wr=["v156"], rd=[T0, sT0], tag="tlb")
        k.s1("s_mov_b32", sT1, FLG + (1 << 19))
        k.vmem(f"buffer_load_dword v157, {T0}, {sr(SWS, 4)}, {sT1} offen sc1", wr=["v157"], rd=[T0, sT1], tag="tlb")
        k.s2("s_mul_i32", sT2, sRb, 48 * 1280)
        k.vmem(f"buffer_load_dword v158, {T0}, {sr(SOUT, 4)}, {sT2} offen sc1", wr=["v158"], rd=[T0, sT2], tag="tlb")

    NV = 62

    def nonce_load():
        k.v1("v_mov_b32", v(61), 0)
        k.vmem(f"buffer_load_dwordx2 {vr(NV, 2)}, v61, {sr(SDBG, 4)}, 0 offen sc1", wr=vs(NV, 2), rd=["v61"], tag="nonce")

    def nonce_check():
        name = f"K1_N{sfx}"
        k.wait_vm("nonce")
        k.s1("s_mov_b32", sT1, 0)
        k.label(f"{name}_CMP")
        k._emit(f"v_readfirstlane_b32 {sN0}, v{NV}")
        k._emit(f"v_readfirstlane_b32 {sN1}, v{NV + 1}")
        k._emit(f"s_add_u32 {sT1}, {sT1}, 1")
        k._emit(f"s_cmp_lg_u32 {sN1}, 0")
        k._emit(f"s_cbranch_scc1 {name}_OK")
        k._emit(f"s_cmp_ge_u32 {sT1}, 0x40000")
        k._emit(f"s_cbranch_scc1 {name}_OK")
        k._emit("s_sleep 4")
        k._emit(f"buffer_load_dwordx2 {vr(NV, 2)}, v61, {sr(SDBG, 4)}, 0 offen sc1")
        k._emit("s_waitcnt vmcnt(0)")
        k._emit(f"s_branch {name}_CMP")
        k.label(f"{name}_OK")
        k.nop(4)

    def q_reads(c):
        ops = []
        A = QA[c & 1]
        B = A + 16
        for qt in range(3):
            ops.append(lambda qt=qt: k.ds(
                f"ds_read_b128 {vr(B + 4 * qt, 4)}, {v(XR[c & 1])} offset:{qt * 2048 + ((c // 2) & 1) * 12288}",
                wr=vs(B + 4 * qt, 4), rd=[v(XR[c & 1])], tag="qf"))
        for dt in range(4):
            def rd2(dt=dt):
                if c > 0 and c % 2 == 0:
                    k.v2("v_xor_b32", v(WQR[dt]), "0x10000", v(WQR[dt]))
                for u in range(2):
                    k.ds(f"ds_read_b64_tr_b16 {vr(A + 4 * dt + 2 * u, 2)}, {v(WQR[dt])} offset:{u * 2048 + (c & 1) * 16384}",
                         wr=vs(A + 4 * dt + 2 * u, 2), rd=[v(WQR[dt])], tag="qf")
            ops.append(rd2)
        return ops

    if WO_DMA == -1:
        wo_dma()
    run(issue.get(-1, []))
    k.wait_vm(("x", 0))
    k.wait_vm(("wq", 0))
    k.barrier()
    k.stamp()
    run(q_reads(0))
    for c in range(20):
        k.comment(f"---- qproj kstep {c}")
        if c + 1 < 20:
            k.wait_vm(("x", (c + 1) // 2))
            k.wait_vm(("wq", c + 1))
        if c == WO_DO:
            k.wait_vm("wo")
        if c == WO_SIG - 1:
            nonce_check()
        if c == WO_SIG:
            k.wait_vm("wost")
        k.wait_lg0()
        k.barrier()
        if c in ((3, 7, 11, 15) if not opt.get("dbg15") else (7, 15)):
            k.stamp()
        pieces = []
        if c % 2 == 1 and (c + 1) // 2 + 1 < 10:
            pieces += dma_x((c + 1) // 2 + 1)
        if c + 4 < 20:
            pieces += dma_wq(c + 4)
        if c == WO_DMA:
            pieces.append(wo_dma)
        if c == WO_DO + 1:
            pieces.append(wo_store)
        if c == WO_SIG - 4:
            pieces.insert(0, nonce_load)
        if c == opt.get("tlb", -1):
            pieces.append(tlb_touch)
        if c == WO_SIG and G == 0:
            pieces.append(w_signal)
        pieces += issue.get(c, [])
        A = QA[c & 1]
        B = A + 16
        mf = []
        for dt in range(4):
            for qt in range(3):
                d = ACC + (dt * 3 + qt) * 4
                mf.append(lambda d=d, dt=dt, qt=qt: k.mfma(d, A + 4 * dt, B + 4 * qt, d if c else None))
        rds = q_reads(c + 1) if c + 1 < 20 else []
        if c == WO_DO:
            rds.append(wo_read)
        weave(mf, (rds, 0, 1, 1), (pieces, opt.get("qdma0", 1) if G == 0 else opt.get("qdma1", 7), 3, 1))
    k.stamp()
    TQ = 32
    for dt in range(4):
        for qt in range(3):
            d = ACC + (dt * 3 + qt) * 4
            t = TQ + (dt * 3 + qt) * 2
            if FOLD:
                for r in range(4):
                    k.v2("v_mul_f32", v(d + r), sC, v(d + r))
            k.v2("v_cvt_pk_bf16_f32", v(t), v(d), v(d + 1))
            k.v2("v_cvt_pk_bf16_f32", v(t + 1), v(d + 2), v(d + 3))
            k.ds(f"ds_write_b64 {v(QW)}, {vr(t, 2)} offset:{qt * 4096 + dt * 512}", rd=[v(QW)] + vs(t, 2), tag="qw")
    k.v3("v_bfe_u32", T0, LANE, 2, 2)
    k.v2("v_and_b32", T1, 1, vG)
    k.v3("v_lshl_add_u32", T1, T1, 2, T0)
    k.s2("s_lshl_b32", sT0, sKh, 2)
    k.s2("s_xor_b32", sT0, sT0, 4)
    k.v2("v_xor_b32", T1, sT0, T1)
    k.v3("v_lshl_add_u32", T2, vG, 2, T0)
    k.v2("v_lshlrev_b32", T2, 8, T2)
    k.v2("v_and_b32", T3, 3, LANE)
    k.v3("v_lshl_add_u32", T2, T3, 3, T2)
    k.s2("s_lshl_b32", sT0, sKh, 13)
    k.s2("s_add_u32", sT0, sT0, sRing)
    k.v2("v_add_u32", T2, sT0, T2)
    for j in range(8):
        k.v2("v_xor_b32", T3, j, T1)
        k.v3("v_lshl_add_u32", v(VR[j]), T3, 5, T2)

    def k_reads(c):
        slot = slot_of(c)
        ops = []
        for t in range(2):
            for ds_ in range(4):
                d = FR + (t * 4 + ds_) * 4
                ops.append(lambda d=d, t=t, ds_=ds_: k.ds(
                    f"ds_read_b128 {vr(d, 4)}, {v(KR[ds_])} offset:{slot * 16384 + t * 4096}",
                    wr=vs(d, 4), rd=[v(KR[ds_])], tag=("kf", t, ds_)))
        return ops

    def v_reads(c, half):
        x5 = X5 and c == 15
        slot = 0 if x5 else slot_of(c)
        ops = []
        for j in range(4 * half, 4 * half + 4):
            for u in range(2):
                d = FR + j * 4 + 2 * u

                def op(d=d, j=j, u=u):
                    if x5 and u == 0:
                        k.v2("v_add_u32", v(VR[j]), X5OFF, v(VR[j]))
                    k.ds(f"ds_read_b64_tr_b16 {vr(d, 2)}, {v(VR[j])} offset:{slot * 16384 + u * 4096}",
                         wr=vs(d, 2), rd=[v(VR[j])], tag=("vf", j))
                ops.append(op)
        return ops

    def sreg(qt, t):
        return S0 + (qt * 2 + t) * 4

    def xlane3(op, rs, tmps):
        for sw in ("v_permlane32_swap_b32", "v_permlane16_swap_b32"):
            for r, t in zip(rs, tmps):
                k.v1("v_mov_b32", v(t), v(r))
            for r, t in zip(rs, tmps):
                k.valu(f"{sw} {v(r)}, {v(t)}", wr=[v(r), v(t)], rd=[v(r), v(t)], perm=True)
            for r, t in zip(rs, tmps):
                k.v2(op, v(r), v(r), v(t))

    def max8x3(dsts):
        for qt in range(3):
            b = sreg(qt, 0)
            k.v3("v_max3_f32", v(dsts[qt]), v(b), v(b + 1), v(b + 2))
        for i in (3, 5):
            for qt in range(3):
                b = sreg(qt, 0)
                k.v3("v_max3_f32", v(dsts[qt]), v(dsts[qt]), v(b + i), v(b + i + 1))
        for qt in range(3):
            b = sreg(qt, 0)
            k.v2("v_max_f32", v(dsts[qt]), v(dsts[qt]), v(b + 7))

    sites = []

    def s_mfma(c):
        ops = []
        for t in range(2):
            for ds_ in range(4):
                for qt in range(3):
                    def op(t=t, ds_=ds_, qt=qt):
                        if qt == 0:
                            k.wait_lg(("kf", t, ds_))
                        d = sreg(qt, t)
                        k.mfma(d, FR + (t * 4 + ds_) * 4, QF + (qt * 4 + ds_) * 4,
                               d if ds_ else (NM[qt] if (FOLD and c > 0) else None))
                    ops.append(op)
        return ops

    def softmax(c):
        ops = []

        def fm(r0):
            if FOLD and c > 0:
                return
            for r in range(r0, r0 + 4):
                for qt in range(3):
                    x = sreg(qt, 0) + r
                    if FOLD:
                        k.v2("v_sub_f32", v(x), v(x), v(MC[qt]))
                    else:
                        k.v3("v_fma_f32", v(x), v(x), sC, f"-{v(MC[qt])}")

        def head():
            k.comment(f"softmax {c}")
            if c == 0:
                max8x3(MC)
                xlane3("v_max_f32", MC, [SP, SP + 1, SP + 2])
                for qt in range(3):
                    if FOLD:
                        for r in range(4):
                            k.v2("v_sub_f32", v(NM[qt] + r), 0, v(MC[qt]))
                    else:
                        k.v2("v_mul_f32", v(MC[qt]), sC, v(MC[qt]))
            fm(0)

        def check():
            if c > 0:
                max8x3([SP, SP + 1, SP + 2])
                k.v3("v_max3_f32", v(SP + 3), v(SP), v(SP + 1), v(SP + 2))
                k.valu(f"v_cmp_lt_f32 vcc, {sThr}, {v(SP + 3)}", wr=["vcc"], rd=[sThr, v(SP + 3)])
                k.s1("s_mov_b32", sRet, c)
                k.nop(4)
                k.salu(f"s_cbranch_vccnz K1_SLOW{sfx}")
                k.label(f"K1_RET{c}{sfx}")
                sites.append(c)
                k.fence()
        ops += [head, lambda: fm(4), check]

        def body(r):
            if r < 8:
                for qt in range(3):
                    x = sreg(qt, 0) + r
                    k.v1("v_exp_f32", v(x), v(x), trans=True)
            if r >= 1:
                rr = r - 1
                for qt in range(3):
                    b = sreg(qt, 0)
                    if c == 0 and rr == 0:
                        continue
                    if c == 0 and rr == 1:
                        k.v2("v_add_f32", v(LS[qt]), v(b), v(b + 1))
                    else:
                        k.v2("v_add_f32", v(LS[qt]), v(LS[qt]), v(b + rr))
                if rr % 2 == 1:
                    for qt in range(3):
                        b = sreg(qt, 0)
                        k.v2("v_cvt_pk_bf16_f32", v(preg(c) + qt * 4 + rr // 2), v(b + rr - 1), v(b + rr))
        for r in range(9):
            ops.append(lambda r=r: body(r))
        return ops

    def pv_mfma(c, half):
        cv = c - 8
        ops = []
        for j in range(4 * half, 4 * half + 4):
            for qt in range(3):
                def op(j=j, qt=qt):
                    if qt == 0:
                        k.wait_lg(("vf", j))
                    d = oreg(j, qt)
                    k.mfma(d, FR + j * 4, preg(cv) + qt * 4, d if cv else None)
                ops.append(op)
        return ops

    def stage_out(n):
        k.wait_vm(("kv", n))
        k.s2("s_add_u32", sT2, sM0K, slot_of(n) * 16384)
        k.v2("v_add_u32", T3, sT2, L16)
        for i in range(4):
            d = STG + 16 * (n - 2) + 4 * i
            k.ds(f"ds_write_b128 {T3}, {vr(d, 4)} offset:{i * 1024}", rd=[T3] + vs(d, 4), tag="stg")

    if JIT:
        so_at = {n: n - 1 for n in range(2, 8)}
        dma_at = {8: opt.get("d8", 3), 9: opt.get("d9", 4)}
        dma_at.update({n: n - 3 for n in range(10, 16)})
    else:
        so_at = {n: (1 if n < 4 else n - 2) for n in range(2, 2 + NSTG)}
        dma_at = {n: max(1, n - 3) for n in range(2 + NSTG, 16)}

    if X5:
        dma_at[15] = 11

    OF = ["", " sc1", " nt", " sc0 sc1"][opt.get("of", 1)]
    BF = ["", " sc1", " sc0", " nt"][opt.get("bf", 1)]
    AF = ["", " sc1", " sc0", " nt"][opt.get("af", 1)]
    BSL = [148, 168, 188, 68, 96, 116, 208, 228]
    AR = [88, 92, 136, 140, 144, 248, 252]
    OACC = 8
    L16B = "v8"
    sOB, sOA = "s65", "s66"

    def rot_off(dst, j, base, stride):
        k.s2("s_add_u32", dst, sRho, j)
        k.s2("s_and_b32", dst, dst, 7)
        k.s2("s_mul_i32", dst, dst, stride)
        k.s2("s_add_u32", dst, dst, base)

    def loadB(j):
        ops = []
        for nt in range(5):
            def op(nt=nt):
                if nt == 0:
                    rot_off(sOB, j, sBo, 40960)
                a, o = (L16, nt * 1024) if nt < 4 else (L16B, 0)
                d = BSL[j] + 4 * nt
                k.vmem(f"buffer_load_dwordx4 {vr(d, 4)}, {a}, {sr(SWS, 4)}, {sOB} offen offset:{o}{BF}",
                       wr=vs(d, 4), rd=[a, sOB], tag=("b", j))
            ops.append(op)
        return ops

    WCHK = opt.get("wchk", 13 if X5 else 10)
    EARLYB = 1
    EB = [opt.get("eb0", 15), opt.get("eb1", 15), opt.get("eb2", 15)]

    def flag_load(soff, imm, tag):
        k.vmem(f"buffer_load_dwordx2 v[2:3], {T3}, {sr(SWS, 4)}, {soff} offen offset:{imm} sc1", wr=["v2", "v3"],
               rd=[T3] + ([soff] if isinstance(soff, str) else []), tag=tag)

    def flag_check(soff, imm, name, tag):
        k.wait_vm(tag)
        k.s1("s_mov_b32", sT1, 0)
        k.label(f"{name}_CMP")
        k._emit(f"v_cmp_ne_u64 vcc, s[30:31], v[2:3]")
        k._emit(f"s_add_u32 {sT1}, {sT1}, 1")
        k._emit("s_nop 3")
        k._emit(f"s_cbranch_vccz {name}_OK")
        k._emit(f"s_cmp_ge_u32 {sT1}, 0x40000")
        k._emit(f"s_cbranch_scc1 {name}_OK")
        k._emit(f"s_sleep {opt.get('slp', 4)}")
        k._emit(f"buffer_load_dwordx2 v[2:3], {T3}, {sr(SWS, 4)}, {soff} offen offset:{imm} sc1")
        k._emit("s_waitcnt vmcnt(0)")
        k._emit(f"s_branch {name}_CMP")
        k.label(f"{name}_OK")

    sWf = "s45"

    def sync(c):
        if opt.get("dbg15") and c == 15:
            k.stamp()
        if c < 16 and not (2 <= c < 2 + NSTG):
            k.wait_vm(("kv", c))
        if opt.get("dbg15") and c == 15:
            k.stamp()
        if c == WCHK:
            flag_check(sWf, 0, f"K1_W{sfx}", "wp")
        k.wait_lg0()
        k.barrier()
        k.stamp()
        if c == WCHK - 2:
            k.v2("v_and_b32", T3, 7, LANE)
            k.v2("v_lshlrev_b32", T3, 7, T3)
            k.s2("s_lshl_b32", sWf, sA, 7)
            k.s2("s_lshr_b32", sT0, sCb, 2)
            k.s2("s_lshl_b32", sT0, sT0, 6)
            k.s2("s_add_u32", sWf, sWf, sT0)
            k.s2("s_add_u32", sWf, sWf, WFL)
            flag_load(sWf, 0, "wp")

    SCR = G * 65536 + (16384 if JIT else 0)
    for c in range(17):
        k.comment(f"---- interval {c}")
        if c < 16:
            sync(c)
        so = [(lambda n=n: stage_out(n)) for n in sorted(so_at) if so_at[n] == c]
        dm = list(issue.get(20 + c, []))
        for n in sorted(dma_at):
            if dma_at[n] == c:
                dm += dma_kv(n)
        if c == 0:
            for ds_ in range(4):
                for qt in range(3):
                    d = QF + (qt * 4 + ds_) * 4
                    k.ds(f"ds_read_b128 {vr(d, 4)}, {v(QR)} offset:{(qt * 4 + ds_) * 1024}",
                         wr=vs(d, 4), rd=[v(QR)], tag="qr")
            run(k_reads(0))
            run(dm)
            if G == 0:
                run(s_mfma(0))
        elif c <= 8:
            rds = k_reads(c) if c < 8 else v_reads(8, 0)
            if G == 1:
                weave(s_mfma(c - 1), (so, 2, 6, 1))
            else:
                run(so)
            weave(softmax(c - 1), (rds, 0, 1, 2), (dm, 3, 1, 1))
            if c < 8:
                if G == 0:
                    run(s_mfma(c))
            else:
                weave(pv_mfma(8, 0), (v_reads(8, 1), 0, 1, 1))
        elif c < 16:
            if c == (9 if X5 else 11):
                xlane3("v_add_f32", LS, [1, 2, 3])
                k.s2("s_lshl_b32", sT0, sW, 9)
                k.s2("s_add_u32", sT0, sT0, STAT)
                k.v3("v_lshl_add_u32", T3, vQ, 5, sT0)
                k.ds(f"ds_write_b128 {T3}, {vr(ST, 4)}", rd=[T3] + vs(ST, 4), tag="mw")
                k.ds(f"ds_write_b64 {T3}, {vr(ST + 4, 2)} offset:16", rd=[T3] + vs(ST + 4, 2), tag="mw")
            if c == (10 if X5 else 12):
                k.s2("s_lshl_b32", sT0, sW, 9)
                k.s2("s_xor_b32", sT0, sT0, 1024)
                k.s2("s_add_u32", sT0, sT0, STAT)
                k.v3("v_lshl_add_u32", T3, vQ, 5, sT0)
                k.ds(f"ds_read_b128 {vr(148, 4)}, {T3}", wr=vs(148, 4), rd=[T3], tag="ps")
                k.ds(f"ds_read_b64 {vr(152, 2)}, {T3} offset:16", wr=vs(152, 2), rd=[T3], tag="ps")
            if c == (11 if X5 else 13):
                PS, MM, R3 = 148, [156, 157, 158], range(3)
                for qt in R3:
                    k.v2("v_max_f32", v(MM[qt]), v(MC[qt]), v(PS + qt))
                for qt in R3:
                    k.v2("v_sub_f32", v(MC[qt]), v(MC[qt]), v(MM[qt]))
                    k.v2("v_sub_f32", v(PS + qt), v(PS + qt), v(MM[qt]))
                for qt in R3:
                    k.v1("v_exp_f32", v(MC[qt]), v(MC[qt]), trans=True)
                    k.v1("v_exp_f32", v(PS + qt), v(PS + qt), trans=True)
                for qt in R3:
                    k.v2("v_mul_f32", v(MM[qt]), v(MC[qt]), v(LS[qt]))
                for qt in R3:
                    k.v3("v_fma_f32", v(MM[qt]), v(PS + qt), v(PS + 3 + qt), v(MM[qt]))
                for qt in R3:
                    k.v1("v_rcp_f32", v(MM[qt]), v(MM[qt]), trans=True)
                for qt in R3:
                    k.v2("v_mul_f32", v(MC[qt]), v(MC[qt]), v(MM[qt]))
                    k.v2("v_mul_f32", v(LS[qt]), v(PS + qt), v(MM[qt]))
            if c == 9:
                k.v2("v_add_u32", L16B, 4096, L16)
            if EARLYB:
                for jb, cb_ in enumerate(EB):
                    if cb_ == c:
                        dm = dm + loadB(jb)
            d0, d1 = (dm, []) if G == 0 else ([], dm)
            if len(dm) > 4:
                d0, d1 = dm[:len(dm) // 2], dm[len(dm) // 2:]
            weave(pv_mfma(c - 1, 1), (v_reads(c, 0), 0, 1, 1), (d0, 1, 2, 1))
            weave(pv_mfma(c, 0), (v_reads(c, 1), 0, 1, 1), (d1, 1, 2, 1))
        else:
            k.s2("s_mul_i32", sT0, sWl, 12288)
            k.s2("s_add_u32", sT0, sT0, SCR)
            k.v2("v_add_u32", T1, sT0, L16)
            wr_ops = []
            for j in range(4):
                for qt in range(3):
                    wr_ops.append(lambda j=j, qt=qt: k.ds(
                        f"ds_write_b128 {T1}, {vr(oreg(j, qt), 4)} offset:{(j * 3 + qt) * 1024}",
                        rd=[T1] + vs(oreg(j, qt), 4), tag="mw"))
            k.wait_lg0()
            weave(pv_mfma(15, 1), (wr_ops, 0, 1, 1))
    k.stamp()
    k.wait_lg0()
    k.barrier()
    k.s2("s_xor_b32", sT1, sWl, 2)
    k.s2("s_mul_i32", sT0, sT1, 12288)
    k.s2("s_add_u32", sT0, sT0, SCR)
    k.v2("v_add_u32", T1, sT0, L16)
    for j in range(4):
        for qt in range(3):
            d = oreg(j, qt)
            k.ds(f"ds_read_b128 {vr(d, 4)}, {T1} offset:{(j * 3 + qt) * 1024}", wr=vs(d, 4), rd=[T1], tag=("po", j))
    for jb, cb_ in enumerate(EB):
        if cb_ == 16:
            run(loadB(jb))
    FO, FP = MC, LS
    k.s2("s_lshl_b32", sT0, sB, 1)
    k.s2("s_add_u32", sT0, sT0, sQh)
    k.s2("s_lshl_b32", sT0, sT0, 7)
    k.s2("s_lshl_b32", sT1, sHead, 2)
    k.s2("s_add_u32", sT0, sT0, sT1)
    k.s2("s_lshl_b32", sT1, sKh, 1)
    k.s2("s_add_u32", sT0, sT0, sT1)
    k.s2("s_mul_i32", sT0, sT0, 3072)
    if OWS:
        k.s2("s_add_u32", sT0, sT0, OWS)
    k.s2("s_add_u32", sT1, sT0, 3072)
    OD = 208
    for jj in range(2):
        for e in range(2):
            j = 2 * jj + e
            for qt in range(3):
                d = oreg(4 + j, qt)
                for r in range(4):
                    k.v2("v_mul_f32", v(d + r), v(d + r), v(FO[qt]))
            k.wait_lg(("po", j))
            for qt in range(3):
                d = oreg(4 + j, qt)
                p = oreg(j, qt)
                for r in range(4):
                    k.valu(f"v_fmac_f32 {v(d + r)}, {v(p + r)}, {v(FP[qt])}", wr=[v(d + r)],
                           rd=[v(d + r), v(p + r), v(FP[qt])])
                od = OD + (jj * 3 + qt) * 4 + 2 * e
                k.v2("v_cvt_pk_bf16_f32", v(od), v(d), v(d + 1))
                k.v2("v_cvt_pk_bf16_f32", v(od + 1), v(d + 2), v(d + 3))
        for qt in range(3):
            od = OD + (jj * 3 + qt) * 4
            so = sT1 if jj else sT0
            k.vmem(f"buffer_store_dwordx4 {vr(od, 4)}, {L16}, {sr(SWS, 4)}, {so} offen offset:{qt * 1024} sc1",
                   rd=vs(od, 4) + [L16, so], tag="ost", store_data=vs(od, 4))
    k.salu("s_branch K1_TAIL")
    mark_tail = len(k.lines)

    k.label("K1_TAIL")
    k.fence()
    rest = [j for j in range(8) if not (j < 3 and EB[j] < 17)]
    for j in rest[:opt.get("npre", 3)]:
        run(loadB(j))
    k.wait_vm("ost")
    k.barrier()
    k.stamp()
    flag_store(sFl)
    sA1, sA2, sPo, sPf = "s60", "s61", "s62", "s63"
    k.s2("s_lshr_b32", sFl, sRb, 1)
    k.s2("s_lshl_b32", sFl, sFl, 12)
    k.s2("s_lshl_b32", sT0, sA, 5)
    k.s2("s_add_u32", sFl, sFl, sT0)
    k.s2("s_add_u32", sFl, sFl, FLG)
    k.v1("v_mov_b32", T3, 0)
    late = rest[opt.get("npre", 3):]
    nf = opt.get("fpos", 0)
    for j in late[:nf]:
        run(loadB(j))
    flag_load(sFl, 0, "f0")
    for j in late[nf:]:
        run(loadB(j))
    k.s2("s_lshl_b32", sA2, sRb, 7)
    k.s2("s_add_u32", sA2, sA2, sA)
    k.s2("s_xor_b32", sA1, sA2, 128)
    k.s2("s_mul_i32", sA1, sA1, 3072)
    k.s2("s_mul_i32", sA2, sA2, 3072)
    if OWS:
        k.s2("s_add_u32", sA1, sA1, OWS)
        k.s2("s_add_u32", sA2, sA2, OWS)
    k.s2("s_lshl_b32", sPo, "s2", 4)
    k.s2("s_add_u32", sPo, sPo, sW)
    k.s2("s_lshl_b32", sPo, sPo, 10)
    k.s2("s_add_u32", sPo, sPo, PART)
    k.s2("s_lshl_b32", sPf, "s2", 3)
    k.s2("s_add_u32", sPf, sPf, sW)
    k.s2("s_lshl_b32", sPf, sPf, 6)
    k.s2("s_add_u32", sPf, sPf, PFL)
    flag_check(sFl, 0, "K1_F0", "f0")
    k.stamp()

    def loadA(f):
        ps, j, mt = f // 24, (f % 24) // 3, f % 3
        if mt == 0:
            rot_off(sOA, j, sA2 if ps else sA1, 3072)
        d = AR[f % 7]
        k.vmem(f"buffer_load_dwordx4 {vr(d, 4)}, {L16}, {sr(SWS, 4)}, {sOA} offen offset:{mt * 1024}{AF}",
               wr=vs(d, 4), rd=[L16, sOA], tag=("a", f))

    LW = "v0"

    def acc_to_lds():
        for t in range(15):
            k.ds(f"ds_write_b128 {LW}, {vr(OACC + 4 * t, 4)} offset:{t * 1024}", rd=[LW] + vs(OACC + 4 * t, 4), tag="w")

    def gather(i, RB):
        k.s2("s_lshl_b32", sT0, sW, 10)
        k.s2("s_add_u32", sT0, sT0, i * 8192)
        k.v2("v_add_u32", T0, sT0, L16)
        k.v2("v_add_u32", T1, 65536, T0)
        for s_ in range(8):
            d = RB + s_ * 4
            k.ds(f"ds_read_b128 {vr(d, 4)}, {T0 if s_ < 4 else T1} offset:{(s_ % 4) * 16384}", wr=vs(d, 4),
                 rd=[T0 if s_ < 4 else T1], tag=("r", i))

    def tree(RB):
        for step in (16, 8, 4):
            for o in range(0, step):
                k.v2("v_add_f32", v(RB + o), v(RB + o), v(RB + o + step))

    k.s2("s_lshl_b32", sT0, sW, 14)
    k.v2("v_add_u32", LW, sT0, L16)
    for f in range(7):
        loadA(f)
    R1 = opt.get("r1", 2)
    for f in range(48):
        ps, j, mt = f // 24, (f % 24) // 3, f % 3
        if f == 24:
            k.stamp()
            acc_to_lds()
        if ps == 1 and mt == 0 and j == R1:
            k.comment("reduce pass-1 partials and hand them to the partner")
            k.wait_lg0()
            k.barrier()
            for i in range(2):
                RB = 148
                gather(i, RB)
                k.wait_lg(("r", i))
                tree(RB)
                d = RB + 32 + 4 * i
                for r in range(4):
                    k.v1("v_mov_b32", v(d + r), v(RB + r))
                so = sPo
                if i:
                    k.s2("s_add_u32", sT2, sPo, 8192)
                    so = sT2
                k.vmem(f"buffer_store_dwordx4 {vr(d, 4)}, {L16}, {sr(SWS, 4)}, {so} offen sc1",
                       rd=vs(d, 4) + [L16, so], tag="pst", store_data=vs(d, 4))
            k.stamp()
        if ps == 1 and mt == 0 and j == R1 + 3:
            k.wait_vm("pst")
            flag_store(sPf)
            k.barrier()
        k.wait_vm(("a", f))
        if ps == 0 and mt == 0:
            k.wait_vm(("b", j))
        for nt in range(5):
            d = OACC + (nt * 3 + mt) * 4
            k.mfma(d, BSL[j] + 4 * nt, AR[f % 7], d if j else None)
        if f + 7 < 48:
            loadA(f + 7)
    k.stamp()
    k.s2("s_xor_b32", sPf, sPf, 512)
    k.s2("s_xor_b32", sPo, sPo, 16384)
    k.v1("v_mov_b32", T3, 0)
    flag_load(sPf, 0, "pf")
    acc_to_lds()
    flag_check(sPf, 0, "K1_PF", "pf")
    PP = 208
    k.vmem(f"buffer_load_dwordx4 {vr(PP, 4)}, {L16}, {sr(SWS, 4)}, {sPo} offen sc1", wr=vs(PP, 4), rd=[L16, sPo], tag=("pp", 0))
    k.s2("s_add_u32", sT2, sPo, 8192)
    k.vmem(f"buffer_load_dwordx4 {vr(PP + 4, 4)}, {L16}, {sr(SWS, 4)}, {sT2} offen sc1", wr=vs(PP + 4, 4), rd=[L16, sT2], tag=("pp", 1))
    k.wait_lg0()
    k.barrier()
    k.stamp()
    gather(0, 72)
    gather(1, 104)
    k.v2("v_mul_u32_u24", T2, 1280, vQ)
    k.v3("v_lshl_add_u32", T2, vG, 3, T2)
    for i in range(2):
        k.s2("s_add_u32", sT0, sW, 8 * i)
        k.s2("s_mul_i32", sT1, sT0, 11)
        k.s2("s_lshr_b32", sT1, sT1, 5)
        k.s2("s_mul_i32", sT2, sT1, 3)
        k.s2("s_sub_u32", sT2, sT0, sT2)
        k.s2("s_mul_i32", sA, sRb, 48)
        k.s2("s_lshl_b32", sT2, sT2, 4)
        k.s2("s_add_u32", sA, sA, sT2)
        k.s2("s_mul_i32", sA, sA, 1280)
        k.s2("s_mul_i32", sBo, sCb, 160)
        k.s2("s_add_u32", sA, sA, sBo)
        k.s2("s_lshl_b32", sT1, sT1, 5)
        k.s2("s_add_u32", sA, sA, sT1)
        if i == 1:
            k.salu(f"s_cmp_lt_u32 {sW}, 7")
            k.salu(f"s_cselect_b32 {sA}, {sA}, {OOB}", wr=[sA])
        k.wait_lg(("r", i))
        d = 72 + i * 32
        tree(d)
        k.wait_vm(("pp", i))
        for r in range(4):
            k.v2("v_add_f32", v(d + r), v(d + r), v(PP + 4 * i + r))
        k.v2("v_cvt_pk_bf16_f32", v(d + 4), v(d), v(d + 1))
        k.v2("v_cvt_pk_bf16_f32", v(d + 5), v(d + 2), v(d + 3))
        k.vmem(f"buffer_store_dwordx2 {vr(d + 4, 2)}, {T2}, {sr(SOUT, 4)}, {sA} offen{OF}",
               rd=vs(d + 4, 2) + [T2, sA], tag="st")
    if opt.get("ts"):
        k.wait_vm0()
    k.flush_stamps(SWS, sW, TSBASE, 8)
    k.salu("s_endpgm")
    k.tail = k.lines[mark_tail:]
    del k.lines[mark_tail:]

    k.label(f"K1_SLOW{sfx}")
    k.nop(8)
    D = [SP, SP + 1, SP + 2]
    F = [SP + 4, SP + 5, SP + 6]
    xlane3("v_max_f32", D, [SP + 8, SP + 9, SP + 10])
    for qt in range(3):
        k.v1("v_ceil_f32", v(D[qt]), v(D[qt]))
        k.v2("v_max_f32", v(D[qt]), 0, v(D[qt]))
        k.v2("v_add_f32", v(MC[qt]), v(MC[qt]), v(D[qt]))
        if FOLD:
            for r in range(4):
                k.v2("v_sub_f32", v(NM[qt] + r), 0, v(MC[qt]))
        for r in range(8):
            x = sreg(qt, 0) + r
            k.v2("v_sub_f32", v(x), v(x), v(D[qt]))
        k.v2("v_sub_f32", v(F[qt]), 0, v(D[qt]))
        k.v1("v_exp_f32", v(F[qt]), v(F[qt]), trans=True)
        k.v2("v_mul_f32", v(LS[qt]), v(LS[qt]), v(F[qt]))
    for cc in range(7):
        if cc > 0:
            k.salu(f"s_cmp_le_u32 {sRet}, {cc}")
            k.salu(f"s_cbranch_scc1 K1_SLOW_DONE{sfx}")
        for qt in range(3):
            for r in range(4):
                x = preg(cc) + qt * 4 + r
                a, b = SP + 8, SP + 9
                k.v2("v_lshlrev_b32", v(a), 16, v(x))
                k.v2("v_and_b32", v(b), "0xffff0000", v(x))
                k.v2("v_mul_f32", v(a), v(a), v(F[qt]))
                k.v2("v_mul_f32", v(b), v(b), v(F[qt]))
                k.v2("v_cvt_pk_bf16_f32", v(x), v(a), v(b))
    k.label(f"K1_SLOW_DONE{sfx}")
    k.nop(4)
    for c in sites[:-1]:
        k.salu(f"s_cmp_eq_u32 {sRet}, {c}")
        k.salu(f"s_cbranch_scc1 K1_RET{c}{sfx}")
    k.salu(f"s_branch K1_RET{sites[-1]}{sfx}")
    return k, split


def build(opt):
    k0, split = gen(opt, 0)
    k1, _ = gen(opt, 1)
    assert k0.tail == k1.tail
    lines = k0.lines[:split]
    lines += ["    s_cmp_eq_u32 s49, 1", "    s_cbranch_scc1 K1_G1"]
    lines += k0.lines[split:]
    lines.append("K1_G1:")
    lines += k1.lines[split:]
    lines += k0.tail
    lines += ["K1_END:", "    s_endpgm", "K1_CODE_END:"]
    name = NAME + "_kernel"
    out = HEADER
    out += "; @launch grid=(256,1,1) block=(512,1,1) lds=163840\n"
    out += '.amdgcn_target "amdgcn-amd-amdhsa--gfx950"\n.text\n'
    out += f".globl {name}\n.p2align 8\n.type {name},@function\n{name}:\n" + "\n".join(lines) + "\n"
    out += '.section .rodata,"a"\n.p2align 6\n'
    out += kd(name, 256, 102)
    return out, k0


if __name__ == "__main__":
    opt = {}
    path = sys.argv[1] if len(sys.argv) > 1 else f"cdna_kernels/{NAME}.s"
    for a in sys.argv[2:]:
        kk, vv = a.split("=")
        opt[kk] = float(vv) if "." in vv else int(vv)
    txt, k1 = build(opt)
    open(path, "w").write(txt)
    print("wrote", path, len(txt), "bytes; slots", k1.slot, "stamps", k1.nstamp)
```

```python
import sys
import dsl
from dsl import Kern, vr, sr, vs, ss
from gen1 import (NAME, X_BYTES, KV_BYTES, W_BYTES, OUT_BYTES, WS_BYTES, OWS, WOT, CSCALE, TSBASE,
                  f32bits, build_srd, add_stamps, code_touch, HEADER, kd)

dsl.EXACT_VM = True
THRESH = 10.0
FLG = 24 << 20
WFL = 25 << 20
PART = 26 << 20
PFL = 31 << 20
OOB = "0x7f000000"


def v(i):
    return f"v{i}"


def gen(opt, G):
    k = Kern()
    add_stamps(k, opt)
    sfx = f"_{G}"
    NT = " nt" if opt.get("nt", 1) else ""
    SX, SK, SV, SWQ, SWO, SWS, SOUT, SDBG = 4, 8, 12, 16, 20, 24, 32, 36
    sW, sGrp, sQh, sKh, sWl, sHp, sB = "s48", "s49", "s50", "s51", "s52", "s53", "s54"
    sKV, sT0, sT1, sT2, sC, sRing, sM0K, sM0W, sM0X, sOff = (
        "s55", "s56", "s57", "s58", "s59", "s60", "s61", "s62", "s63", "s64")
    sWqOff, sXOff, sHead, sRet, sThr = "s65", "s66", "s67", "s28", "s29"
    sKW, sKX = "s3", "s47"
    sRb, sCb, sA, sBo, sFl = "s40", "s41", "s42", "s43", "s44"
    XS0 = 131072
    STAT = 155648

    k.stamp()
    k.salu("s_cmp_ge_u32 s2, 256")
    k.salu("s_cbranch_scc1 K1_END")
    k.salu("s_load_dwordx16 s[32:47], s[0:1], 0")
    CT = opt.get("ct", 0)
    if CT == 0:
        code_touch(k, "K1", "K1_CODE_END", "v0", "v2", "v31", 512)
    else:
        k.v1("v_mov_b32", "v63", "v0")
    k.v2("v_lshrrev_b32", "v1", 6, "v0")
    k.v2("v_and_b32", "v0", 63, "v0")
    k.valu(f"v_readfirstlane_b32 {sW}, v1", wr=[sW], rd=["v1"], lane=True)
    k.s2("s_and_b32", sT0, "s2", 7)
    k.s2("s_lshr_b32", sT1, "s2", 3)
    k.s2("s_and_b32", sHp, sT0, 3)
    k.s2("s_lshl_b32", sHp, sHp, 2)
    k.s2("s_and_b32", sT2, sT1, 3)
    k.s2("s_add_u32", sHp, sHp, sT2)
    if opt.get("hpx", 0):
        k.s2("s_xor_b32", sHp, sHp, opt.get("hpx"))
    k.s2("s_mul_i32", sKW, sT2, 10)
    k.s2("s_lshr_b32", sT2, sT1, 2)
    k.s2("s_mul_i32", sOff, sT2, 5)
    k.s2("s_add_u32", sKW, sKW, sOff)
    k.s2("s_lshr_b32", sKW, sKW, 2)
    k.s2("s_sub_u32", sOff, sKW, 10)
    k.salu(f"s_cmp_ge_u32 {sKW}, 10")
    k.salu(f"s_cselect_b32 {sKW}, {sOff}, {sKW}", wr=[sKW])
    if opt.get("rot", 1) == 0:
        k.s1("s_mov_b32", sKW, 0)
    elif opt.get("rot", 1) == 2:
        k.s2("s_and_b32", sKW, sKW, 1)
        k.s2("s_mul_i32", sKW, sKW, 5)
    k.s2("s_lshr_b32", sB, sT0, 2)
    k.s2("s_lshl_b32", sB, sB, 3)
    k.s2("s_add_u32", sB, sB, sT2)
    k.s2("s_lshr_b32", sGrp, sW, 2)
    k.s2("s_and_b32", sQh, sW, 1)
    k.s2("s_bfe_u32", sKh, sW, "0x10001")
    k.s2("s_and_b32", sWl, sW, 3)
    k.s2("s_lshl_b32", sHead, sHp, 1)
    k.s2("s_add_u32", sHead, sHead, sGrp)
    k.s2("s_lshl_b32", sT0, sB, 5)
    k.s2("s_add_u32", sT0, sT0, sHead)
    k.s2("s_lshl_b32", sKV, sT0, 17)
    k.s2("s_lshl_b32", sT1, sWl, 12)
    k.s2("s_add_u32", sKV, sKV, sT1)
    KROT = opt.get("krot", 4)
    if KROT:
        if KROT == 1:
            k.s2("s_add_u32", sT2, sHp, sB)
        elif KROT == 2:
            k.s2("s_and_b32", sT2, sHp, 1)
            k.s2("s_lshl_b32", sT2, sT2, 2)
        elif KROT == 3:
            k.s2("s_mul_i32", sT2, sT0, 5)
            k.s2("s_lshr_b32", sOff, sT0, 3)
            k.s2("s_add_u32", sT2, sT2, sOff)
        elif KROT == 4:
            k.s1("s_mov_b32", sT2, sHead)
        elif KROT == 5:
            k.s1("s_mov_b32", sT2, sB)
        elif KROT == 6:
            k.s2("s_lshl_b32", sT2, sGrp, 2)
        k.s2("s_and_b32", sT2, sT2, 7)
        k.s2("s_lshl_b32", sT2, sT2, 14)
        k.s2("s_or_b32", sKV, sKV, sT2)
    k.s2("s_lshl_b32", sRing, sGrp, 16)
    k.s2("s_add_u32", sM0K, sRing, sT1)
    k.s2("s_lshl_b32", sM0W, sW, 11)
    k.s2("s_add_u32", sM0W, sM0W, 32768)
    k.s2("s_mul_i32", sM0X, sW, 1536)
    k.s2("s_add_u32", sM0X, sM0X, XS0)
    k.s1("s_mov_b32", sC, hex(f32bits(CSCALE)))
    k.s1("s_mov_b32", sThr, hex(f32bits(opt.get("thr", THRESH))))

    LANE = "v0"
    T0, T1, T2, T3 = "v1", "v2", "v3", "v4"
    vG, vQ, L16 = "v5", "v6", "v7"
    KD = [8, 9, 10, 11]
    KR = [12, 13, 14, 15]
    VD = [16, 17]
    ST = 18
    MC = [18, 19, 20]
    LS = [21, 22, 23]
    VR = [24, 25, 26, 27, 28, 29, 30, 31]
    FR, QF, S0, SP = 32, 64, 112, 136
    ACC = 64
    QA = [32, 112]
    WQD = [24, 25]
    XD = [26, 27]
    WQR = [28, 29, 30, 60]
    XR = [18, 19]
    QW, QR = 20, 21
    STG = 160

    def preg(c):
        return 148 if c == 0 else 160 + 12 * (c - 1)

    def oreg(j, qt):
        o = j * 3 + qt
        return QF + 4 * o if o < 21 else 244 + 4 * (o - 21)

    k.v2("v_lshrrev_b32", vG, 4, LANE)
    k.v2("v_and_b32", vQ, 15, LANE)
    k.v2("v_lshlrev_b32", L16, 4, LANE)
    k.v2("v_lshrrev_b32", T0, 5, LANE)
    k.s2("s_lshl_b32", sT0, sKh, 2)
    k.v2("v_add_u32", T1, sT0, T0)
    k.s2("s_lshl_b32", sT0, sW, 2)
    k.v2("v_add_u32", T0, sT0, T0)
    k.v2("v_lshlrev_b32", T0, 13, T0)
    k.s2("s_lshl_b32", sT0, sHp, 9)
    k.v2("v_add_u32", T0, sT0, T0)
    k.v3("v_bfe_u32", T2, LANE, 4, 1)
    k.v3("v_lshl_add_u32", T0, T2, 8, T0)
    for i in range(2):
        k.v2("v_add_u32", T2, 2 * i, T1)
        k.v2("v_lshlrev_b32", T2, 1, T2)
        k.v2("v_xor_b32", T2, T2, vQ)
        k.v3("v_lshl_add_u32", v(WQD[i]), T2, 4, T0)
        if i:
            k.v2("v_add_u32", v(WQD[i]), 2 * 8192 - 1024, v(WQD[i]))
    k.s2("s_mul_i32", sT0, sW, 12)
    k.v2("v_lshrrev_b32", T0, 3, LANE)
    k.v2("v_add_u32", T0, sT0, T0)
    k.v2("v_and_b32", T3, 7, LANE)
    k.s2("s_mul_i32", sT1, sB, 96)
    k.s1("s_mov_b32", sT2, 1280)
    for i in range(2):
        if i:
            k.v2("v_add_u32", T0, 8, T0)
        k.v3("v_bfe_u32", T1, T0, 1, 3)
        k.v2("v_xor_b32", T1, T1, T3)
        k.v2("v_add_u32", T2, sT1, T0)
        k.v2("v_mul_lo_u32", T2, T2, sT2)
        k.v3("v_lshl_add_u32", v(XD[i]), T1, 4, T2)
        if i:
            k.v2("v_subrev_u32", v(XD[i]), 1024, v(XD[i]))

    k.salu("s_waitcnt lgkmcnt(0)")
    build_srd(k, SX, 32, X_BYTES)
    build_srd(k, SWQ, 38, W_BYTES)
    build_srd(k, SWS, 46, WS_BYTES)
    k.s1("s_mov_b32", sKX, sKW)
    k.stamp()

    def run(ps):
        for p in ps:
            p()

    def weave(prim, *secs):
        secs = [(list(l), st, sd, per) for (l, st, sd, per) in secs]
        for i, p in enumerate(prim):
            p()
            for (l, st, sd, per) in secs:
                if i >= st and (i - st) % sd == 0:
                    for _ in range(per):
                        if l:
                            l.pop(0)()
        for (l, st, sd, per) in secs:
            run(l)

    def wqs_off(pos):
        return (pos & 1) * 16384 + (pos >> 1) * 65536

    def setm0(base, off):
        if off:
            k.s2("s_add_u32", "m0", base, off)
        else:
            k.s1("s_mov_b32", "m0", base)

    def bump(ctr):
        k.s2("s_add_u32", ctr, ctr, 1)
        k.salu(f"s_cmp_eq_u32 {ctr}, 10")
        k.salu(f"s_cselect_b32 {ctr}, 0, {ctr}", wr=[ctr])

    def dma_wq(c):
        def p0():
            setm0(sM0W, wqs_off(c % 4))
            if c % 2 == 0:
                k.s2("s_lshl_b32", sWqOff, sKW, 19)
            else:
                k.s2("s_add_u32", sWqOff, sWqOff, 262144)
            k.vmem(f"buffer_load_dwordx4 {v(WQD[0])}, {sr(SWQ, 4)}, {sWqOff} offen lds",
                   rd=[v(WQD[0]), sWqOff], tag=("wq", c), dma=True)
            k.vmem(f"buffer_load_dwordx4 {v(WQD[1])}, {sr(SWQ, 4)}, {sWqOff} offen offset:1024 lds",
                   rd=[v(WQD[1]), sWqOff], tag=("wq", c), dma=True)
            if c % 2 == 1:
                bump(sKW)
        return [p0]

    def dma_x(j):
        def p0():
            setm0(sM0X, (j & 1) * 12288)
            k.s2("s_lshl_b32", sXOff, sKX, 7)
            k.vmem(f"buffer_load_dwordx4 {v(XD[0])}, {sr(SX, 4)}, {sXOff} offen lds",
                   rd=[v(XD[0]), sXOff], tag=("x", j), dma=True)
            k.salu("s_mov_b32 exec_hi, 0")
            k.vmem(f"buffer_load_dwordx4 {v(XD[1])}, {sr(SX, 4)}, {sXOff} offen offset:1024 lds",
                   rd=[v(XD[1]), sXOff], tag=("x", j), dma=True)
            k.salu("s_mov_b32 exec_hi, -1")
            bump(sKX)
        return [p0]

    run(dma_x(0) + dma_wq(0) + dma_wq(1))
    if CT == 1:
        code_touch(k, "K1", "K1_CODE_END", "v63", "v2", "v31", 512)
    build_srd(k, SK, 34, KV_BYTES)
    build_srd(k, SV, 36, KV_BYTES)
    build_srd(k, SWO, 40, W_BYTES)
    build_srd(k, SOUT, 42, OUT_BYTES)
    build_srd(k, SDBG, 44, 256)
    k.v2("v_xor_b32", T0, vQ, vG)
    k.v2("v_lshlrev_b32", T0, 4, T0)
    k.v3("v_lshl_add_u32", v(KD[0]), vG, 8, T0)
    for i in range(1, 4):
        k.v2("v_xor_b32", v(KD[i]), 64 * i, v(KD[0]))
    k.v2("v_lshlrev_b32", T0, 1, vG)
    k.v2("v_xor_b32", T0, T0, vQ)
    k.v2("v_lshlrev_b32", T0, 4, T0)
    k.v3("v_lshl_add_u32", v(VD[0]), vG, 8, T0)
    k.v2("v_xor_b32", v(VD[1]), 128, v(VD[0]))
    k.v3("v_bfe_u32", T0, LANE, 2, 2)
    k.v2("v_and_b32", T1, 1, vG)
    k.v3("v_lshl_add_u32", T1, T1, 2, T0)
    k.v3("v_lshl_add_u32", T2, vG, 3, T0)
    k.v2("v_lshlrev_b32", T2, 9, T2)
    k.v2("v_and_b32", T3, 3, LANE)
    k.v3("v_lshl_add_u32", T2, T3, 3, T2)
    k.s2("s_lshl_b32", sT0, sGrp, 8)
    k.s2("s_add_u32", sT0, sT0, 32768)
    k.v2("v_add_u32", T2, sT0, T2)
    k.s2("s_lshl_b32", sT0, sKh, 2)
    k.v2("v_xor_b32", T1, sT0, T1)
    for dt in range(4):
        k.v2("v_xor_b32", T3, dt, T1)
        k.v3("v_lshl_add_u32", v(WQR[dt]), T3, 5, T2)
    k.s2("s_mul_i32", sT0, sQh, 48 * 128)
    k.s2("s_add_u32", sT0, sT0, XS0)
    k.v2("v_lshlrev_b32", T0, 7, vQ)
    k.v2("v_add_u32", T0, sT0, T0)
    k.v2("v_lshrrev_b32", T1, 1, vQ)
    k.v2("v_xor_b32", T1, T1, vG)
    k.v3("v_lshl_add_u32", v(XR[0]), T1, 4, T0)
    k.v2("v_xor_b32", v(XR[1]), 64, v(XR[0]))
    k.s2("s_mul_i32", sT0, sQh, 12 * 1024)
    k.s2("s_add_u32", sT0, sT0, sRing)
    k.s2("s_add_u32", sT0, sT0, 32768)
    k.v2("v_add_u32", v(QR), sT0, L16)
    k.s2("s_lshl_b32", sT1, sKh, 11)
    k.s2("s_add_u32", sT0, sT0, sT1)
    k.v2("v_lshrrev_b32", T0, 1, vG)
    k.v2("v_lshlrev_b32", T0, 8, T0)
    k.v3("v_lshl_add_u32", T0, vQ, 4, T0)
    k.v2("v_and_b32", T1, 1, vG)
    k.v3("v_lshl_add_u32", T0, T1, 3, T0)
    k.v2("v_add_u32", v(QW), sT0, T0)
    k.s2("s_lshl_b32", sT0, sKh, 13)
    k.s2("s_add_u32", sT0, sT0, sRing)
    k.v2("v_xor_b32", T0, vG, vQ)
    k.v2("v_lshlrev_b32", T0, 4, T0)
    k.v3("v_lshl_add_u32", T0, vQ, 8, T0)
    k.v2("v_add_u32", v(KR[0]), sT0, T0)
    for ds_ in range(1, 4):
        k.v2("v_xor_b32", v(KR[ds_]), 64 * ds_, v(KR[0]))
    sRho = "s46"
    if opt.get("omap", 1) == 0:
        k.s2("s_lshr_b32", sT1, "s2", 3)
        k.s2("s_and_b32", sCb, sT1, 7)
        k.s2("s_lshr_b32", sT1, sT1, 3)
        k.s2("s_lshl_b32", sRho, sT1, 1)
        k.s2("s_add_u32", sRho, sRho, sCb)
        k.s2("s_bfe_u32", sT0, "s2", "0x20001")
        k.s2("s_lshl_b32", sT0, sT0, 2)
        k.s2("s_add_u32", sRb, sT0, sT1)
    else:
        k.s2("s_bfe_u32", sCb, "s2", "0x20003")
        k.s2("s_lshr_b32", sT1, "s2", 5)
        k.s2("s_lshl_b32", sRho, sCb, 1)
        k.s2("s_add_u32", sRho, sRho, sT1)
        k.s2("s_bfe_u32", sT0, "s2", "0x10001")
        k.s2("s_lshl_b32", sT0, sT0, 2)
        k.s2("s_add_u32", sCb, sCb, sT0)
        k.s2("s_bfe_u32", sT0, "s2", "0x10002")
        k.s2("s_lshl_b32", sT0, sT0, 3)
        k.s2("s_add_u32", sRb, sT0, sT1)
    k.s2("s_lshl_b32", sRb, sRb, 1)
    k.s2("s_and_b32", sT2, "s2", 1)
    k.s2("s_add_u32", sRb, sRb, sT2)
    k.s2("s_lshl_b32", sA, sT2, 3)
    k.s2("s_add_u32", sA, sA, sW)
    k.s2("s_lshl_b32", sA, sA, 3)
    k.s2("s_mul_i32", sBo, sA, 40)
    k.s2("s_mul_i32", sT0, sCb, 5)
    k.s2("s_add_u32", sBo, sBo, sT0)
    k.s2("s_lshl_b32", sBo, sBo, 10)
    k.s2("s_add_u32", sBo, sBo, WOT)
    k.s2("s_lshl_b32", sFl, sB, 4)
    k.s2("s_add_u32", sFl, sFl, sHp)
    k.s2("s_lshl_b32", sFl, sFl, 8)
    k.s2("s_add_u32", sFl, sFl, FLG)
    k.salu(f"s_cmp_eq_u32 {sW}, 0")
    k.salu(f"s_cselect_b32 {sFl}, {sFl}, {OOB}", wr=[sFl])

    sN0, sN1 = "s30", "s31"

    def flag_store(saddr, srd=SWS):
        k.v1("v_mov_b32", "v2", sN0)
        k.v1("v_mov_b32", "v3", sN1)
        k.v1("v_mov_b32", T0, 0)
        k.salu("s_mov_b64 exec, 1")
        k.vmem(f"buffer_store_dwordx2 v[2:3], {T0}, {sr(srd, 4)}, {saddr} offen sc1", rd=["v2", "v3", T0, saddr], tag="flag")
        k.salu("s_mov_b64 exec, -1")
        k.nop(2)

    k.salu("s_memrealtime s[30:31]")
    k.s2("s_or_b32", sT0, "s2", sW)
    k.salu(f"s_cmp_eq_u32 {sT0}, 0")
    k.salu(f"s_cselect_b32 {sT0}, 0, {OOB}", wr=[sT0])
    k.salu("s_waitcnt lgkmcnt(0)")
    k.s2("s_or_b32", sN1, sN1, "0x80000000")
    flag_store(sT0, SDBG)
    if opt.get("dly", 0) == 1:
        k.wait_vm("touch")
    if opt.get("dly", 0) == 2:
        k.wait_vm(("x", 0))
    if opt.get("dly", 0) == 3:
        k.wait_vm(("wq", 0))
    run(dma_x(1) + dma_wq(2) + dma_wq(3))
    split = len(k.lines)
    k.fence()
    if opt.get(f"prio{G}", 0):
        k.salu(f"s_setprio {opt.get(f'prio{G}')}")

    JIT = 0
    X5 = 0
    X5OFF = 131072 - G * 49152

    def slot_of(c):
        return c % 4 if c < 8 else (c - 9) % 5

    def slot_off(c):
        return X5OFF if slot_of(c) == 4 else slot_of(c) * 16384

    def dma_kv(c, staged=None):
        cc = c % 8

        def piece(i):
            def p():
                if staged is None:
                    setm0(sM0K, slot_off(c))
                if cc:
                    k.s2("s_xor_b32", sOff, sKV, cc * 16384)
                else:
                    k.s1("s_mov_b32", sOff, sKV)
                a, srd = (v(KD[i]), SK) if c < 8 else (v(VD[i & 1]), SV)
                if staged is None:
                    k.vmem(f"buffer_load_dwordx4 {a}, {sr(srd, 4)}, {sOff} offen offset:{i * 1024}{NT} lds",
                           rd=[a, sOff], tag=("kv", c), dma=True)
                else:
                    d = staged + 4 * i
                    k.vmem(f"buffer_load_dwordx4 {vr(d, 4)}, {a}, {sr(srd, 4)}, {sOff} offen offset:{i * 1024}{NT}",
                           wr=vs(d, 4), rd=[a, sOff], tag=("kv", c))
            return p
        return [piece(i) for i in range(4)]

    FOLD = opt.get("fold", 0)
    NM = [244, 248, 252]
    NSTG = 6 if JIT else opt.get("nstg", 5 if FOLD else 6)
    assert not (FOLD and NSTG > 5)
    sched = [opt.get(f"k{n}", d) for n, d in enumerate([7, 10, 13, 16, 19, 20, 22, 23])]
    issue = {}
    for n in range(2 + NSTG):
        issue.setdefault(sched[n], []).extend(dma_kv(n, None if n < 2 else STG + 16 * (n - 2)))

    WOL = 0
    WO_DMA, WO_DO, WO_SIG = opt.get("wodma", -1), opt.get("wodo", 3), opt.get("wosig", 7)
    assert WO_DO < sched[0] - 0

    def wo_dma():
        k.s2("s_lshr_b32", sT0, "s2", 1)
        k.s2("s_lshl_b32", sT0, sT0, 5)
        k.s2("s_lshl_b32", sT1, sW, 2)
        k.s2("s_add_u32", sT0, sT0, sT1)
        k.s2("s_mul_i32", sT0, sT0, 1280)
        k.s2("s_and_b32", sT2, "s2", 1)
        k.s2("s_mul_i32", sT2, sT2, 640)
        k.s2("s_add_u32", sT0, sT0, sT2)
        k.s2("s_mul_i32", sT1, sW, 4 * 640)
        if WOL:
            k.s2("s_add_u32", sT1, sT1, WOL)
        k.salu("s_mov_b32 exec_hi, 0xff")
        for i in range(4):
            k.s1("s_mov_b32", "m0", sT1)
            k.vmem(f"buffer_load_dwordx4 {L16}, {sr(SWO, 4)}, {sT0} offen lds", rd=[L16, sT0], tag="wo", dma=True)
            k.s2("s_add_u32", sT0, sT0, 1280)
            k.s2("s_add_u32", sT1, sT1, 640)
        k.salu("s_mov_b32 exec_hi, -1")

    WD = 144
    NWO = 3 if G == 0 else 2

    def wo_read():
        k.v3("v_bfe_u32", T0, LANE, 2, 2)
        k.v3("v_lshl_add_u32", T0, vG, 2, T0)
        k.v2("v_mul_u32_u24", T0, 640, T0)
        k.v2("v_and_b32", T1, 3, LANE)
        k.v3("v_lshl_add_u32", T0, T1, 3, T0)
        k.s2("s_lshl_b32", sT0, sW, 5)
        if WOL:
            k.s2("s_add_u32", sT0, sT0, WOL)
        k.v2("v_add_u32", T0, sT0, T0)
        for i in range(NWO):
            for u in range(2):
                d = WD + i * 4 + 2 * u
                k.ds(f"ds_read_b64_tr_b16 {vr(d, 2)}, {T0} offset:{u * 10240 + i * 256}",
                     wr=vs(d, 2), rd=[T0], tag="wor")

    def wo_store():
        k.s2("s_mul_i32", sT0, "s2", 20)
        k.s2("s_add_u32", sT0, sT0, sW)
        k.s2("s_lshl_b32", sT0, sT0, 10)
        k.s2("s_add_u32", sT0, sT0, WOT)
        for i in range(NWO):
            k.vmem(f"buffer_store_dwordx4 {vr(WD + 4 * i, 4)}, {L16}, {sr(SWS, 4)}, {sT0} offen sc1",
                   rd=vs(WD + 4 * i, 4) + [L16, sT0], tag="wost", store_data=vs(WD + 4 * i, 4))
            if i < NWO - 1:
                k.s2("s_add_u32", sT0, sT0, 8192)

    def w_signal():
        k.s2("s_lshl_b32", sT2, "s2", 6)
        k.s2("s_add_u32", sT2, sT2, WFL)
        k.salu(f"s_cmp_eq_u32 {sW}, 0")
        k.salu(f"s_cselect_b32 {sT2}, {sT2}, {OOB}", wr=[sT2])
        flag_store(sT2)

    def tlb_touch():
        k.s2("s_lshl_b32", sT0, sB, 1)
        k.s2("s_add_u32", sT0, sT0, sQh)
        k.s2("s_lshl_b32", sT0, sT0, 7)
        k.s2("s_lshl_b32", sT1, sHead, 2)
        k.s2("s_add_u32", sT0, sT0, sT1)
        k.s2("s_lshl_b32", sT1, sKh, 1)
        k.s2("s_add_u32", sT0, sT0, sT1)
        k.s2("s_mul_i32", sT0, sT0, 3072)
        k.v1("v_mov_b32", T0, 0)
        k.vmem(f"buffer_load_dword v156, {T0}, {sr(SWS, 4)}, {sT0} offen sc1", wr=["v156"], rd=[T0, sT0], tag="tlb")
        k.s1("s_mov_b32", sT1, FLG + (1 << 19))
        k.vmem(f"buffer_load_dword v157, {T0}, {sr(SWS, 4)}, {sT1} offen sc1", wr=["v157"], rd=[T0, sT1], tag="tlb")
        k.s2("s_mul_i32", sT2, sRb, 48 * 1280)
        k.vmem(f"buffer_load_dword v158, {T0}, {sr(SOUT, 4)}, {sT2} offen sc1", wr=["v158"], rd=[T0, sT2], tag="tlb")

    NV = 62

    def nonce_load():
        k.v1("v_mov_b32", v(61), 0)
        k.vmem(f"buffer_load_dwordx2 {vr(NV, 2)}, v61, {sr(SDBG, 4)}, 0 offen sc1", wr=vs(NV, 2), rd=["v61"], tag="nonce")

    def nonce_check():
        name = f"K1_N{sfx}"
        k.wait_vm("nonce")
        k.s1("s_mov_b32", sT1, 0)
        k.label(f"{name}_CMP")
        k._emit(f"v_readfirstlane_b32 {sN0}, v{NV}")
        k._emit(f"v_readfirstlane_b32 {sN1}, v{NV + 1}")
        k._emit(f"s_add_u32 {sT1}, {sT1}, 1")
        k._emit(f"s_cmp_lg_u32 {sN1}, 0")
        k._emit(f"s_cbranch_scc1 {name}_OK")
        k._emit(f"s_cmp_ge_u32 {sT1}, 0x40000")
        k._emit(f"s_cbranch_scc1 {name}_OK")
        k._emit("s_sleep 4")
        k._emit(f"buffer_load_dwordx2 {vr(NV, 2)}, v61, {sr(SDBG, 4)}, 0 offen sc1")
        k._emit("s_waitcnt vmcnt(0)")
        k._emit(f"s_branch {name}_CMP")
        k.label(f"{name}_OK")
        k.nop(4)

    def q_reads(c):
        ops = []
        A = QA[c & 1]
        B = A + 16
        for qt in range(3):
            ops.append(lambda qt=qt: k.ds(
                f"ds_read_b128 {vr(B + 4 * qt, 4)}, {v(XR[c & 1])} offset:{qt * 2048 + ((c // 2) & 1) * 12288}",
                wr=vs(B + 4 * qt, 4), rd=[v(XR[c & 1])], tag="qf"))
        for dt in range(4):
            def rd2(dt=dt):
                if c > 0 and c % 2 == 0:
                    k.v2("v_xor_b32", v(WQR[dt]), "0x10000", v(WQR[dt]))
                for u in range(2):
                    k.ds(f"ds_read_b64_tr_b16 {vr(A + 4 * dt + 2 * u, 2)}, {v(WQR[dt])} offset:{u * 2048 + (c & 1) * 16384}",
                         wr=vs(A + 4 * dt + 2 * u, 2), rd=[v(WQR[dt])], tag="qf")
            ops.append(rd2)
        return ops

    if WO_DMA == -1:
        wo_dma()
    run(issue.get(-1, []))
    k.wait_vm(("x", 0))
    k.wait_vm(("wq", 0))
    k.barrier()
    k.stamp()
    run(q_reads(0))
    for c in range(20):
        k.comment(f"---- qproj kstep {c}")
        if c + 1 < 20:
            k.wait_vm(("x", (c + 1) // 2))
            k.wait_vm(("wq", c + 1))
        if c == WO_DO:
            k.wait_vm("wo")
        if c == WO_SIG - 1:
            nonce_check()
        if c == WO_SIG:
            k.wait_vm("wost")
        k.wait_lg0()
        k.barrier()
        if c in ((3, 7, 11, 15) if not opt.get("dbg15") else (7, 15)):
            k.stamp()
        pieces = []
        if c % 2 == 1 and (c + 1) // 2 + 1 < 10:
            pieces += dma_x((c + 1) // 2 + 1)
        if c + 4 < 20:
            pieces += dma_wq(c + 4)
        if c == WO_DMA:
            pieces.append(wo_dma)
        if c == WO_DO + 1:
            pieces.append(wo_store)
        if c == WO_SIG - 4:
            pieces.insert(0, nonce_load)
        if c == opt.get("tlb", -1):
            pieces.append(tlb_touch)
        if c == WO_SIG and G == 0:
            pieces.append(w_signal)
        pieces += issue.get(c, [])
        A = QA[c & 1]
        B = A + 16
        mf = []
        for dt in range(4):
            for qt in range(3):
                d = ACC + (dt * 3 + qt) * 4
                mf.append(lambda d=d, dt=dt, qt=qt: k.mfma(d, A + 4 * dt, B + 4 * qt, d if c else None))
        rds = q_reads(c + 1) if c + 1 < 20 else []
        if c == WO_DO:
            rds.append(wo_read)
        weave(mf, (rds, 0, 1, 1), (pieces, opt.get("qdma0", 1) if G == 0 else opt.get("qdma1", 7), 3, 1))
    k.stamp()
    TQ = 32
    for dt in range(4):
        for qt in range(3):
            d = ACC + (dt * 3 + qt) * 4
            t = TQ + (dt * 3 + qt) * 2
            if FOLD:
                for r in range(4):
                    k.v2("v_mul_f32", v(d + r), sC, v(d + r))
            k.v2("v_cvt_pk_bf16_f32", v(t), v(d), v(d + 1))
            k.v2("v_cvt_pk_bf16_f32", v(t + 1), v(d + 2), v(d + 3))
            k.ds(f"ds_write_b64 {v(QW)}, {vr(t, 2)} offset:{qt * 4096 + dt * 512}", rd=[v(QW)] + vs(t, 2), tag="qw")
    k.v3("v_bfe_u32", T0, LANE, 2, 2)
    k.v2("v_and_b32", T1, 1, vG)
    k.v3("v_lshl_add_u32", T1, T1, 2, T0)
    k.s2("s_lshl_b32", sT0, sKh, 2)
    k.s2("s_xor_b32", sT0, sT0, 4)
    k.v2("v_xor_b32", T1, sT0, T1)
    k.v3("v_lshl_add_u32", T2, vG, 2, T0)
    k.v2("v_lshlrev_b32", T2, 8, T2)
    k.v2("v_and_b32", T3, 3, LANE)
    k.v3("v_lshl_add_u32", T2, T3, 3, T2)
    k.s2("s_lshl_b32", sT0, sKh, 13)
    k.s2("s_add_u32", sT0, sT0, sRing)
    k.v2("v_add_u32", T2, sT0, T2)
    for j in range(8):
        k.v2("v_xor_b32", T3, j, T1)
        k.v3("v_lshl_add_u32", v(VR[j]), T3, 5, T2)

    def k_reads(c):
        slot = slot_of(c)
        ops = []
        for t in range(2):
            for ds_ in range(4):
                d = FR + (t * 4 + ds_) * 4
                ops.append(lambda d=d, t=t, ds_=ds_: k.ds(
                    f"ds_read_b128 {vr(d, 4)}, {v(KR[ds_])} offset:{slot * 16384 + t * 4096}",
                    wr=vs(d, 4), rd=[v(KR[ds_])], tag=("kf", t, ds_)))
        return ops

    def v_reads(c, half):
        x5 = slot_of(c) == 4
        back = c > 8 and slot_of(c - 1) == 4
        slot = 0 if x5 else slot_of(c)
        ops = []
        for j in range(4 * half, 4 * half + 4):
            for u in range(2):
                d = FR + j * 4 + 2 * u

                def op(d=d, j=j, u=u):
                    if x5 and u == 0:
                        k.v2("v_add_u32", v(VR[j]), X5OFF, v(VR[j]))
                    if back and u == 0:
                        k.v2("v_subrev_u32", v(VR[j]), X5OFF, v(VR[j]))
                    k.ds(f"ds_read_b64_tr_b16 {vr(d, 2)}, {v(VR[j])} offset:{slot * 16384 + u * 4096}",
                         wr=vs(d, 2), rd=[v(VR[j])], tag=("vf", j))
                ops.append(op)
        return ops

    def sreg(qt, t):
        return S0 + (qt * 2 + t) * 4

    def xlane3(op, rs, tmps):
        for sw in ("v_permlane32_swap_b32", "v_permlane16_swap_b32"):
            for r, t in zip(rs, tmps):
                k.v1("v_mov_b32", v(t), v(r))
            for r, t in zip(rs, tmps):
                k.valu(f"{sw} {v(r)}, {v(t)}", wr=[v(r), v(t)], rd=[v(r), v(t)], perm=True)
            for r, t in zip(rs, tmps):
                k.v2(op, v(r), v(r), v(t))

    def max8x3(dsts):
        for qt in range(3):
            b = sreg(qt, 0)
            k.v3("v_max3_f32", v(dsts[qt]), v(b), v(b + 1), v(b + 2))
        for i in (3, 5):
            for qt in range(3):
                b = sreg(qt, 0)
                k.v3("v_max3_f32", v(dsts[qt]), v(dsts[qt]), v(b + i), v(b + i + 1))
        for qt in range(3):
            b = sreg(qt, 0)
            k.v2("v_max_f32", v(dsts[qt]), v(dsts[qt]), v(b + 7))

    sites = []

    def s_mfma(c):
        ops = []
        for t in range(2):
            for ds_ in range(4):
                for qt in range(3):
                    def op(t=t, ds_=ds_, qt=qt):
                        if qt == 0:
                            k.wait_lg(("kf", t, ds_))
                        d = sreg(qt, t)
                        k.mfma(d, FR + (t * 4 + ds_) * 4, QF + (qt * 4 + ds_) * 4,
                               d if ds_ else (NM[qt] if (FOLD and c > 0) else None))
                    ops.append(op)
        return ops

    def softmax(c):
        ops = []

        def fm(r0):
            if FOLD and c > 0:
                return
            for r in range(r0, r0 + 4):
                for qt in range(3):
                    x = sreg(qt, 0) + r
                    if FOLD:
                        k.v2("v_sub_f32", v(x), v(x), v(MC[qt]))
                    else:
                        k.v3("v_fma_f32", v(x), v(x), sC, f"-{v(MC[qt])}")

        def head():
            k.comment(f"softmax {c}")
            if c == 0:
                max8x3(MC)
                xlane3("v_max_f32", MC, [SP, SP + 1, SP + 2])
                for qt in range(3):
                    if FOLD:
                        for r in range(4):
                            k.v2("v_sub_f32", v(NM[qt] + r), 0, v(MC[qt]))
                    else:
                        k.v2("v_mul_f32", v(MC[qt]), sC, v(MC[qt]))
            fm(0)

        def check():
            if c > 0:
                max8x3([SP, SP + 1, SP + 2])
                k.v3("v_max3_f32", v(SP + 3), v(SP), v(SP + 1), v(SP + 2))
                k.valu(f"v_cmp_lt_f32 vcc, {sThr}, {v(SP + 3)}", wr=["vcc"], rd=[sThr, v(SP + 3)])
                k.s1("s_mov_b32", sRet, c)
                k.nop(4)
                k.salu(f"s_cbranch_vccnz K1_SLOW{sfx}")
                k.label(f"K1_RET{c}{sfx}")
                sites.append(c)
                k.fence()
        ops += [head, lambda: fm(4), check]

        def body(r):
            if r < 8:
                for qt in range(3):
                    x = sreg(qt, 0) + r
                    k.v1("v_exp_f32", v(x), v(x), trans=True)
            if r >= 1:
                rr = r - 1
                for qt in range(3):
                    b = sreg(qt, 0)
                    if c == 0 and rr == 0:
                        continue
                    if c == 0 and rr == 1:
                        k.v2("v_add_f32", v(LS[qt]), v(b), v(b + 1))
                    else:
                        k.v2("v_add_f32", v(LS[qt]), v(LS[qt]), v(b + rr))
                if rr % 2 == 1:
                    for qt in range(3):
                        b = sreg(qt, 0)
                        k.v2("v_cvt_pk_bf16_f32", v(preg(c) + qt * 4 + rr // 2), v(b + rr - 1), v(b + rr))
        for r in range(9):
            ops.append(lambda r=r: body(r))
        return ops

    def pv_mfma(c, half):
        cv = c - 8
        ops = []
        for j in range(4 * half, 4 * half + 4):
            for qt in range(3):
                def op(j=j, qt=qt):
                    if qt == 0:
                        k.wait_lg(("vf", j))
                    d = oreg(j, qt)
                    k.mfma(d, FR + j * 4, preg(cv) + qt * 4, d if cv else None)
                ops.append(op)
        return ops

    def stage_out(n):
        k.wait_vm(("kv", n))
        k.s2("s_add_u32", sT2, sM0K, slot_of(n) * 16384)
        k.v2("v_add_u32", T3, sT2, L16)
        for i in range(4):
            d = STG + 16 * (n - 2) + 4 * i
            k.ds(f"ds_write_b128 {T3}, {vr(d, 4)} offset:{i * 1024}", rd=[T3] + vs(d, 4), tag="stg")

    so_at = {n: (1 if n < 4 else n - 2) for n in range(2, 2 + NSTG)}
    dma_at = {n: max(1, n - 3) for n in range(2 + NSTG, 8)}
    dma_at[8] = opt.get("d8", 4)
    dma_at.update({n: n - 4 for n in range(9, 16)})

    OF = ["", " sc1", " nt", " sc0 sc1"][opt.get("of", 1)]
    OSF = [" sc1", " sc0 sc1", " sc1 nt", " sc0 sc1 nt"][opt.get("osf", 0)]
    BF = ["", " sc1", " sc0", " nt"][opt.get("bf", 1)]
    AF = ["", " sc1", " sc0", " nt"][opt.get("af", 1)]
    BSL = [148, 168, 188, 68, 96, 116, 208, 228]
    AR = [88, 92, 136, 140, 144, 248, 252]
    OACC = 8
    L16B = "v8"
    sOB, sOA = "s65", "s66"

    def rot_off(dst, j, base, stride):
        k.s2("s_add_u32", dst, sRho, j)
        k.s2("s_and_b32", dst, dst, 7)
        k.s2("s_mul_i32", dst, dst, stride)
        k.s2("s_add_u32", dst, dst, base)

    def loadB(j):
        ops = []
        for nt in range(5):
            def op(nt=nt):
                if nt == 0:
                    rot_off(sOB, j, sBo, 40960)
                a, o = (L16, nt * 1024) if nt < 4 else (L16B, 0)
                d = BSL[j] + 4 * nt
                k.vmem(f"buffer_load_dwordx4 {vr(d, 4)}, {a}, {sr(SWS, 4)}, {sOB} offen offset:{o}{BF}",
                       wr=vs(d, 4), rd=[a, sOB], tag=("b", j))
            ops.append(op)
        return ops

    WCHK = opt.get("wchk", 11)
    EARLYB = 1
    EB = [opt.get("eb0", 15), opt.get("eb1", 15), opt.get("eb2", 15)]

    def flag_load(soff, imm, tag):
        k.vmem(f"buffer_load_dwordx2 v[2:3], {T3}, {sr(SWS, 4)}, {soff} offen offset:{imm} sc1", wr=["v2", "v3"],
               rd=[T3] + ([soff] if isinstance(soff, str) else []), tag=tag)

    def flag_check(soff, imm, name, tag):
        k.wait_vm(tag)
        k.s1("s_mov_b32", sT1, 0)
        k.label(f"{name}_CMP")
        k._emit(f"v_cmp_ne_u64 vcc, s[30:31], v[2:3]")
        k._emit(f"s_add_u32 {sT1}, {sT1}, 1")
        k._emit("s_nop 3")
        k._emit(f"s_cbranch_vccz {name}_OK")
        k._emit(f"s_cmp_ge_u32 {sT1}, 0x40000")
        k._emit(f"s_cbranch_scc1 {name}_OK")
        k._emit(f"s_sleep {opt.get('slp', 4)}")
        k._emit(f"buffer_load_dwordx2 v[2:3], {T3}, {sr(SWS, 4)}, {soff} offen offset:{imm} sc1")
        k._emit("s_waitcnt vmcnt(0)")
        k._emit(f"s_branch {name}_CMP")
        k.label(f"{name}_OK")

    sWf = "s45"

    def sync(c):
        if opt.get("dbg15") and c == 15:
            k.stamp()
        if c < 16 and not (2 <= c < 2 + NSTG):
            k.wait_vm(("kv", c))
        if opt.get("dbg15") and c == 15:
            k.stamp()
        if c == WCHK:
            flag_check(sWf, 0, f"K1_W{sfx}", "wp")
        k.wait_lg0()
        k.barrier()
        k.stamp()
        if c == WCHK - 3:
            k.v2("v_and_b32", T3, 7, LANE)
            k.v2("v_lshlrev_b32", T3, 7, T3)
            k.s2("s_lshl_b32", sWf, sA, 7)
            k.s2("s_lshr_b32", sT0, sCb, 2)
            k.s2("s_lshl_b32", sT0, sT0, 6)
            k.s2("s_add_u32", sWf, sWf, sT0)
            k.s2("s_add_u32", sWf, sWf, WFL)
            flag_load(sWf, 0, "wp")

    def scr_addr(swl):
        k.s2("s_add_u32", sT0, swl, 1)
        k.s2("s_lshl_b32", sT0, sT0, 14)
        k.salu(f"s_cmp_eq_u32 {swl}, 0")
        k.salu(f"s_cselect_b32 {sT0}, 0, {sT0}", wr=[sT0])
        k.salu(f"s_cmp_eq_u32 {swl}, 3")
        k.salu(f"s_cselect_b32 {sT0}, {X5OFF}, {sT0}", wr=[sT0])
        if G:
            k.s2("s_add_u32", sT0, sT0, G * 65536)
        k.v2("v_add_u32", T1, sT0, L16)

    for c in range(17):
        k.comment(f"---- interval {c}")
        if c < 16:
            sync(c)
        so = [(lambda n=n: stage_out(n)) for n in sorted(so_at) if so_at[n] == c]
        dm = list(issue.get(20 + c, []))
        for n in sorted(dma_at):
            if dma_at[n] == c:
                dm += dma_kv(n)
        if c == 0:
            for ds_ in range(4):
                for qt in range(3):
                    d = QF + (qt * 4 + ds_) * 4
                    k.ds(f"ds_read_b128 {vr(d, 4)}, {v(QR)} offset:{(qt * 4 + ds_) * 1024}",
                         wr=vs(d, 4), rd=[v(QR)], tag="qr")
            run(k_reads(0))
            run(dm)
            if G == 0:
                run(s_mfma(0))
        elif c <= 8:
            rds = k_reads(c) if c < 8 else v_reads(8, 0)
            if G == 1:
                weave(s_mfma(c - 1), (so, 2, 6, 1))
            else:
                run(so)
            weave(softmax(c - 1), (rds, 0, 1, 2), (dm, 3, 1, 1))
            if c < 8:
                if G == 0:
                    run(s_mfma(c))
            else:
                weave(pv_mfma(8, 0), (v_reads(8, 1), 0, 1, 1))
        elif c < 16:
            if c == 12:
                xlane3("v_add_f32", LS, [1, 2, 3])
                k.s2("s_lshl_b32", sT0, sWl, 9)
                k.s2("s_add_u32", sT0, sT0, G * 65536 + 32768 + 12288)
                k.v3("v_lshl_add_u32", T3, vQ, 5, sT0)
                k.ds(f"ds_write_b128 {T3}, {vr(ST, 4)}", rd=[T3] + vs(ST, 4), tag="mw")
                k.ds(f"ds_write_b64 {T3}, {vr(ST + 4, 2)} offset:16", rd=[T3] + vs(ST + 4, 2), tag="mw")
            if c == 13:
                k.s2("s_lshl_b32", sT0, sWl, 9)
                k.s2("s_xor_b32", sT0, sT0, 1024)
                k.s2("s_add_u32", sT0, sT0, G * 65536 + 32768 + 12288)
                k.v3("v_lshl_add_u32", T3, vQ, 5, sT0)
                k.ds(f"ds_read_b128 {vr(148, 4)}, {T3}", wr=vs(148, 4), rd=[T3], tag="ps")
                k.ds(f"ds_read_b64 {vr(152, 2)}, {T3} offset:16", wr=vs(152, 2), rd=[T3], tag="ps")
            if c == 14:
                PS, MM, R3 = 148, [156, 157, 158], range(3)
                for qt in R3:
                    k.v2("v_max_f32", v(MM[qt]), v(MC[qt]), v(PS + qt))
                for qt in R3:
                    k.v2("v_sub_f32", v(MC[qt]), v(MC[qt]), v(MM[qt]))
                    k.v2("v_sub_f32", v(PS + qt), v(PS + qt), v(MM[qt]))
                for qt in R3:
                    k.v1("v_exp_f32", v(MC[qt]), v(MC[qt]), trans=True)
                    k.v1("v_exp_f32", v(PS + qt), v(PS + qt), trans=True)
                for qt in R3:
                    k.v2("v_mul_f32", v(MM[qt]), v(MC[qt]), v(LS[qt]))
                for qt in R3:
                    k.v3("v_fma_f32", v(MM[qt]), v(PS + qt), v(PS + 3 + qt), v(MM[qt]))
                for qt in R3:
                    k.v1("v_rcp_f32", v(MM[qt]), v(MM[qt]), trans=True)
                for qt in R3:
                    k.v2("v_mul_f32", v(MC[qt]), v(MC[qt]), v(MM[qt]))
                    k.v2("v_mul_f32", v(LS[qt]), v(PS + qt), v(MM[qt]))
            if c == 9:
                k.v2("v_add_u32", L16B, 4096, L16)
            if EARLYB:
                for jb, cb_ in enumerate(EB):
                    if cb_ == c:
                        dm = dm + loadB(jb)
            d0, d1 = (dm, []) if G == 0 else ([], dm)
            if len(dm) > 4:
                d0, d1 = dm[:len(dm) // 2], dm[len(dm) // 2:]
            weave(pv_mfma(c - 1, 1), (v_reads(c, 0), 0, 1, 1), (d0, 1, 2, 1))
            weave(pv_mfma(c, 0), (v_reads(c, 1), 0, 1, 1), (d1, 1, 2, 1))
        else:
            scr_addr(sWl)
            wr_ops = []
            for j in range(4):
                for qt in range(3):
                    wr_ops.append(lambda j=j, qt=qt: k.ds(
                        f"ds_write_b128 {T1}, {vr(oreg(j, qt), 4)} offset:{(j * 3 + qt) * 1024}",
                        rd=[T1] + vs(oreg(j, qt), 4), tag="mw"))
            k.wait_lg0()
            weave(pv_mfma(15, 1), (wr_ops, 0, 1, 1))
    k.stamp()
    k.wait_lg0()
    k.barrier()
    k.s2("s_xor_b32", sT1, sWl, 2)
    scr_addr(sT1)
    for j in range(4):
        for qt in range(3):
            d = oreg(j, qt)
            k.ds(f"ds_read_b128 {vr(d, 4)}, {T1} offset:{(j * 3 + qt) * 1024}", wr=vs(d, 4), rd=[T1], tag=("po", j))
    for jb, cb_ in enumerate(EB):
        if cb_ == 16:
            run(loadB(jb))
    FO, FP = MC, LS
    k.s2("s_lshl_b32", sT0, sB, 1)
    k.s2("s_add_u32", sT0, sT0, sQh)
    k.s2("s_lshl_b32", sT0, sT0, 7)
    k.s2("s_lshl_b32", sT1, sHead, 2)
    k.s2("s_add_u32", sT0, sT0, sT1)
    k.s2("s_lshl_b32", sT1, sKh, 1)
    k.s2("s_add_u32", sT0, sT0, sT1)
    k.s2("s_mul_i32", sT0, sT0, 3072)
    if OWS:
        k.s2("s_add_u32", sT0, sT0, OWS)
    k.s2("s_add_u32", sT1, sT0, 3072)
    OD = 208
    for jj in range(2):
        for e in range(2):
            j = 2 * jj + e
            for qt in range(3):
                d = oreg(4 + j, qt)
                for r in range(4):
                    k.v2("v_mul_f32", v(d + r), v(d + r), v(FO[qt]))
            k.wait_lg(("po", j))
            for qt in range(3):
                d = oreg(4 + j, qt)
                p = oreg(j, qt)
                for r in range(4):
                    k.valu(f"v_fmac_f32 {v(d + r)}, {v(p + r)}, {v(FP[qt])}", wr=[v(d + r)],
                           rd=[v(d + r), v(p + r), v(FP[qt])])
                od = OD + (jj * 3 + qt) * 4 + 2 * e
                k.v2("v_cvt_pk_bf16_f32", v(od), v(d), v(d + 1))
                k.v2("v_cvt_pk_bf16_f32", v(od + 1), v(d + 2), v(d + 3))
        for qt in range(3):
            od = OD + (jj * 3 + qt) * 4
            so = sT1 if jj else sT0
            k.vmem(f"buffer_store_dwordx4 {vr(od, 4)}, {L16}, {sr(SWS, 4)}, {so} offen offset:{qt * 1024}{OSF}",
                   rd=vs(od, 4) + [L16, so], tag="ost", store_data=vs(od, 4))
    k.salu("s_branch K1_TAIL")
    mark_tail = len(k.lines)

    k.label("K1_TAIL")
    k.fence()
    rest = [j for j in range(8) if not (j < 3 and EB[j] < 17)]
    for j in rest[:opt.get("npre", 3)]:
        run(loadB(j))
    k.wait_vm("ost")
    k.barrier()
    k.stamp()
    flag_store(sFl)
    sA1, sA2, sPo, sPf = "s60", "s61", "s62", "s63"
    k.s2("s_lshr_b32", sFl, sRb, 1)
    k.s2("s_lshl_b32", sFl, sFl, 12)
    k.s2("s_lshl_b32", sT0, sA, 5)
    k.s2("s_add_u32", sFl, sFl, sT0)
    k.s2("s_add_u32", sFl, sFl, FLG)
    k.v1("v_mov_b32", T3, 0)
    late = rest[opt.get("npre", 3):]
    nf = opt.get("fpos", 0)
    for j in late[:nf]:
        run(loadB(j))
    flag_load(sFl, 0, "f0")
    for j in late[nf:]:
        run(loadB(j))
    k.s2("s_lshl_b32", sA2, sRb, 7)
    k.s2("s_add_u32", sA2, sA2, sA)
    k.s2("s_xor_b32", sA1, sA2, 128)
    k.s2("s_mul_i32", sA1, sA1, 3072)
    k.s2("s_mul_i32", sA2, sA2, 3072)
    if OWS:
        k.s2("s_add_u32", sA1, sA1, OWS)
        k.s2("s_add_u32", sA2, sA2, OWS)
    k.s2("s_lshl_b32", sPo, "s2", 4)
    k.s2("s_add_u32", sPo, sPo, sW)
    k.s2("s_lshl_b32", sPo, sPo, 10)
    k.s2("s_add_u32", sPo, sPo, PART)
    k.s2("s_lshl_b32", sPf, "s2", 3)
    k.s2("s_add_u32", sPf, sPf, sW)
    k.s2("s_lshl_b32", sPf, sPf, 6)
    k.s2("s_add_u32", sPf, sPf, PFL)
    flag_check(sFl, 0, "K1_F0", "f0")
    k.stamp()

    def loadA(f):
        ps, j, mt = f // 24, (f % 24) // 3, f % 3
        if mt == 0:
            rot_off(sOA, j, sA2 if ps else sA1, 3072)
        d = AR[f % 7]
        k.vmem(f"buffer_load_dwordx4 {vr(d, 4)}, {L16}, {sr(SWS, 4)}, {sOA} offen offset:{mt * 1024}{AF}",
               wr=vs(d, 4), rd=[L16, sOA], tag=("a", f))

    LW = "v0"

    def acc_to_lds():
        for t in range(15):
            k.ds(f"ds_write_b128 {LW}, {vr(OACC + 4 * t, 4)} offset:{t * 1024}", rd=[LW] + vs(OACC + 4 * t, 4), tag="w")

    def gather(i, RB):
        k.s2("s_lshl_b32", sT0, sW, 10)
        k.s2("s_add_u32", sT0, sT0, i * 8192)
        k.v2("v_add_u32", T0, sT0, L16)
        k.v2("v_add_u32", T1, 65536, T0)
        for s_ in range(8):
            d = RB + s_ * 4
            k.ds(f"ds_read_b128 {vr(d, 4)}, {T0 if s_ < 4 else T1} offset:{(s_ % 4) * 16384}", wr=vs(d, 4),
                 rd=[T0 if s_ < 4 else T1], tag=("r", i))

    def tree(RB):
        for step in (16, 8, 4):
            for o in range(0, step):
                k.v2("v_add_f32", v(RB + o), v(RB + o), v(RB + o + step))

    k.s2("s_lshl_b32", sT0, sW, 14)
    k.v2("v_add_u32", LW, sT0, L16)
    for f in range(7):
        loadA(f)
    R1 = opt.get("r1", 2)
    for f in range(48):
        ps, j, mt = f // 24, (f % 24) // 3, f % 3
        if f == 24:
            k.stamp()
            acc_to_lds()
        if ps == 1 and mt == 0 and j == R1:
            k.comment("reduce pass-1 partials and hand them to the partner")
            k.wait_lg0()
            k.barrier()
            for i in range(2):
                RB = 148
                gather(i, RB)
                k.wait_lg(("r", i))
                tree(RB)
                d = RB + 32 + 4 * i
                for r in range(4):
                    k.v1("v_mov_b32", v(d + r), v(RB + r))
                so = sPo
                if i:
                    k.s2("s_add_u32", sT2, sPo, 8192)
                    so = sT2
                k.vmem(f"buffer_store_dwordx4 {vr(d, 4)}, {L16}, {sr(SWS, 4)}, {so} offen sc1",
                       rd=vs(d, 4) + [L16, so], tag="pst", store_data=vs(d, 4))
            k.stamp()
        if ps == 1 and mt == 0 and j == R1 + 3:
            k.wait_vm("pst")
            flag_store(sPf)
            k.barrier()
        k.wait_vm(("a", f))
        if ps == 0 and mt == 0:
            k.wait_vm(("b", j))
        for nt in range(5):
            d = OACC + (nt * 3 + mt) * 4
            k.mfma(d, BSL[j] + 4 * nt, AR[f % 7], d if j else None)
        if f + 7 < 48:
            loadA(f + 7)
    k.stamp()
    k.s2("s_xor_b32", sPf, sPf, 512)
    k.s2("s_xor_b32", sPo, sPo, 16384)
    k.v1("v_mov_b32", T3, 0)
    flag_load(sPf, 0, "pf")
    acc_to_lds()
    flag_check(sPf, 0, "K1_PF", "pf")
    PP = 208
    k.vmem(f"buffer_load_dwordx4 {vr(PP, 4)}, {L16}, {sr(SWS, 4)}, {sPo} offen sc1", wr=vs(PP, 4), rd=[L16, sPo], tag=("pp", 0))
    k.s2("s_add_u32", sT2, sPo, 8192)
    k.vmem(f"buffer_load_dwordx4 {vr(PP + 4, 4)}, {L16}, {sr(SWS, 4)}, {sT2} offen sc1", wr=vs(PP + 4, 4), rd=[L16, sT2], tag=("pp", 1))
    k.wait_lg0()
    k.barrier()
    k.stamp()
    gather(0, 72)
    gather(1, 104)
    k.v2("v_mul_u32_u24", T2, 1280, vQ)
    k.v3("v_lshl_add_u32", T2, vG, 3, T2)
    for i in range(2):
        k.s2("s_add_u32", sT0, sW, 8 * i)
        k.s2("s_mul_i32", sT1, sT0, 11)
        k.s2("s_lshr_b32", sT1, sT1, 5)
        k.s2("s_mul_i32", sT2, sT1, 3)
        k.s2("s_sub_u32", sT2, sT0, sT2)
        k.s2("s_mul_i32", sA, sRb, 48)
        k.s2("s_lshl_b32", sT2, sT2, 4)
        k.s2("s_add_u32", sA, sA, sT2)
        k.s2("s_mul_i32", sA, sA, 1280)
        k.s2("s_mul_i32", sBo, sCb, 160)
        k.s2("s_add_u32", sA, sA, sBo)
        k.s2("s_lshl_b32", sT1, sT1, 5)
        k.s2("s_add_u32", sA, sA, sT1)
        if i == 1:
            k.salu(f"s_cmp_lt_u32 {sW}, 7")
            k.salu(f"s_cselect_b32 {sA}, {sA}, {OOB}", wr=[sA])
        k.wait_lg(("r", i))
        d = 72 + i * 32
        tree(d)
        k.wait_vm(("pp", i))
        for r in range(4):
            k.v2("v_add_f32", v(d + r), v(d + r), v(PP + 4 * i + r))
        k.v2("v_cvt_pk_bf16_f32", v(d + 4), v(d), v(d + 1))
        k.v2("v_cvt_pk_bf16_f32", v(d + 5), v(d + 2), v(d + 3))
        k.vmem(f"buffer_store_dwordx2 {vr(d + 4, 2)}, {T2}, {sr(SOUT, 4)}, {sA} offen{OF}",
               rd=vs(d + 4, 2) + [T2, sA], tag="st")
    if opt.get("ts"):
        k.wait_vm0()
    k.flush_stamps(SWS, sW, TSBASE, 8)
    k.salu("s_endpgm")
    k.tail = k.lines[mark_tail:]
    del k.lines[mark_tail:]

    k.label(f"K1_SLOW{sfx}")
    k.nop(8)
    D = [SP, SP + 1, SP + 2]
    F = [SP + 4, SP + 5, SP + 6]
    xlane3("v_max_f32", D, [SP + 8, SP + 9, SP + 10])
    for qt in range(3):
        k.v1("v_ceil_f32", v(D[qt]), v(D[qt]))
        k.v2("v_max_f32", v(D[qt]), 0, v(D[qt]))
        k.v2("v_add_f32", v(MC[qt]), v(MC[qt]), v(D[qt]))
        if FOLD:
            for r in range(4):
                k.v2("v_sub_f32", v(NM[qt] + r), 0, v(MC[qt]))
        for r in range(8):
            x = sreg(qt, 0) + r
            k.v2("v_sub_f32", v(x), v(x), v(D[qt]))
        k.v2("v_sub_f32", v(F[qt]), 0, v(D[qt]))
        k.v1("v_exp_f32", v(F[qt]), v(F[qt]), trans=True)
        k.v2("v_mul_f32", v(LS[qt]), v(LS[qt]), v(F[qt]))
    for cc in range(7):
        if cc > 0:
            k.salu(f"s_cmp_le_u32 {sRet}, {cc}")
            k.salu(f"s_cbranch_scc1 K1_SLOW_DONE{sfx}")
        for qt in range(3):
            for r in range(4):
                x = preg(cc) + qt * 4 + r
                a, b = SP + 8, SP + 9
                k.v2("v_lshlrev_b32", v(a), 16, v(x))
                k.v2("v_and_b32", v(b), "0xffff0000", v(x))
                k.v2("v_mul_f32", v(a), v(a), v(F[qt]))
                k.v2("v_mul_f32", v(b), v(b), v(F[qt]))
                k.v2("v_cvt_pk_bf16_f32", v(x), v(a), v(b))
    k.label(f"K1_SLOW_DONE{sfx}")
    k.nop(4)
    for c in sites[:-1]:
        k.salu(f"s_cmp_eq_u32 {sRet}, {c}")
        k.salu(f"s_cbranch_scc1 K1_RET{c}{sfx}")
    k.salu(f"s_branch K1_RET{sites[-1]}{sfx}")
    return k, split


def build(opt):
    k0, split = gen(opt, 0)
    k1, _ = gen(opt, 1)
    assert k0.tail == k1.tail
    lines = k0.lines[:split]
    lines += ["    s_cmp_eq_u32 s49, 1", "    s_cbranch_scc1 K1_G1"]
    lines += k0.lines[split:]
    lines.append("K1_G1:")
    lines += k1.lines[split:]
    lines += k0.tail
    lines += ["K1_END:", "    s_endpgm", "K1_CODE_END:"]
    name = NAME + "_kernel"
    out = HEADER
    out += "; @launch grid=(256,1,1) block=(512,1,1) lds=163840\n"
    out += '.amdgcn_target "amdgcn-amd-amdhsa--gfx950"\n.text\n'
    out += f".globl {name}\n.p2align 8\n.type {name},@function\n{name}:\n" + "\n".join(lines) + "\n"
    out += '.section .rodata,"a"\n.p2align 6\n'
    out += kd(name, 256, 102)
    return out, k0


if __name__ == "__main__":
    opt = {}
    path = sys.argv[1] if len(sys.argv) > 1 else f"cdna_kernels/{NAME}.s"
    for a in sys.argv[2:]:
        kk, vv = a.split("=")
        opt[kk] = float(vv) if "." in vv else int(vv)
    txt, k1 = build(opt)
    open(path, "w").write(txt)
    print("wrote", path, len(txt), "bytes; slots", k1.slot, "stamps", k1.nstamp)
```

```python
import sys
import dsl
from dsl import Kern, vr, sr, vs, ss
from gen1 import (NAME, X_BYTES, KV_BYTES, W_BYTES, OUT_BYTES, WS_BYTES, OWS, WOT, CSCALE, TSBASE,
                  f32bits, build_srd, add_stamps, code_touch, HEADER, kd)

dsl.EXACT_VM = True
THRESH = 10.0
FLG = 24 << 20
WFL = 25 << 20
PART = 26 << 20
PFL = 31 << 20
OOB = "0x7f000000"


def v(i):
    return f"v{i}"


def gen(opt, G):
    k = Kern()
    add_stamps(k, opt)
    sfx = f"_{G}"
    NT = " nt" if opt.get("nt", 1) else ""
    SX, SK, SV, SWQ, SWO, SWS, SOUT, SDBG = 4, 8, 12, 16, 20, 24, 32, 36
    sW, sGrp, sQh, sKh, sWl, sHp, sB = "s48", "s49", "s50", "s51", "s52", "s53", "s54"
    sKV, sT0, sT1, sT2, sC, sRing, sM0K, sM0W, sM0X, sOff = (
        "s55", "s56", "s57", "s58", "s59", "s60", "s61", "s62", "s63", "s64")
    sWqOff, sXOff, sHead, sRet, sThr = "s65", "s66", "s67", "s28", "s29"
    sKW, sKX = "s3", "s47"
    sRb, sCb, sA, sBo, sFl = "s40", "s41", "s42", "s43", "s44"
    XS0 = 131072
    STAT = 155648

    k.stamp()
    k.salu("s_cmp_ge_u32 s2, 256")
    k.salu("s_cbranch_scc1 K1_END")
    k.salu("s_load_dwordx16 s[32:47], s[0:1], 0")
    CT = opt.get("ct", 0)
    if CT == 0:
        code_touch(k, "K1", "K1_CODE_END", "v0", "v2", "v31", 512)
    else:
        k.v1("v_mov_b32", "v63", "v0")
    k.v2("v_lshrrev_b32", "v1", 6, "v0")
    k.v2("v_and_b32", "v0", 63, "v0")
    k.valu(f"v_readfirstlane_b32 {sW}, v1", wr=[sW], rd=["v1"], lane=True)
    k.s2("s_and_b32", sT0, "s2", 7)
    k.s2("s_lshr_b32", sT1, "s2", 3)
    k.s2("s_and_b32", sHp, sT0, 3)
    k.s2("s_lshl_b32", sHp, sHp, 2)
    k.s2("s_and_b32", sT2, sT1, 3)
    k.s2("s_add_u32", sHp, sHp, sT2)
    if opt.get("hpx", 0):
        k.s2("s_xor_b32", sHp, sHp, opt.get("hpx"))
    k.s2("s_mul_i32", sKW, sT2, 10)
    k.s2("s_lshr_b32", sT2, sT1, 2)
    k.s2("s_mul_i32", sOff, sT2, 5)
    k.s2("s_add_u32", sKW, sKW, sOff)
    k.s2("s_lshr_b32", sKW, sKW, 2)
    k.s2("s_sub_u32", sOff, sKW, 10)
    k.salu(f"s_cmp_ge_u32 {sKW}, 10")
    k.salu(f"s_cselect_b32 {sKW}, {sOff}, {sKW}", wr=[sKW])
    if opt.get("rot", 1) == 0:
        k.s1("s_mov_b32", sKW, 0)
    elif opt.get("rot", 1) == 2:
        k.s2("s_and_b32", sKW, sKW, 1)
        k.s2("s_mul_i32", sKW, sKW, 5)
    k.s2("s_lshr_b32", sB, sT0, 2)
    k.s2("s_lshl_b32", sB, sB, 3)
    k.s2("s_add_u32", sB, sB, sT2)
    k.s2("s_lshr_b32", sGrp, sW, 2)
    k.s2("s_and_b32", sQh, sW, 1)
    k.s2("s_bfe_u32", sKh, sW, "0x10001")
    k.s2("s_and_b32", sWl, sW, 3)
    k.s2("s_lshl_b32", sHead, sHp, 1)
    k.s2("s_add_u32", sHead, sHead, sGrp)
    k.s2("s_lshl_b32", sT0, sB, 5)
    k.s2("s_add_u32", sT0, sT0, sHead)
    k.s2("s_lshl_b32", sKV, sT0, 17)
    k.s2("s_lshl_b32", sT1, sWl, 12)
    k.s2("s_add_u32", sKV, sKV, sT1)
    KROT = opt.get("krot", 4)
    if KROT:
        if KROT == 1:
            k.s2("s_add_u32", sT2, sHp, sB)
        elif KROT == 2:
            k.s2("s_and_b32", sT2, sHp, 1)
            k.s2("s_lshl_b32", sT2, sT2, 2)
        elif KROT == 3:
            k.s2("s_mul_i32", sT2, sT0, 5)
            k.s2("s_lshr_b32", sOff, sT0, 3)
            k.s2("s_add_u32", sT2, sT2, sOff)
        elif KROT == 4:
            k.s1("s_mov_b32", sT2, sHead)
        elif KROT == 5:
            k.s1("s_mov_b32", sT2, sB)
        elif KROT == 6:
            k.s2("s_lshl_b32", sT2, sGrp, 2)
        k.s2("s_and_b32", sT2, sT2, 7)
        k.s2("s_lshl_b32", sT2, sT2, 14)
        k.s2("s_or_b32", sKV, sKV, sT2)
    k.s2("s_lshl_b32", sRing, sGrp, 16)
    k.s2("s_add_u32", sM0K, sRing, sT1)
    k.s2("s_lshl_b32", sM0W, sW, 11)
    k.s2("s_add_u32", sM0W, sM0W, 32768)
    k.s2("s_mul_i32", sM0X, sW, 1536)
    k.s2("s_add_u32", sM0X, sM0X, XS0)
    k.s1("s_mov_b32", sC, hex(f32bits(CSCALE)))
    k.s1("s_mov_b32", sThr, hex(f32bits(opt.get("thr", THRESH))))

    LANE = "v0"
    T0, T1, T2, T3 = "v1", "v2", "v3", "v4"
    vG, vQ, L16 = "v5", "v6", "v7"
    KD = [8, 9, 10, 11]
    KR = [12, 13, 14, 15]
    VD = [16, 17]
    ST = 18
    MC = [18, 19, 20]
    LS = [21, 22, 23]
    VR = [24, 25, 26, 27, 28, 29, 30, 31]
    FR, QF, S0, SP = 32, 64, 112, 136
    ACC = 64
    QA = [32, 112]
    WQD = [24, 25]
    XD = [26, 27]
    WQR = [28, 29, 30, 60]
    XR = [18, 19]
    QW, QR = 20, 21
    STG = 160

    def preg(c):
        return 148 if c == 0 else 160 + 12 * (c - 1)

    def oreg(j, qt):
        o = j * 3 + qt
        return QF + 4 * o if o < 21 else 244 + 4 * (o - 21)

    k.v2("v_lshrrev_b32", vG, 4, LANE)
    k.v2("v_and_b32", vQ, 15, LANE)
    k.v2("v_lshlrev_b32", L16, 4, LANE)
    k.v2("v_lshrrev_b32", T0, 5, LANE)
    k.s2("s_lshl_b32", sT0, sKh, 2)
    k.v2("v_add_u32", T1, sT0, T0)
    k.s2("s_lshl_b32", sT0, sW, 2)
    k.v2("v_add_u32", T0, sT0, T0)
    k.v2("v_lshlrev_b32", T0, 13, T0)
    k.s2("s_lshl_b32", sT0, sHp, 9)
    k.v2("v_add_u32", T0, sT0, T0)
    k.v3("v_bfe_u32", T2, LANE, 4, 1)
    k.v3("v_lshl_add_u32", T0, T2, 8, T0)
    for i in range(2):
        k.v2("v_add_u32", T2, 2 * i, T1)
        k.v2("v_lshlrev_b32", T2, 1, T2)
        k.v2("v_xor_b32", T2, T2, vQ)
        k.v3("v_lshl_add_u32", v(WQD[i]), T2, 4, T0)
        if i:
            k.v2("v_add_u32", v(WQD[i]), 2 * 8192 - 1024, v(WQD[i]))
    k.s2("s_mul_i32", sT0, sW, 12)
    k.v2("v_lshrrev_b32", T0, 3, LANE)
    k.v2("v_add_u32", T0, sT0, T0)
    k.v2("v_and_b32", T3, 7, LANE)
    k.s2("s_mul_i32", sT1, sB, 96)
    k.s1("s_mov_b32", sT2, 1280)
    for i in range(2):
        if i:
            k.v2("v_add_u32", T0, 8, T0)
        k.v3("v_bfe_u32", T1, T0, 1, 3)
        k.v2("v_xor_b32", T1, T1, T3)
        k.v2("v_add_u32", T2, sT1, T0)
        k.v2("v_mul_lo_u32", T2, T2, sT2)
        k.v3("v_lshl_add_u32", v(XD[i]), T1, 4, T2)
        if i:
            k.v2("v_subrev_u32", v(XD[i]), 1024, v(XD[i]))

    k.salu("s_waitcnt lgkmcnt(0)")
    build_srd(k, SX, 32, X_BYTES)
    build_srd(k, SWQ, 38, W_BYTES)
    build_srd(k, SWS, 46, WS_BYTES)
    k.s1("s_mov_b32", sKX, sKW)
    k.stamp()

    def run(ps):
        for p in ps:
            p()

    def weave(prim, *secs):
        secs = [(list(l), st, sd, per) for (l, st, sd, per) in secs]
        for i, p in enumerate(prim):
            p()
            for (l, st, sd, per) in secs:
                if i >= st and (i - st) % sd == 0:
                    for _ in range(per):
                        if l:
                            l.pop(0)()
        for (l, st, sd, per) in secs:
            run(l)

    def wqs_off(pos):
        return (pos & 1) * 16384 + (pos >> 1) * 65536

    def setm0(base, off):
        if off:
            k.s2("s_add_u32", "m0", base, off)
        else:
            k.s1("s_mov_b32", "m0", base)

    def bump(ctr):
        k.s2("s_add_u32", ctr, ctr, 1)
        k.salu(f"s_cmp_eq_u32 {ctr}, 10")
        k.salu(f"s_cselect_b32 {ctr}, 0, {ctr}", wr=[ctr])

    def dma_wq(c):
        def p0():
            setm0(sM0W, wqs_off(c % 4))
            if c % 2 == 0:
                k.s2("s_lshl_b32", sWqOff, sKW, 19)
            else:
                k.s2("s_add_u32", sWqOff, sWqOff, 262144)
            k.vmem(f"buffer_load_dwordx4 {v(WQD[0])}, {sr(SWQ, 4)}, {sWqOff} offen lds",
                   rd=[v(WQD[0]), sWqOff], tag=("wq", c), dma=True)
            k.vmem(f"buffer_load_dwordx4 {v(WQD[1])}, {sr(SWQ, 4)}, {sWqOff} offen offset:1024 lds",
                   rd=[v(WQD[1]), sWqOff], tag=("wq", c), dma=True)
            if c % 2 == 1:
                bump(sKW)
        return [p0]

    def dma_x(j):
        def p0():
            setm0(sM0X, (j & 1) * 12288)
            k.s2("s_lshl_b32", sXOff, sKX, 7)
            k.vmem(f"buffer_load_dwordx4 {v(XD[0])}, {sr(SX, 4)}, {sXOff} offen lds",
                   rd=[v(XD[0]), sXOff], tag=("x", j), dma=True)
            k.salu("s_mov_b32 exec_hi, 0")
            k.vmem(f"buffer_load_dwordx4 {v(XD[1])}, {sr(SX, 4)}, {sXOff} offen offset:1024 lds",
                   rd=[v(XD[1]), sXOff], tag=("x", j), dma=True)
            k.salu("s_mov_b32 exec_hi, -1")
            bump(sKX)
        return [p0]

    run(dma_x(0) + dma_wq(0) + dma_wq(1))
    if CT == 1:
        code_touch(k, "K1", "K1_CODE_END", "v63", "v2", "v31", 512)
    build_srd(k, SK, 34, KV_BYTES)
    build_srd(k, SV, 36, KV_BYTES)
    build_srd(k, SWO, 40, W_BYTES)
    build_srd(k, SOUT, 42, OUT_BYTES)
    build_srd(k, SDBG, 44, 256)
    k.v2("v_xor_b32", T0, vQ, vG)
    k.v2("v_lshlrev_b32", T0, 4, T0)
    k.v3("v_lshl_add_u32", v(KD[0]), vG, 8, T0)
    for i in range(1, 4):
        k.v2("v_xor_b32", v(KD[i]), 64 * i, v(KD[0]))
    k.v2("v_lshlrev_b32", T0, 1, vG)
    k.v2("v_xor_b32", T0, T0, vQ)
    k.v2("v_lshlrev_b32", T0, 4, T0)
    k.v3("v_lshl_add_u32", v(VD[0]), vG, 8, T0)
    k.v2("v_xor_b32", v(VD[1]), 128, v(VD[0]))
    k.v3("v_bfe_u32", T0, LANE, 2, 2)
    k.v2("v_and_b32", T1, 1, vG)
    k.v3("v_lshl_add_u32", T1, T1, 2, T0)
    k.v3("v_lshl_add_u32", T2, vG, 3, T0)
    k.v2("v_lshlrev_b32", T2, 9, T2)
    k.v2("v_and_b32", T3, 3, LANE)
    k.v3("v_lshl_add_u32", T2, T3, 3, T2)
    k.s2("s_lshl_b32", sT0, sGrp, 8)
    k.s2("s_add_u32", sT0, sT0, 32768)
    k.v2("v_add_u32", T2, sT0, T2)
    k.s2("s_lshl_b32", sT0, sKh, 2)
    k.v2("v_xor_b32", T1, sT0, T1)
    for dt in range(4):
        k.v2("v_xor_b32", T3, dt, T1)
        k.v3("v_lshl_add_u32", v(WQR[dt]), T3, 5, T2)
    k.s2("s_mul_i32", sT0, sQh, 48 * 128)
    k.s2("s_add_u32", sT0, sT0, XS0)
    k.v2("v_lshlrev_b32", T0, 7, vQ)
    k.v2("v_add_u32", T0, sT0, T0)
    k.v2("v_lshrrev_b32", T1, 1, vQ)
    k.v2("v_xor_b32", T1, T1, vG)
    k.v3("v_lshl_add_u32", v(XR[0]), T1, 4, T0)
    k.v2("v_xor_b32", v(XR[1]), 64, v(XR[0]))
    k.s2("s_mul_i32", sT0, sQh, 12 * 1024)
    k.s2("s_add_u32", sT0, sT0, sRing)
    k.s2("s_add_u32", sT0, sT0, 32768)
    k.v2("v_add_u32", v(QR), sT0, L16)
    k.s2("s_lshl_b32", sT1, sKh, 11)
    k.s2("s_add_u32", sT0, sT0, sT1)
    k.v2("v_lshrrev_b32", T0, 1, vG)
    k.v2("v_lshlrev_b32", T0, 8, T0)
    k.v3("v_lshl_add_u32", T0, vQ, 4, T0)
    k.v2("v_and_b32", T1, 1, vG)
    k.v3("v_lshl_add_u32", T0, T1, 3, T0)
    k.v2("v_add_u32", v(QW), sT0, T0)
    k.s2("s_lshl_b32", sT0, sKh, 13)
    k.s2("s_add_u32", sT0, sT0, sRing)
    k.v2("v_xor_b32", T0, vG, vQ)
    k.v2("v_lshlrev_b32", T0, 4, T0)
    k.v3("v_lshl_add_u32", T0, vQ, 8, T0)
    k.v2("v_add_u32", v(KR[0]), sT0, T0)
    for ds_ in range(1, 4):
        k.v2("v_xor_b32", v(KR[ds_]), 64 * ds_, v(KR[0]))
    sRho = "s46"
    if opt.get("omap", 1) == 0:
        k.s2("s_lshr_b32", sT1, "s2", 3)
        k.s2("s_and_b32", sCb, sT1, 7)
        k.s2("s_lshr_b32", sT1, sT1, 3)
        k.s2("s_lshl_b32", sRho, sT1, 1)
        k.s2("s_add_u32", sRho, sRho, sCb)
        k.s2("s_bfe_u32", sT0, "s2", "0x20001")
        k.s2("s_lshl_b32", sT0, sT0, 2)
        k.s2("s_add_u32", sRb, sT0, sT1)
    else:
        k.s2("s_bfe_u32", sCb, "s2", "0x20003")
        k.s2("s_lshr_b32", sT1, "s2", 5)
        k.s2("s_lshl_b32", sRho, sCb, 1)
        k.s2("s_add_u32", sRho, sRho, sT1)
        k.s2("s_bfe_u32", sT0, "s2", "0x10001")
        k.s2("s_lshl_b32", sT0, sT0, 2)
        k.s2("s_add_u32", sCb, sCb, sT0)
        k.s2("s_bfe_u32", sT0, "s2", "0x10002")
        k.s2("s_lshl_b32", sT0, sT0, 3)
        k.s2("s_add_u32", sRb, sT0, sT1)
    k.s2("s_lshl_b32", sRb, sRb, 1)
    k.s2("s_and_b32", sT2, "s2", 1)
    k.s2("s_add_u32", sRb, sRb, sT2)
    k.s2("s_lshl_b32", sA, sT2, 3)
    k.s2("s_add_u32", sA, sA, sW)
    k.s2("s_lshl_b32", sA, sA, 3)
    k.s2("s_mul_i32", sBo, sA, 40)
    k.s2("s_mul_i32", sT0, sCb, 5)
    k.s2("s_add_u32", sBo, sBo, sT0)
    k.s2("s_lshl_b32", sBo, sBo, 10)
    k.s2("s_add_u32", sBo, sBo, WOT)
    k.s2("s_lshl_b32", sFl, sB, 4)
    k.s2("s_add_u32", sFl, sFl, sHp)
    k.s2("s_lshl_b32", sFl, sFl, 8)
    k.s2("s_add_u32", sFl, sFl, FLG)
    k.salu(f"s_cmp_eq_u32 {sW}, 0")
    k.salu(f"s_cselect_b32 {sFl}, {sFl}, {OOB}", wr=[sFl])

    sN0, sN1 = "s30", "s31"

    def flag_store(saddr, srd=SWS):
        k.v1("v_mov_b32", "v2", sN0)
        k.v1("v_mov_b32", "v3", sN1)
        k.v1("v_mov_b32", T0, 0)
        k.salu("s_mov_b64 exec, 1")
        k.vmem(f"buffer_store_dwordx2 v[2:3], {T0}, {sr(srd, 4)}, {saddr} offen sc1", rd=["v2", "v3", T0, saddr], tag="flag")
        k.salu("s_mov_b64 exec, -1")
        k.nop(2)

    k.salu("s_memrealtime s[30:31]")
    k.s2("s_or_b32", sT0, "s2", sW)
    k.salu(f"s_cmp_eq_u32 {sT0}, 0")
    k.salu(f"s_cselect_b32 {sT0}, 0, {OOB}", wr=[sT0])
    k.salu("s_waitcnt lgkmcnt(0)")
    k.s2("s_or_b32", sN1, sN1, "0x80000000")
    flag_store(sT0, SDBG)
    if opt.get("dly", 0) == 1:
        k.wait_vm("touch")
    if opt.get("dly", 0) == 2:
        k.wait_vm(("x", 0))
    if opt.get("dly", 0) == 3:
        k.wait_vm(("wq", 0))
    run(dma_x(1) + dma_wq(2) + dma_wq(3))
    split = len(k.lines)
    k.fence()
    if opt.get(f"prio{G}", 0):
        k.salu(f"s_setprio {opt.get(f'prio{G}')}")

    JIT = 0
    X5 = 0
    X5OFF = 131072 - G * 49152

    def slot_of(c):
        return c % 4 if c < 8 else (c - 9) % 5

    def slot_off(c):
        return X5OFF if slot_of(c) == 4 else slot_of(c) * 16384

    def dma_kv(c, staged=None):
        cc = c % 8

        def piece(i):
            def p():
                if staged is None:
                    setm0(sM0K, slot_off(c))
                if cc:
                    k.s2("s_xor_b32", sOff, sKV, cc * 16384)
                else:
                    k.s1("s_mov_b32", sOff, sKV)
                a, srd = (v(KD[i]), SK) if c < 8 else (v(VD[i & 1]), SV)
                if staged is None:
                    k.vmem(f"buffer_load_dwordx4 {a}, {sr(srd, 4)}, {sOff} offen offset:{i * 1024}{NT} lds",
                           rd=[a, sOff], tag=("kv", c), dma=True)
                else:
                    d = staged + 4 * i
                    k.vmem(f"buffer_load_dwordx4 {vr(d, 4)}, {a}, {sr(srd, 4)}, {sOff} offen offset:{i * 1024}{NT}",
                           wr=vs(d, 4), rd=[a, sOff], tag=("kv", c))
            return p
        return [piece(i) for i in range(4)]

    FOLD = opt.get("fold", 0)
    NM = [244, 248, 252]
    NSTG = 6 if JIT else opt.get("nstg", 5 if FOLD else 6)
    assert not (FOLD and NSTG > 5)
    sched = [opt.get(f"k{n}", d) for n, d in enumerate([7, 10, 13, 16, 19, 20, 22, 23])]
    issue = {}
    for n in range(2 + NSTG):
        issue.setdefault(sched[n], []).extend(dma_kv(n, None if n < 2 else STG + 16 * (n - 2)))

    WOL = 0
    WO_DMA, WO_DO, WO_SIG = opt.get("wodma", -1), opt.get("wodo", 3), opt.get("wosig", 7)
    assert WO_DO < sched[0] - 0

    def wo_dma():
        k.s2("s_lshr_b32", sT0, "s2", 1)
        k.s2("s_lshl_b32", sT0, sT0, 5)
        k.s2("s_lshl_b32", sT1, sW, 2)
        k.s2("s_add_u32", sT0, sT0, sT1)
        k.s2("s_mul_i32", sT0, sT0, 1280)
        k.s2("s_and_b32", sT2, "s2", 1)
        k.s2("s_mul_i32", sT2, sT2, 640)
        k.s2("s_add_u32", sT0, sT0, sT2)
        k.s2("s_mul_i32", sT1, sW, 4 * 640)
        if WOL:
            k.s2("s_add_u32", sT1, sT1, WOL)
        k.salu("s_mov_b32 exec_hi, 0xff")
        for i in range(4):
            k.s1("s_mov_b32", "m0", sT1)
            k.vmem(f"buffer_load_dwordx4 {L16}, {sr(SWO, 4)}, {sT0} offen lds", rd=[L16, sT0], tag="wo", dma=True)
            k.s2("s_add_u32", sT0, sT0, 1280)
            k.s2("s_add_u32", sT1, sT1, 640)
        k.salu("s_mov_b32 exec_hi, -1")

    WD = 144
    NWO = 3 if G == 0 else 2

    def wo_read():
        k.v3("v_bfe_u32", T0, LANE, 2, 2)
        k.v3("v_lshl_add_u32", T0, vG, 2, T0)
        k.v2("v_mul_u32_u24", T0, 640, T0)
        k.v2("v_and_b32", T1, 3, LANE)
        k.v3("v_lshl_add_u32", T0, T1, 3, T0)
        k.s2("s_lshl_b32", sT0, sW, 5)
        if WOL:
            k.s2("s_add_u32", sT0, sT0, WOL)
        k.v2("v_add_u32", T0, sT0, T0)
        for i in range(NWO):
            for u in range(2):
                d = WD + i * 4 + 2 * u
                k.ds(f"ds_read_b64_tr_b16 {vr(d, 2)}, {T0} offset:{u * 10240 + i * 256}",
                     wr=vs(d, 2), rd=[T0], tag="wor")

    def wo_store():
        k.s2("s_mul_i32", sT0, "s2", 20)
        k.s2("s_add_u32", sT0, sT0, sW)
        k.s2("s_lshl_b32", sT0, sT0, 10)
        k.s2("s_add_u32", sT0, sT0, WOT)
        for i in range(NWO):
            k.vmem(f"buffer_store_dwordx4 {vr(WD + 4 * i, 4)}, {L16}, {sr(SWS, 4)}, {sT0} offen sc1",
                   rd=vs(WD + 4 * i, 4) + [L16, sT0], tag="wost", store_data=vs(WD + 4 * i, 4))
            if i < NWO - 1:
                k.s2("s_add_u32", sT0, sT0, 8192)

    def w_signal():
        k.s2("s_lshl_b32", sT2, "s2", 6)
        k.s2("s_add_u32", sT2, sT2, WFL)
        k.salu(f"s_cmp_eq_u32 {sW}, 0")
        k.salu(f"s_cselect_b32 {sT2}, {sT2}, {OOB}", wr=[sT2])
        flag_store(sT2)

    def tlb_touch():
        k.s2("s_lshl_b32", sT0, sB, 1)
        k.s2("s_add_u32", sT0, sT0, sQh)
        k.s2("s_lshl_b32", sT0, sT0, 7)
        k.s2("s_lshl_b32", sT1, sHead, 2)
        k.s2("s_add_u32", sT0, sT0, sT1)
        k.s2("s_lshl_b32", sT1, sKh, 1)
        k.s2("s_add_u32", sT0, sT0, sT1)
        k.s2("s_mul_i32", sT0, sT0, 3072)
        k.v1("v_mov_b32", T0, 0)
        k.vmem(f"buffer_load_dword v156, {T0}, {sr(SWS, 4)}, {sT0} offen sc1", wr=["v156"], rd=[T0, sT0], tag="tlb")
        k.s1("s_mov_b32", sT1, FLG + (1 << 19))
        k.vmem(f"buffer_load_dword v157, {T0}, {sr(SWS, 4)}, {sT1} offen sc1", wr=["v157"], rd=[T0, sT1], tag="tlb")
        k.s2("s_mul_i32", sT2, sRb, 48 * 1280)
        k.vmem(f"buffer_load_dword v158, {T0}, {sr(SOUT, 4)}, {sT2} offen sc1", wr=["v158"], rd=[T0, sT2], tag="tlb")

    NV = 62

    def nonce_load():
        k.v1("v_mov_b32", v(61), 0)
        k.vmem(f"buffer_load_dwordx2 {vr(NV, 2)}, v61, {sr(SDBG, 4)}, 0 offen sc1", wr=vs(NV, 2), rd=["v61"], tag="nonce")

    def nonce_check():
        name = f"K1_N{sfx}"
        k.wait_vm("nonce")
        k.s1("s_mov_b32", sT1, 0)
        k.label(f"{name}_CMP")
        k._emit(f"v_readfirstlane_b32 {sN0}, v{NV}")
        k._emit(f"v_readfirstlane_b32 {sN1}, v{NV + 1}")
        k._emit(f"s_add_u32 {sT1}, {sT1}, 1")
        k._emit(f"s_cmp_lg_u32 {sN1}, 0")
        k._emit(f"s_cbranch_scc1 {name}_OK")
        k._emit(f"s_cmp_ge_u32 {sT1}, 0x40000")
        k._emit(f"s_cbranch_scc1 {name}_OK")
        k._emit("s_sleep 4")
        k._emit(f"buffer_load_dwordx2 {vr(NV, 2)}, v61, {sr(SDBG, 4)}, 0 offen sc1")
        k._emit("s_waitcnt vmcnt(0)")
        k._emit(f"s_branch {name}_CMP")
        k.label(f"{name}_OK")
        k.nop(4)

    def q_reads(c):
        ops = []
        A = QA[c & 1]
        B = A + 16
        for qt in range(3):
            ops.append(lambda qt=qt: k.ds(
                f"ds_read_b128 {vr(B + 4 * qt, 4)}, {v(XR[c & 1])} offset:{qt * 2048 + ((c // 2) & 1) * 12288}",
                wr=vs(B + 4 * qt, 4), rd=[v(XR[c & 1])], tag="qf"))
        for dt in range(4):
            def rd2(dt=dt):
                if c > 0 and c % 2 == 0:
                    k.v2("v_xor_b32", v(WQR[dt]), "0x10000", v(WQR[dt]))
                for u in range(2):
                    k.ds(f"ds_read_b64_tr_b16 {vr(A + 4 * dt + 2 * u, 2)}, {v(WQR[dt])} offset:{u * 2048 + (c & 1) * 16384}",
                         wr=vs(A + 4 * dt + 2 * u, 2), rd=[v(WQR[dt])], tag="qf")
            ops.append(rd2)
        return ops

    if WO_DMA == -1:
        wo_dma()
    run(issue.get(-1, []))
    k.wait_vm(("x", 0))
    k.wait_vm(("wq", 0))
    k.barrier()
    k.stamp()
    run(q_reads(0))
    for c in range(20):
        k.comment(f"---- qproj kstep {c}")
        if c + 1 < 20:
            k.wait_vm(("x", (c + 1) // 2))
            k.wait_vm(("wq", c + 1))
        if c == WO_DO:
            k.wait_vm("wo")
        if c == WO_SIG - 1:
            nonce_check()
        if c == WO_SIG:
            k.wait_vm("wost")
        k.wait_lg0()
        k.barrier()
        if c in ((3, 7, 11, 15) if not opt.get("dbg15") else (7, 15)):
            k.stamp()
        pieces = []
        if c % 2 == 1 and (c + 1) // 2 + 1 < 10:
            pieces += dma_x((c + 1) // 2 + 1)
        if c + 4 < 20:
            pieces += dma_wq(c + 4)
        if c == WO_DMA:
            pieces.append(wo_dma)
        if c == WO_DO + 1:
            pieces.append(wo_store)
        if c == WO_SIG - 4:
            pieces.insert(0, nonce_load)
        if c == opt.get("tlb", -1):
            pieces.append(tlb_touch)
        if c == WO_SIG and G == 0:
            pieces.append(w_signal)
        pieces += issue.get(c, [])
        A = QA[c & 1]
        B = A + 16
        mf = []
        for dt in range(4):
            for qt in range(3):
                d = ACC + (dt * 3 + qt) * 4
                mf.append(lambda d=d, dt=dt, qt=qt: k.mfma(d, A + 4 * dt, B + 4 * qt, d if c else None))
        rds = q_reads(c + 1) if c + 1 < 20 else []
        if c == WO_DO:
            rds.append(wo_read)
        weave(mf, (rds, 0, 1, 1), (pieces, opt.get("qdma0", 1) if G == 0 else opt.get("qdma1", 7), 3, 1))
    k.stamp()
    TQ = 32
    for dt in range(4):
        for qt in range(3):
            d = ACC + (dt * 3 + qt) * 4
            t = TQ + (dt * 3 + qt) * 2
            if FOLD:
                for r in range(4):
                    k.v2("v_mul_f32", v(d + r), sC, v(d + r))
            k.v2("v_cvt_pk_bf16_f32", v(t), v(d), v(d + 1))
            k.v2("v_cvt_pk_bf16_f32", v(t + 1), v(d + 2), v(d + 3))
            k.ds(f"ds_write_b64 {v(QW)}, {vr(t, 2)} offset:{qt * 4096 + dt * 512}", rd=[v(QW)] + vs(t, 2), tag="qw")
    k.v3("v_bfe_u32", T0, LANE, 2, 2)
    k.v2("v_and_b32", T1, 1, vG)
    k.v3("v_lshl_add_u32", T1, T1, 2, T0)
    k.s2("s_lshl_b32", sT0, sKh, 2)
    k.s2("s_xor_b32", sT0, sT0, 4)
    k.v2("v_xor_b32", T1, sT0, T1)
    k.v3("v_lshl_add_u32", T2, vG, 2, T0)
    k.v2("v_lshlrev_b32", T2, 8, T2)
    k.v2("v_and_b32", T3, 3, LANE)
    k.v3("v_lshl_add_u32", T2, T3, 3, T2)
    k.s2("s_lshl_b32", sT0, sKh, 13)
    k.s2("s_add_u32", sT0, sT0, sRing)
    k.v2("v_add_u32", T2, sT0, T2)
    for j in range(8):
        k.v2("v_xor_b32", T3, j, T1)
        k.v3("v_lshl_add_u32", v(VR[j]), T3, 5, T2)

    def k_reads(c):
        slot = slot_of(c)
        ops = []
        for t in range(2):
            for ds_ in range(4):
                d = FR + (t * 4 + ds_) * 4
                ops.append(lambda d=d, t=t, ds_=ds_: k.ds(
                    f"ds_read_b128 {vr(d, 4)}, {v(KR[ds_])} offset:{slot * 16384 + t * 4096}",
                    wr=vs(d, 4), rd=[v(KR[ds_])], tag=("kf", t, ds_)))
        return ops

    def v_reads(c, half):
        x5 = slot_of(c) == 4
        back = c > 8 and slot_of(c - 1) == 4
        slot = 0 if x5 else slot_of(c)
        ops = []
        for j in range(4 * half, 4 * half + 4):
            for u in range(2):
                d = FR + j * 4 + 2 * u

                def op(d=d, j=j, u=u):
                    if x5 and u == 0:
                        k.v2("v_add_u32", v(VR[j]), X5OFF, v(VR[j]))
                    if back and u == 0:
                        k.v2("v_subrev_u32", v(VR[j]), X5OFF, v(VR[j]))
                    k.ds(f"ds_read_b64_tr_b16 {vr(d, 2)}, {v(VR[j])} offset:{slot * 16384 + u * 4096}",
                         wr=vs(d, 2), rd=[v(VR[j])], tag=("vf", j))
                ops.append(op)
        return ops

    def sreg(qt, t):
        return S0 + (qt * 2 + t) * 4

    def xlane3(op, rs, tmps):
        for sw in ("v_permlane32_swap_b32", "v_permlane16_swap_b32"):
            for r, t in zip(rs, tmps):
                k.v1("v_mov_b32", v(t), v(r))
            for r, t in zip(rs, tmps):
                k.valu(f"{sw} {v(r)}, {v(t)}", wr=[v(r), v(t)], rd=[v(r), v(t)], perm=True)
            for r, t in zip(rs, tmps):
                k.v2(op, v(r), v(r), v(t))

    def max8x3(dsts):
        for qt in range(3):
            b = sreg(qt, 0)
            k.v3("v_max3_f32", v(dsts[qt]), v(b), v(b + 1), v(b + 2))
        for i in (3, 5):
            for qt in range(3):
                b = sreg(qt, 0)
                k.v3("v_max3_f32", v(dsts[qt]), v(dsts[qt]), v(b + i), v(b + i + 1))
        for qt in range(3):
            b = sreg(qt, 0)
            k.v2("v_max_f32", v(dsts[qt]), v(dsts[qt]), v(b + 7))

    sites = []

    def s_mfma(c):
        ops = []
        for t in range(2):
            for ds_ in range(4):
                for qt in range(3):
                    def op(t=t, ds_=ds_, qt=qt):
                        if qt == 0:
                            k.wait_lg(("kf", t, ds_))
                        d = sreg(qt, t)
                        k.mfma(d, FR + (t * 4 + ds_) * 4, QF + (qt * 4 + ds_) * 4,
                               d if ds_ else (NM[qt] if (FOLD and c > 0) else None))
                    ops.append(op)
        return ops

    def softmax(c):
        ops = []

        def fm(r0):
            if FOLD and c > 0:
                return
            for r in range(r0, r0 + 4):
                for qt in range(3):
                    x = sreg(qt, 0) + r
                    if FOLD:
                        k.v2("v_sub_f32", v(x), v(x), v(MC[qt]))
                    else:
                        k.v3("v_fma_f32", v(x), v(x), sC, f"-{v(MC[qt])}")

        def head():
            k.comment(f"softmax {c}")
            if c == 0:
                max8x3(MC)
                xlane3("v_max_f32", MC, [SP, SP + 1, SP + 2])
                for qt in range(3):
                    if FOLD:
                        for r in range(4):
                            k.v2("v_sub_f32", v(NM[qt] + r), 0, v(MC[qt]))
                    else:
                        k.v2("v_mul_f32", v(MC[qt]), sC, v(MC[qt]))
            fm(0)

        def check():
            if c > 0:
                max8x3([SP, SP + 1, SP + 2])
                k.v3("v_max3_f32", v(SP + 3), v(SP), v(SP + 1), v(SP + 2))
                k.valu(f"v_cmp_lt_f32 vcc, {sThr}, {v(SP + 3)}", wr=["vcc"], rd=[sThr, v(SP + 3)])
                k.s1("s_mov_b32", sRet, c)
                k.nop(4)
                k.salu(f"s_cbranch_vccnz K1_SLOW{sfx}")
                k.label(f"K1_RET{c}{sfx}")
                sites.append(c)
                k.fence()
        ops += [head, lambda: fm(4), check]

        def body(r):
            if r < 8:
                for qt in range(3):
                    x = sreg(qt, 0) + r
                    k.v1("v_exp_f32", v(x), v(x), trans=True)
            if r >= 1:
                rr = r - 1
                for qt in range(3):
                    b = sreg(qt, 0)
                    if c == 0 and rr == 0:
                        continue
                    if c == 0 and rr == 1:
                        k.v2("v_add_f32", v(LS[qt]), v(b), v(b + 1))
                    else:
                        k.v2("v_add_f32", v(LS[qt]), v(LS[qt]), v(b + rr))
                if rr % 2 == 1:
                    for qt in range(3):
                        b = sreg(qt, 0)
                        k.v2("v_cvt_pk_bf16_f32", v(preg(c) + qt * 4 + rr // 2), v(b + rr - 1), v(b + rr))
        for r in range(9):
            ops.append(lambda r=r: body(r))
        return ops

    def pv_mfma(c, half):
        cv = c - 8
        ops = []
        for j in range(4 * half, 4 * half + 4):
            for qt in range(3):
                def op(j=j, qt=qt):
                    if qt == 0:
                        k.wait_lg(("vf", j))
                    d = oreg(j, qt)
                    k.mfma(d, FR + j * 4, preg(cv) + qt * 4, d if cv else None)
                ops.append(op)
        return ops

    def stage_out(n):
        k.wait_vm(("kv", n))
        k.s2("s_add_u32", sT2, sM0K, slot_of(n) * 16384)
        k.v2("v_add_u32", T0, sT2, L16)
        for i in range(4):
            d = STG + 16 * (n - 2) + 4 * i
            k.ds(f"ds_write_b128 {T0}, {vr(d, 4)} offset:{i * 1024}", rd=[T0] + vs(d, 4), tag="stg")

    so_at = {n: (1 if n < 4 else n - 2) for n in range(2, 2 + NSTG)}
    dma_at = {n: max(1, n - 3) for n in range(2 + NSTG, 8)}
    dma_at[8] = opt.get("d8", 4)
    dma_at.update({n: n - 4 for n in range(9, 16)})

    OF = ["", " sc1", " nt", " sc0 sc1"][opt.get("of", 1)]
    OSF = [" sc1", " sc0 sc1", " sc1 nt", " sc0 sc1 nt"][opt.get("osf", 0)]
    BF = ["", " sc1", " sc0", " nt"][opt.get("bf", 1)]
    AF = ["", " sc1", " sc0", " nt"][opt.get("af", 1)]
    BSL = [148, 168, 188, 68, 96, 116, 208, 228]
    AR = [88, 92, 136, 140, 144, 248, 252]
    OACC = 8
    L16B = "v8"
    sOB, sOA = "s65", "s66"

    def rot_off(dst, j, base, stride):
        k.s2("s_add_u32", dst, sRho, j)
        k.s2("s_and_b32", dst, dst, 7)
        k.s2("s_mul_i32", dst, dst, stride)
        k.s2("s_add_u32", dst, dst, base)

    def loadB(j):
        ops = []
        for nt in range(5):
            def op(nt=nt):
                if nt == 0:
                    rot_off(sOB, j, sBo, 40960)
                a, o = (L16, nt * 1024) if nt < 4 else (L16B, 0)
                d = BSL[j] + 4 * nt
                k.vmem(f"buffer_load_dwordx4 {vr(d, 4)}, {a}, {sr(SWS, 4)}, {sOB} offen offset:{o}{BF}",
                       wr=vs(d, 4), rd=[a, sOB], tag=("b", j))
            ops.append(op)
        return ops

    WCHK = opt.get("wchk", 11)
    EARLYB = 1
    EB = [opt.get("eb0", 15), opt.get("eb1", 15), opt.get("eb2", 15)]

    def flag_load(soff, imm, tag):
        k.vmem(f"buffer_load_dwordx2 v[2:3], {T3}, {sr(SWS, 4)}, {soff} offen offset:{imm} sc1", wr=["v2", "v3"],
               rd=[T3] + ([soff] if isinstance(soff, str) else []), tag=tag)

    def flag_check(soff, imm, name, tag):
        k.wait_vm(tag)
        k.s1("s_mov_b32", sT1, 0)
        k.label(f"{name}_CMP")
        k._emit(f"v_cmp_ne_u64 vcc, s[30:31], v[2:3]")
        k._emit(f"s_add_u32 {sT1}, {sT1}, 1")
        k._emit("s_nop 3")
        k._emit(f"s_cbranch_vccz {name}_OK")
        k._emit(f"s_cmp_ge_u32 {sT1}, 0x40000")
        k._emit(f"s_cbranch_scc1 {name}_OK")
        k._emit(f"s_sleep {opt.get('slp', 4)}")
        k._emit(f"buffer_load_dwordx2 v[2:3], {T3}, {sr(SWS, 4)}, {soff} offen offset:{imm} sc1")
        k._emit("s_waitcnt vmcnt(0)")
        k._emit(f"s_branch {name}_CMP")
        k.label(f"{name}_OK")

    sWf = "s45"

    def sync(c):
        if opt.get("dbg15") and c == 15:
            k.stamp()
        if c < 16 and not (2 <= c < 2 + NSTG):
            k.wait_vm(("kv", c))
        if opt.get("dbg15") and c == 15:
            k.stamp()
        if c == WCHK:
            flag_check(sWf, 0, f"K1_W{sfx}", "wp")
        k.wait_lg0()
        k.barrier()
        if not (opt.get("dbgp") and 1 <= c <= 6):
            k.stamp()
        if c == opt.get("warm", -1):
            rot_off(sOB, 0, sBo, 40960)
            k.v2("v_lshlrev_b32", T3, 3, L16)
            k.v2("v_min_u32", T3, 39 * 128, T3)
            k.vmem(f"buffer_load_dword {T1}, {T3}, {sr(SWS, 4)}, {sOB} offen sc1", wr=[T1], rd=[T3, sOB], tag="warm")
        if c == WCHK - 3:
            k.v2("v_and_b32", T3, 7, LANE)
            k.v2("v_lshlrev_b32", T3, 7, T3)
            k.s2("s_lshl_b32", sWf, sA, 7)
            k.s2("s_lshr_b32", sT0, sCb, 2)
            k.s2("s_lshl_b32", sT0, sT0, 6)
            k.s2("s_add_u32", sWf, sWf, sT0)
            k.s2("s_add_u32", sWf, sWf, WFL)
            flag_load(sWf, 0, "wp")

    def scr_addr(swl):
        k.s2("s_add_u32", sT0, swl, 1)
        k.s2("s_lshl_b32", sT0, sT0, 14)
        k.salu(f"s_cmp_eq_u32 {swl}, 0")
        k.salu(f"s_cselect_b32 {sT0}, 0, {sT0}", wr=[sT0])
        k.salu(f"s_cmp_eq_u32 {swl}, 3")
        k.salu(f"s_cselect_b32 {sT0}, {X5OFF}, {sT0}", wr=[sT0])
        if G:
            k.s2("s_add_u32", sT0, sT0, G * 65536)
        k.v2("v_add_u32", T1, sT0, L16)

    for c in range(17):
        k.comment(f"---- interval {c}")
        if c < 16:
            sync(c)
        so = [(lambda n=n: stage_out(n)) for n in sorted(so_at) if so_at[n] == c]
        dm = list(issue.get(20 + c, []))
        for n in sorted(dma_at):
            if dma_at[n] == c:
                dm += dma_kv(n)
        if c == 0:
            for ds_ in range(4):
                for qt in range(3):
                    d = QF + (qt * 4 + ds_) * 4
                    k.ds(f"ds_read_b128 {vr(d, 4)}, {v(QR)} offset:{(qt * 4 + ds_) * 1024}",
                         wr=vs(d, 4), rd=[v(QR)], tag="qr")
            run(k_reads(0))
            run(dm)
            if G == 0:
                run(s_mfma(0))
        elif c <= 8:
            rds = k_reads(c) if c < 8 else v_reads(8, 0)
            if G == 1:
                weave(s_mfma(c - 1), (so, 2, 6, 1))
            else:
                run(so)
            weave(softmax(c - 1), (rds, 0, 1, 2), (dm, 3, 1, 1))
            if c < 8:
                if G == 0:
                    run(s_mfma(c))
            else:
                weave(pv_mfma(8, 0), (v_reads(8, 1), 0, 1, 1))
        elif c < 16:
            if c == 12:
                xlane3("v_add_f32", LS, [1, 2, 3])
                k.s2("s_lshl_b32", sT0, sWl, 9)
                k.s2("s_add_u32", sT0, sT0, G * 65536 + 32768 + 12288)
                k.v3("v_lshl_add_u32", T3, vQ, 5, sT0)
                k.ds(f"ds_write_b128 {T3}, {vr(ST, 4)}", rd=[T3] + vs(ST, 4), tag="mw")
                k.ds(f"ds_write_b64 {T3}, {vr(ST + 4, 2)} offset:16", rd=[T3] + vs(ST + 4, 2), tag="mw")
            if c == 13:
                k.s2("s_lshl_b32", sT0, sWl, 9)
                k.s2("s_xor_b32", sT0, sT0, 1024)
                k.s2("s_add_u32", sT0, sT0, G * 65536 + 32768 + 12288)
                k.v3("v_lshl_add_u32", T3, vQ, 5, sT0)
                k.ds(f"ds_read_b128 {vr(148, 4)}, {T3}", wr=vs(148, 4), rd=[T3], tag="ps")
                k.ds(f"ds_read_b64 {vr(152, 2)}, {T3} offset:16", wr=vs(152, 2), rd=[T3], tag="ps")
            if c == 14:
                PS, MM, R3 = 148, [156, 157, 158], range(3)
                for qt in R3:
                    k.v2("v_max_f32", v(MM[qt]), v(MC[qt]), v(PS + qt))
                for qt in R3:
                    k.v2("v_sub_f32", v(MC[qt]), v(MC[qt]), v(MM[qt]))
                    k.v2("v_sub_f32", v(PS + qt), v(PS + qt), v(MM[qt]))
                for qt in R3:
                    k.v1("v_exp_f32", v(MC[qt]), v(MC[qt]), trans=True)
                    k.v1("v_exp_f32", v(PS + qt), v(PS + qt), trans=True)
                for qt in R3:
                    k.v2("v_mul_f32", v(MM[qt]), v(MC[qt]), v(LS[qt]))
                for qt in R3:
                    k.v3("v_fma_f32", v(MM[qt]), v(PS + qt), v(PS + 3 + qt), v(MM[qt]))
                for qt in R3:
                    k.v1("v_rcp_f32", v(MM[qt]), v(MM[qt]), trans=True)
                for qt in R3:
                    k.v2("v_mul_f32", v(MC[qt]), v(MC[qt]), v(MM[qt]))
                    k.v2("v_mul_f32", v(LS[qt]), v(PS + qt), v(MM[qt]))
            if c == 9:
                k.v2("v_add_u32", L16B, 4096, L16)
            if EARLYB:
                for jb, cb_ in enumerate(EB):
                    if cb_ == c:
                        dm = dm + loadB(jb)
            d0, d1 = (dm, []) if G == 0 else ([], dm)
            if len(dm) > 4:
                d0, d1 = dm[:len(dm) // 2], dm[len(dm) // 2:]
            weave(pv_mfma(c - 1, 1), (v_reads(c, 0), 0, 1, 1), (d0, 1, 2, 1))
            weave(pv_mfma(c, 0), (v_reads(c, 1), 0, 1, 1), (d1, 1, 2, 1))
        else:
            scr_addr(sWl)
            wr_ops = []
            for j in range(4):
                for qt in range(3):
                    wr_ops.append(lambda j=j, qt=qt: k.ds(
                        f"ds_write_b128 {T1}, {vr(oreg(j, qt), 4)} offset:{(j * 3 + qt) * 1024}",
                        rd=[T1] + vs(oreg(j, qt), 4), tag="mw"))
            k.wait_lg0()
            weave(pv_mfma(15, 1), (wr_ops, 0, 1, 1))
    k.stamp()
    k.wait_lg0()
    k.barrier()
    if opt.get("dbgp"):
        k.stamp()
    k.s2("s_xor_b32", sT1, sWl, 2)
    scr_addr(sT1)
    for j in range(4):
        for qt in range(3):
            d = oreg(j, qt)
            k.ds(f"ds_read_b128 {vr(d, 4)}, {T1} offset:{(j * 3 + qt) * 1024}", wr=vs(d, 4), rd=[T1], tag=("po", j))
    for jb, cb_ in enumerate(EB):
        if cb_ == 16:
            run(loadB(jb))
    FO, FP = MC, LS
    k.s2("s_lshl_b32", sT0, sB, 1)
    k.s2("s_add_u32", sT0, sT0, sQh)
    k.s2("s_lshl_b32", sT0, sT0, 7)
    k.s2("s_lshl_b32", sT1, sHead, 2)
    k.s2("s_add_u32", sT0, sT0, sT1)
    k.s2("s_lshl_b32", sT1, sKh, 1)
    k.s2("s_add_u32", sT0, sT0, sT1)
    k.s2("s_mul_i32", sT0, sT0, 3072)
    if OWS:
        k.s2("s_add_u32", sT0, sT0, OWS)
    k.s2("s_add_u32", sT1, sT0, 3072)
    OD = 208
    for jj in range(2):
        for e in range(2):
            j = 2 * jj + e
            for qt in range(3):
                d = oreg(4 + j, qt)
                for r in range(4):
                    k.v2("v_mul_f32", v(d + r), v(d + r), v(FO[qt]))
            k.wait_lg(("po", j))
            for qt in range(3):
                d = oreg(4 + j, qt)
                p = oreg(j, qt)
                for r in range(4):
                    k.valu(f"v_fmac_f32 {v(d + r)}, {v(p + r)}, {v(FP[qt])}", wr=[v(d + r)],
                           rd=[v(d + r), v(p + r), v(FP[qt])])
                od = OD + (jj * 3 + qt) * 4 + 2 * e
                k.v2("v_cvt_pk_bf16_f32", v(od), v(d), v(d + 1))
                k.v2("v_cvt_pk_bf16_f32", v(od + 1), v(d + 2), v(d + 3))
        for qt in range(3):
            od = OD + (jj * 3 + qt) * 4
            so = sT1 if jj else sT0
            k.vmem(f"buffer_store_dwordx4 {vr(od, 4)}, {L16}, {sr(SWS, 4)}, {so} offen offset:{qt * 1024}{OSF}",
                   rd=vs(od, 4) + [L16, so], tag="ost", store_data=vs(od, 4))
    k.salu("s_branch K1_TAIL")
    mark_tail = len(k.lines)

    k.label("K1_TAIL")
    k.fence()
    if opt.get("dbgp"):
        k.stamp()
    rest = [j for j in range(8) if not (j < 3 and EB[j] < 17)]
    for j in rest[:opt.get("npre", 3)]:
        run(loadB(j))
    if opt.get("dbgp"):
        k.stamp()
    k.wait_vm("ost")
    if opt.get("dbgp"):
        k.stamp()
    k.barrier()
    k.stamp()
    flag_store(sFl)
    sA1, sA2, sPo, sPf = "s60", "s61", "s62", "s63"
    k.s2("s_lshr_b32", sFl, sRb, 1)
    k.s2("s_lshl_b32", sFl, sFl, 12)
    k.s2("s_lshl_b32", sT0, sA, 5)
    k.s2("s_add_u32", sFl, sFl, sT0)
    k.s2("s_add_u32", sFl, sFl, FLG)
    k.v1("v_mov_b32", T3, 0)
    late = rest[opt.get("npre", 3):]
    nf = opt.get("fpos", 0)
    for j in late[:nf]:
        run(loadB(j))
    flag_load(sFl, 0, "f0")
    for j in late[nf:]:
        run(loadB(j))
    k.s2("s_lshl_b32", sA2, sRb, 7)
    k.s2("s_add_u32", sA2, sA2, sA)
    k.s2("s_xor_b32", sA1, sA2, 128)
    k.s2("s_mul_i32", sA1, sA1, 3072)
    k.s2("s_mul_i32", sA2, sA2, 3072)
    if OWS:
        k.s2("s_add_u32", sA1, sA1, OWS)
        k.s2("s_add_u32", sA2, sA2, OWS)
    k.s2("s_lshl_b32", sPo, "s2", 4)
    k.s2("s_add_u32", sPo, sPo, sW)
    k.s2("s_lshl_b32", sPo, sPo, 10)
    k.s2("s_add_u32", sPo, sPo, PART)
    k.s2("s_lshl_b32", sPf, "s2", 3)
    k.s2("s_add_u32", sPf, sPf, sW)
    k.s2("s_lshl_b32", sPf, sPf, 6)
    k.s2("s_add_u32", sPf, sPf, PFL)
    flag_check(sFl, 0, "K1_F0", "f0")
    k.stamp()

    plan = {f: (AR[f % 7], f - 7) for f in range(38)}
    for i in range(5):
        plan[38 + i] = (BSL[2] + 4 * i, 32)
        plan[43 + i] = (BSL[3] + 4 * i, 35)
    cur = [None]

    def loadA(f):
        ps, j, mt = f // 24, (f % 24) // 3, f % 3
        if cur[0] != (ps, j):
            rot_off(sOA, j, sA2 if ps else sA1, 3072)
            cur[0] = (ps, j)
        d = plan[f][0]
        k.vmem(f"buffer_load_dwordx4 {vr(d, 4)}, {L16}, {sr(SWS, 4)}, {sOA} offen offset:{mt * 1024}{AF}",
               wr=vs(d, 4), rd=[L16, sOA], tag=("a", f))

    LW = "v0"

    def acc_to_lds():
        for t in range(15):
            k.ds(f"ds_write_b128 {LW}, {vr(OACC + 4 * t, 4)} offset:{t * 1024}", rd=[LW] + vs(OACC + 4 * t, 4), tag="w")

    def gather(i, RB):
        k.s2("s_lshl_b32", sT0, sW, 10)
        k.s2("s_add_u32", sT0, sT0, i * 8192)
        k.v2("v_add_u32", T0, sT0, L16)
        k.v2("v_add_u32", T1, 65536, T0)
        for s_ in range(8):
            d = RB + s_ * 4
            k.ds(f"ds_read_b128 {vr(d, 4)}, {T0 if s_ < 4 else T1} offset:{(s_ % 4) * 16384}", wr=vs(d, 4),
                 rd=[T0 if s_ < 4 else T1], tag=("r", i))

    def tree(RB):
        for step in (16, 8, 4):
            for o in range(0, step):
                k.v2("v_add_f32", v(RB + o), v(RB + o), v(RB + o + step))

    k.s2("s_lshl_b32", sT0, sW, 14)
    k.v2("v_add_u32", LW, sT0, L16)
    for f in range(7):
        loadA(f)
    R1 = opt.get("r1", 2)
    for f in range(48):
        ps, j, mt = f // 24, (f % 24) // 3, f % 3
        if f == 24:
            k.stamp()
            acc_to_lds()
        if ps == 1 and mt == 0 and j == R1:
            k.comment("reduce pass-1 partials and hand them to the partner")
            k.wait_lg0()
            if opt.get("dbgp"):
                k.stamp()
            k.barrier()
            if opt.get("dbgp"):
                k.stamp()
            for i in range(2):
                RB = 148
                gather(i, RB)
                k.wait_lg(("r", i))
                tree(RB)
                d = RB + 32 + 4 * i
                for r in range(4):
                    k.v1("v_mov_b32", v(d + r), v(RB + r))
                so = sPo
                if i:
                    k.s2("s_add_u32", sT2, sPo, 8192)
                    so = sT2
                k.vmem(f"buffer_store_dwordx4 {vr(d, 4)}, {L16}, {sr(SWS, 4)}, {so} offen sc1",
                       rd=vs(d, 4) + [L16, so], tag="pst", store_data=vs(d, 4))
            k.stamp()
        if ps == 1 and mt == 0 and j == R1 + opt.get("r2", 3):
            k.wait_vm("pst")
            flag_store(sPf)
            k.barrier()
        k.wait_vm(("a", f))
        if ps == 0 and mt == 0:
            k.wait_vm(("b", j))
        for nt in range(5):
            d = OACC + (nt * 3 + mt) * 4
            k.mfma(d, BSL[j] + 4 * nt, plan[f][0], d if j else None)
        for g in sorted(plan):
            if plan[g][1] == f:
                loadA(g)
    k.stamp()
    k.s2("s_xor_b32", sPf, sPf, 512)
    k.s2("s_xor_b32", sPo, sPo, 16384)
    k.v1("v_mov_b32", T3, 0)
    flag_load(sPf, 0, "pf")
    acc_to_lds()
    flag_check(sPf, 0, "K1_PF", "pf")
    PP = 208
    k.vmem(f"buffer_load_dwordx4 {vr(PP, 4)}, {L16}, {sr(SWS, 4)}, {sPo} offen sc1", wr=vs(PP, 4), rd=[L16, sPo], tag=("pp", 0))
    k.s2("s_add_u32", sT2, sPo, 8192)
    k.vmem(f"buffer_load_dwordx4 {vr(PP + 4, 4)}, {L16}, {sr(SWS, 4)}, {sT2} offen sc1", wr=vs(PP + 4, 4), rd=[L16, sT2], tag=("pp", 1))
    k.wait_lg0()
    k.barrier()
    k.stamp()
    gather(0, 72)
    gather(1, 104)
    k.v2("v_mul_u32_u24", T2, 1280, vQ)
    k.v3("v_lshl_add_u32", T2, vG, 3, T2)
    for i in range(2):
        k.s2("s_add_u32", sT0, sW, 8 * i)
        k.s2("s_mul_i32", sT1, sT0, 11)
        k.s2("s_lshr_b32", sT1, sT1, 5)
        k.s2("s_mul_i32", sT2, sT1, 3)
        k.s2("s_sub_u32", sT2, sT0, sT2)
        k.s2("s_mul_i32", sA, sRb, 48)
        k.s2("s_lshl_b32", sT2, sT2, 4)
        k.s2("s_add_u32", sA, sA, sT2)
        k.s2("s_mul_i32", sA, sA, 1280)
        k.s2("s_mul_i32", sBo, sCb, 160)
        k.s2("s_add_u32", sA, sA, sBo)
        k.s2("s_lshl_b32", sT1, sT1, 5)
        k.s2("s_add_u32", sA, sA, sT1)
        if i == 1:
            k.salu(f"s_cmp_lt_u32 {sW}, 7")
            k.salu(f"s_cselect_b32 {sA}, {sA}, {OOB}", wr=[sA])
        k.wait_lg(("r", i))
        d = 72 + i * 32
        tree(d)
        k.wait_vm(("pp", i))
        for r in range(4):
            k.v2("v_add_f32", v(d + r), v(d + r), v(PP + 4 * i + r))
        k.v2("v_cvt_pk_bf16_f32", v(d + 4), v(d), v(d + 1))
        k.v2("v_cvt_pk_bf16_f32", v(d + 5), v(d + 2), v(d + 3))
        k.vmem(f"buffer_store_dwordx2 {vr(d + 4, 2)}, {T2}, {sr(SOUT, 4)}, {sA} offen{OF}",
               rd=vs(d + 4, 2) + [T2, sA], tag="st")
    if opt.get("ts"):
        k.wait_vm0()
    k.flush_stamps(SWS, sW, TSBASE, 8)
    k.salu("s_endpgm")
    k.tail = k.lines[mark_tail:]
    del k.lines[mark_tail:]

    k.label(f"K1_SLOW{sfx}")
    k.nop(8)
    D = [SP, SP + 1, SP + 2]
    F = [SP + 4, SP + 5, SP + 6]
    xlane3("v_max_f32", D, [SP + 8, SP + 9, SP + 10])
    for qt in range(3):
        k.v1("v_ceil_f32", v(D[qt]), v(D[qt]))
        k.v2("v_max_f32", v(D[qt]), 0, v(D[qt]))
        k.v2("v_add_f32", v(MC[qt]), v(MC[qt]), v(D[qt]))
        if FOLD:
            for r in range(4):
                k.v2("v_sub_f32", v(NM[qt] + r), 0, v(MC[qt]))
        for r in range(8):
            x = sreg(qt, 0) + r
            k.v2("v_sub_f32", v(x), v(x), v(D[qt]))
        k.v2("v_sub_f32", v(F[qt]), 0, v(D[qt]))
        k.v1("v_exp_f32", v(F[qt]), v(F[qt]), trans=True)
        k.v2("v_mul_f32", v(LS[qt]), v(LS[qt]), v(F[qt]))
    for cc in range(7):
        if cc > 0:
            k.salu(f"s_cmp_le_u32 {sRet}, {cc}")
            k.salu(f"s_cbranch_scc1 K1_SLOW_DONE{sfx}")
        for qt in range(3):
            for r in range(4):
                x = preg(cc) + qt * 4 + r
                a, b = SP + 8, SP + 9
                k.v2("v_lshlrev_b32", v(a), 16, v(x))
                k.v2("v_and_b32", v(b), "0xffff0000", v(x))
                k.v2("v_mul_f32", v(a), v(a), v(F[qt]))
                k.v2("v_mul_f32", v(b), v(b), v(F[qt]))
                k.v2("v_cvt_pk_bf16_f32", v(x), v(a), v(b))
    k.label(f"K1_SLOW_DONE{sfx}")
    k.nop(4)
    for c in sites[:-1]:
        k.salu(f"s_cmp_eq_u32 {sRet}, {c}")
        k.salu(f"s_cbranch_scc1 K1_RET{c}{sfx}")
    k.salu(f"s_branch K1_RET{sites[-1]}{sfx}")
    return k, split


def build(opt):
    k0, split = gen(opt, 0)
    k1, _ = gen(opt, 1)
    assert k0.tail == k1.tail
    lines = k0.lines[:split]
    lines += ["    s_cmp_eq_u32 s49, 1", "    s_cbranch_scc1 K1_G1"]
    lines += k0.lines[split:]
    lines.append("K1_G1:")
    lines += k1.lines[split:]
    lines += k0.tail
    lines += ["K1_END:", "    s_endpgm", "K1_CODE_END:"]
    name = NAME + "_kernel"
    out = HEADER
    out += "; @launch grid=(256,1,1) block=(512,1,1) lds=163840\n"
    out += '.amdgcn_target "amdgcn-amd-amdhsa--gfx950"\n.text\n'
    out += f".globl {name}\n.p2align 8\n.type {name},@function\n{name}:\n" + "\n".join(lines) + "\n"
    out += '.section .rodata,"a"\n.p2align 6\n'
    out += kd(name, 256, 102)
    return out, k0


if __name__ == "__main__":
    opt = {}
    path = sys.argv[1] if len(sys.argv) > 1 else f"cdna_kernels/{NAME}.s"
    for a in sys.argv[2:]:
        kk, vv = a.split("=")
        opt[kk] = float(vv) if "." in vv else int(vv)
    txt, k1 = build(opt)
    open(path, "w").write(txt)
    print("wrote", path, len(txt), "bytes; slots", k1.slot, "stamps", k1.nstamp)
```
